```python
import torch

def _softmax(x, axis=-1):
    return torch.softmax(x, dim=axis)
def _gelu(x):
    return torch.nn.functional.gelu(x, approximate="tanh")
def _silu(x):
    return torch.nn.functional.silu(x)
def _sigmoid(x):
    return torch.sigmoid(x)
def _layernorm(x, axis=-1, eps=1e-5):
    m = x.mean(dim=axis, keepdim=True)
    v = x.var(dim=axis, keepdim=True, unbiased=False)
    return (x - m) / torch.sqrt(v + eps)
def _scatter_add(tgt, idx, src, axis=0):
    return tgt.clone().index_add_(axis, idx, src)
def _segment_sum(src, seg, n):
    out = torch.zeros((n,) + src.shape[1:], dtype=src.dtype)
    return out.index_add_(0, seg, src)
def _pad(x, pw):
    flat = tuple(v for pair in reversed(pw) for v in pair)
    return torch.nn.functional.pad(x, flat)

kernel_name = 'concat_heads__ssm_conv_s4d__softmax_full_mha__prompt'

def setup_inputs():

    _w = (lambda a: (lambda t: t.to(torch.bfloat16) if t.is_floating_point() else t)(torch.as_tensor(a)))
    def _A_setup():
        Bsz, L, D, N = 1, 2048, 512, 128
        return {
            "u": _w((lambda *s: torch.randn(*s, dtype=torch.bfloat16) * 0.05)(Bsz, L, D)),
            "log_A_real": _w((lambda *s: torch.randn(*s, dtype=torch.bfloat16) * 6.4)(D, N) * 0.5),
            "A_imag": _w((lambda *s: torch.randn(*s, dtype=torch.bfloat16) * 0.1)(D, N) * 3.14),
            "C_real": _w((lambda *s: torch.randn(*s, dtype=torch.bfloat16) * 0.4)(D, N) / N ** 0.5),
            "C_imag": _w((lambda *s: torch.randn(*s, dtype=torch.bfloat16) * 0.4)(D, N) / N ** 0.5),
            "log_dt": _w((lambda *s: torch.randn(*s, dtype=torch.bfloat16) * 0.1)(D) * 0.5 - 4.0),
            "D_skip": _w((lambda *s: torch.randn(*s, dtype=torch.bfloat16) * 0.1)(D)),
        }
    _A_in = _A_setup()

    def _B_setup():
        B, S, D = 1, 2048, 512
        return {
            "x": _w((lambda *s: torch.randn(*s, dtype=torch.bfloat16) * 0.2)(B, S, D)),
            "wqkv": _w((lambda *s: torch.randn(*s, dtype=torch.bfloat16) * 0.2)(D, 3 * D)),
            "wo": _w((lambda *s: torch.randn(*s, dtype=torch.bfloat16) * 0.05)(D, D)),
        }
    _B_in = _B_setup()

    return {
        "A_u": _A_in["u"],
        "A_log_A_real": _A_in["log_A_real"],
        "A_A_imag": _A_in["A_imag"],
        "A_C_real": _A_in["C_real"],
        "A_C_imag": _A_in["C_imag"],
        "A_log_dt": _A_in["log_dt"],
        "A_D_skip": _A_in["D_skip"],
        "B_x": _B_in["x"],
        "B_wqkv": _B_in["wqkv"],
        "B_wo": _B_in["wo"],
    }

def reference(A_u, A_log_A_real, A_A_imag, A_C_real, A_C_imag, A_log_dt, A_D_skip, B_x, B_wqkv, B_wo):
    def _A_ref(u, log_A_real, A_imag, C_real, C_imag, log_dt, D_skip):
        L = u.shape[1]
        dt = torch.exp(log_dt)
        A = -torch.exp(log_A_real) + 1j * A_imag
        C = (C_real + 1j * C_imag) * dt[:, None]
        pos = (lambda x, dt: x.to(dt))(torch.arange(L), log_dt.dtype)
        P = torch.exp((A * dt[:, None])[:, :, None] * pos[None, None, :])
        K = 2.0 * torch.einsum("dn,dnl->dl", C, P).real
        L2 = 2 * L
        u_t = (lambda x, *d: x.permute(*d))(u, 0, 2, 1)
        Kf = (lambda x, *a, **k: torch.fft.rfft(x.float(), *a, **k))(K, L2)
        Uf = (lambda x, *a, **k: torch.fft.rfft(x.float(), *a, **k))(u_t, L2)
        y = (lambda x, *a, **k: torch.fft.irfft(x, *a, **k).to(torch.bfloat16))(Uf * Kf[None, :, :], L2)[:, :, :L]
        y = (lambda x, *d: x.permute(*d))(y, 0, 2, 1)
        return y + u * D_skip[None, None, :]

    def _B_ref(x, wqkv, wo):
        B, S, D = x.shape
        H = 32; Dh = D // H
        qkv = (lambda x, *d: x.permute(*d))((x @ wqkv).reshape(B, S, 3, H, Dh), 2, 0, 3, 1, 4)
        q, k, v = qkv[0], qkv[1], qkv[2]
        scale = Dh ** -0.5
        scores = torch.einsum("bhqd,bhkd->bhqk", q, k) * scale
        p = _softmax(scores, axis=-1)
        o = torch.einsum("bhqk,bhkd->bhqd", p, v)
        return (lambda x, *d: x.permute(*d))(o, 0, 2, 1, 3).reshape(B, S, D) @ wo

    a = _A_ref(A_u, A_log_A_real, A_A_imag, A_C_real, A_C_imag, A_log_dt, A_D_skip)
    b = _B_ref(B_x, B_wqkv, B_wo)
    return torch.concatenate([a, b], axis=-1)
```

```python
from gen import K, vr, f32bits, MB, WS_Q, WS_K, WS_V, WS_O, WS_SIZE, LOG2E

def attn():
    k = K("attn_kernel"); e = k.e
    e("s_cmp_ge_u32 s2, 256"); e(f"s_cbranch_scc1 {k.name}_end")
    e("s_load_dwordx2 s[8:9], s[0:1], 96")
    e("v_lshrrev_b32 v1, 6, v0")
    e("v_and_b32 v0, 63, v0")
    e("s_nop 0")
    e("v_readfirstlane_b32 s3, v1")
    e("s_and_b32 s24, s2, 7"); e("s_lshl_b32 s24, s24, 2")
    e("s_lshr_b32 s25, s2, 3"); e("s_and_b32 s25, s25, 3"); e("s_add_u32 s24, s24, s25")
    e("s_lshr_b32 s25, s2, 5")
    e("s_waitcnt lgkmcnt(0)")
    k.srd(20, 8, WS_SIZE)
    e("v_lshlrev_b32 v2, 4, v0")
    e("s_lshl_b32 s26, s25, 3"); e("s_add_u32 s26, s26, s3")
    e("s_lshl_b32 s27, s24, 6"); e("s_add_u32 s27, s27, s26"); e("s_lshl_b32 s27, s27, 10")
    QF = 4
    e(f"buffer_load_dwordx4 {vr(QF,4)}, v2, s[20:23], s27 offen")
    e("s_lshl_b32 s28, s24, 16")
    e("s_lshl_b32 s29, s3, 13")
    for sec, base in ((0, WS_K), (1, WS_V)):
        for j in range(8):
            e(f"s_add_u32 s30, s29, {j*1024 + sec*65536}")
            e("s_mov_b32 m0, s30")
            e(f"s_add_u32 s31, s29, {j*1024 + base}"); e("s_add_u32 s31, s31, s28")
            e(f"buffer_load_dwordx4 v2, s[20:23], s31 offen lds")
    S = [16, 32]
    CM = 48
    O = 64
    KB = [80, 84]
    VB = [88, 96]
    P = 104
    MX = 112
    e("v_and_b32 v3, 15, v0"); e("v_lshlrev_b32 v3, 4, v3")
    e("v_lshrrev_b32 v8, 5, v0"); e("v_lshlrev_b32 v8, 8, v8"); e("v_add_u32 v3, v3, v8"); e("v_add_u32 v3, 65536, v3")
    e("v_and_b32 v8, 31, v0")
    e("v_cmp_eq_u32 s[32:33], 16, v8"); e("v_cmp_eq_u32 s[34:35], 20, v8")
    e("s_or_b64 s[32:33], s[32:33], s[34:35]")
    e("v_mov_b32 v9, 0x3f803f80")
    e("s_nop 0")
    e("v_cndmask_b32 v9, 0, v9, s[32:33]")
    for b in VB:
        for i in range(8): e(f"v_mov_b32 v{b+i}, v9")
    for i in range(16): e(f"v_mov_b32 v{O+i}, 0")
    e(f"v_mov_b32 v{MX}, 0xff800000")
    e("s_mov_b32 s36, 0x0000ffff"); e("s_mov_b32 s37, 0x0000ffff")
    e("s_waitcnt vmcnt(8)"); e("s_barrier")
    e("v_mov_b32 v10, v2")
    e(f"ds_read_b128 {vr(KB[0],4)}, v10")
    e(f"ds_read_b128 {vr(KB[1],4)}, v10 offset:1024")
    e("s_waitcnt lgkmcnt(1)")
    e(f"v_mfma_f32_32x32x16_bf16 {vr(S[0],16)}, {vr(KB[0],4)}, {vr(QF,4)}, 0")
    e(f"ds_read_b128 {vr(KB[0],4)}, v10 offset:2048")
    e("s_mov_b32 s38, 0")
    l1 = k.new("P1")
    k.lab(l1)
    e("s_waitcnt lgkmcnt(1)")
    e(f"v_mfma_f32_32x32x16_bf16 {vr(S[1],16)}, {vr(KB[1],4)}, {vr(QF,4)}, 0")
    e(f"ds_read_b128 {vr(KB[1],4)}, v10 offset:3072")
    k.nop(10)
    for i in range(8): e(f"v_max3_f32 v{MX}, v{S[0]+2*i}, v{S[0]+2*i+1}, v{MX}")
    e("s_waitcnt lgkmcnt(1)")
    e(f"v_mfma_f32_32x32x16_bf16 {vr(S[0],16)}, {vr(KB[0],4)}, {vr(QF,4)}, 0")
    e(f"ds_read_b128 {vr(KB[0],4)}, v10 offset:4096")
    e("v_add_u32 v10, 2048, v10")
    k.nop(9)
    for i in range(8): e(f"v_max3_f32 v{MX}, v{S[1]+2*i}, v{S[1]+2*i+1}, v{MX}")
    e("s_add_u32 s38, s38, 2"); e("s_cmp_lt_u32 s38, 64"); e(f"s_cbranch_scc1 {l1}")
    e(f"v_mov_b32 v{MX+1}, v{MX}")
    k.nop(2)
    e(f"v_permlane32_swap_b32 v{MX}, v{MX+1}")
    k.nop(2)
    e(f"v_max_f32 v{MX}, v{MX}, v{MX+1}")
    e(f"v_sub_f32 v{MX}, 0, v{MX}")
    for i in range(16): e(f"v_mov_b32 v{CM+i}, v{MX}")
    e("s_waitcnt vmcnt(0) lgkmcnt(0)"); e("s_barrier")
    e("v_mov_b32 v10, v2")
    def vread(buf, off):
        e("s_mov_b64 exec, s[36:37]")
        e(f"ds_read_b128 {vr(VB[buf],4)}, v3 offset:{off}")
        e(f"ds_read_b128 {vr(VB[buf]+4,4)}, v3 offset:{off+512}")
        e("s_mov_b64 exec, -1")
    e(f"ds_read_b128 {vr(KB[0],4)}, v10")
    e("s_waitcnt lgkmcnt(0)")
    e(f"v_mfma_f32_32x32x16_bf16 {vr(S[0],16)}, {vr(KB[0],4)}, {vr(QF,4)}, {vr(CM,16)}")
    e(f"ds_read_b128 {vr(KB[1],4)}, v10 offset:1024")
    vread(0, 0)
    k.nop(8)
    e("s_mov_b32 s38, 0")
    l2 = k.new("P2")
    k.lab(l2)
    for p in range(2):
        e("s_waitcnt lgkmcnt(2)")
        e(f"v_mfma_f32_32x32x16_bf16 {vr(S[1-p],16)}, {vr(KB[1-p],4)}, {vr(QF,4)}, {vr(CM,16)}")
        e(f"ds_read_b128 {vr(KB[p],4)}, v10 offset:{2048 + p*1024}")
        vread(1-p, 1024 + p*1024)
        for i in range(8): e(f"v_exp_f32 v{S[p]+i}, v{S[p]+i}")
        for i in range(8, 12): e(f"v_exp_f32 v{S[p]+i}, v{S[p]+i}")
        for i in range(4): e(f"v_cvt_pk_bf16_f32 v{P+i}, v{S[p]+2*i}, v{S[p]+2*i+1}")
        for i in range(12, 16): e(f"v_exp_f32 v{S[p]+i}, v{S[p]+i}")
        e("s_waitcnt lgkmcnt(3)")
        e(f"v_mfma_f32_32x32x16_bf16 {vr(O,16)}, {vr(VB[p],4)}, {vr(P,4)}, {vr(O,16)}")
        for i in range(4, 8): e(f"v_cvt_pk_bf16_f32 v{P+i}, v{S[p]+2*i}, v{S[p]+2*i+1}")
        k.nop(2)
        e(f"v_mfma_f32_32x32x16_bf16 {vr(O,16)}, {vr(VB[p]+4,4)}, {vr(P+4,4)}, {vr(O,16)}")
    e("v_add_u32 v10, 2048, v10"); e("v_add_u32 v3, 2048, v3")
    e("s_add_u32 s38, s38, 2"); e("s_cmp_lt_u32 s38, 64"); e(f"s_cbranch_scc1 {l2}")
    k.nop(16)
    e(f"v_rcp_f32 v8, v{O+8}")
    k.nop(1)
    for i in range(8): e(f"v_mul_f32 v{O+i}, v{O+i}, v8")
    for i in range(4): e(f"v_cvt_pk_bf16_f32 v{P+i}, v{O+2*i}, v{O+2*i+1}")
    e(f"s_add_u32 s27, s27, {WS_O}")
    e(f"buffer_store_dwordx4 {vr(P,4)}, v2, s[20:23], s27 offen")
    e("s_waitcnt lgkmcnt(0)")
    return k, 128, (256, 512, 131072)

KERNELS = {"attn": attn}

def gemm2():
    k = K("gemm2_kernel"); e = k.e
    e("s_cmp_ge_u32 s2, 256"); e(f"s_cbranch_scc1 {k.name}_end")
    e("s_load_dwordx2 s[6:7], s[0:1], 72")
    e("s_load_dwordx2 s[8:9], s[0:1], 96")
    e("s_load_dwordx2 s[10:11], s[0:1], 80")
    e("v_lshrrev_b32 v1, 6, v0")
    e("v_and_b32 v0, 63, v0")
    e("s_nop 0")
    e("v_readfirstlane_b32 s3, v1")
    e("s_lshr_b32 s24, s2, 3")
    e("s_and_b32 s25, s2, 7")
    e("s_and_b32 s26, s3, 1")
    e("s_lshr_b32 s27, s3, 1")
    e("s_waitcnt lgkmcnt(0)")
    k.srd(12, 10, 2048*1024*2); k.srd(16, 6, 512*512*2); k.srd(20, 8, WS_SIZE)
    e("v_lshrrev_b32 v3, 3, v0")
    e("v_and_b32 v4, 2, v3"); e("v_lshlrev_b32 v4, 1, v4")
    e("v_and_b32 v5, 7, v0"); e("v_xor_b32 v5, v5, v4"); e("v_lshlrev_b32 v5, 4, v5")
    e("v_and_b32 v6, 3, v3")
    e("v_and_b32 v7, 4, v3"); e("v_lshlrev_b32 v7, 1, v7"); e("v_add_u32 v6, v6, v7")
    e("v_lshlrev_b32 v6, 10, v6"); e("v_add_u32 v4, v6, v5")
    e("s_lshl_b32 s28, s25, 7")
    OF = 128
    e("v_lshlrev_b32 v2, 4, v0")
    e("s_lshl_b32 s29, s24, 1"); e("s_add_u32 s29, s29, s26"); e("s_lshl_b32 s29, s29, 10"); e(f"s_add_u32 s29, s29, {WS_O}")
    for j in range(16):
        e(f"s_lshl_b32 s30, s3, 4"); e(f"s_add_u32 s30, s30, {j}")
        e("s_lshl_b32 s31, s30, 10"); e("s_mov_b32 m0, s31")
        e("s_lshr_b32 s32, s30, 1"); e("s_lshl_b32 s32, s32, 14")
        e("s_and_b32 s33, s30, 1"); e("s_lshl_b32 s33, s33, 12"); e("s_add_u32 s32, s32, s33"); e("s_add_u32 s32, s32, s28")
        e("buffer_load_dwordx4 v4, s[16:19], s32 offen lds")
    for s in range(32):
        e(f"buffer_load_dwordx4 {vr(OF+4*s,4)}, v2, s[20:23], s29 offen")
        if s < 31: e("s_add_u32 s29, s29, 65536")
    e("v_lshrrev_b32 v7, 5, v0"); e("v_lshlrev_b32 v7, 3, v7")
    e("v_and_b32 v8, 15, v0"); e("v_lshrrev_b32 v8, 2, v8"); e("v_add_u32 v7, v7, v8"); e("v_lshlrev_b32 v7, 7, v7")
    e("v_lshrrev_b32 v8, 1, v8"); e("v_xor_b32 v8, s27, v8"); e("v_lshlrev_b32 v8, 6, v8"); e("v_add_u32 v7, v7, v8")
    e("v_and_b32 v8, 1, v0"); e("v_lshlrev_b32 v8, 5, v8"); e("v_add_u32 v7, v7, v8")
    e("v_lshrrev_b32 v8, 4, v0"); e("v_and_b32 v8, 1, v8"); e("v_lshlrev_b32 v8, 4, v8"); e("v_add_u32 v7, v7, v8")
    e("v_lshrrev_b32 v8, 1, v0"); e("v_and_b32 v8, 1, v8"); e("v_lshlrev_b32 v8, 3, v8"); e("v_add_u32 v7, v7, v8")
    ACC = 16; WF = 32
    for i in range(16): e(f"v_mov_b32 v{ACC+i}, 0")
    e("s_waitcnt vmcnt(32)"); e("s_barrier")
    def wread(s, pb):
        for hs in range(2):
            e(f"ds_read_b64_tr_b16 {vr(WF+4*pb+2*hs,2)}, v7 offset:{s*2048+hs*512}")
    NB = 4
    for s in range(NB-1): wread(s, s % NB)
    for s in range(32):
        if s + NB - 1 < 32:
            wread(s+NB-1, (s+NB-1) % NB); e(f"s_waitcnt lgkmcnt({2*(NB-1)})")
        else:
            e(f"s_waitcnt lgkmcnt({2*(31-s)})")
        e(f"s_waitcnt vmcnt({31-s})")
        e(f"v_mfma_f32_32x32x16_bf16 {vr(ACC,16)}, {vr(WF+4*(s%NB),4)}, {vr(OF+4*s,4)}, {vr(ACC,16)}")
    k.nop(16)
    for i in range(8): e(f"v_cvt_pk_bf16_f32 v{48+i}, v{ACC+2*i}, v{ACC+2*i+1}")
    e("s_lshl_b32 s30, s24, 6"); e("s_lshl_b32 s31, s26, 5"); e("s_add_u32 s30, s30, s31")
    e("v_and_b32 v3, 31, v0"); e("v_add_u32 v3, s30, v3"); e("v_lshlrev_b32 v3, 11, v3")
    e("v_lshrrev_b32 v5, 5, v0"); e("v_lshlrev_b32 v5, 5, v5"); e("v_add_u32 v3, v3, v5")
    e("s_lshl_b32 s31, s27, 6"); e("s_add_u32 s31, s31, s28"); e("s_add_u32 s31, s31, 1024")
    e("buffer_store_dwordx4 v[48:51], v3, s[12:15], s31 offen")
    e("buffer_store_dwordx4 v[52:55], v3, s[12:15], s31 offen offset:16")
    return k, 256, (256, 256, 65536)

KERNELS["gemm2"] = gemm2

def ssm():
    k = K("ssm_kernel"); e = k.e
    UT = 1024; UTP = 4640; KT = 10304; KLIN = 22592; KC = 26816; KCP = 4288; LDS = 61120
    P = 2063
    e("s_cmp_ge_u32 s2, 256"); e(f"s_cbranch_scc1 {k.name}_end")
    e("s_load_dwordx4 s[56:59], s[0:1], 0")
    e("s_load_dwordx4 s[60:63], s[0:1], 16")
    e("s_load_dwordx4 s[64:67], s[0:1], 32")
    e("s_load_dwordx2 s[68:69], s[0:1], 48")
    e("s_load_dwordx2 s[70:71], s[0:1], 80")
    e("v_mov_b32 v1, v0")
    e("v_lshrrev_b32 v2, 6, v0")
    e("v_and_b32 v0, 63, v0")
    e("s_nop 0")
    e("v_readfirstlane_b32 s3, v2")
    e("s_and_b32 s24, s2, 7"); e("s_lshl_b32 s24, s24, 5"); e("s_lshr_b32 s25, s2, 3"); e("s_add_u32 s24, s24, s25")
    e("s_lshl_b32 s24, s24, 1")
    e("s_lshl_b32 s25, s24, 1")
    e("s_waitcnt lgkmcnt(0)")
    k.srd(12, 56, 2*MB); k.srd(16, 58, 131072); k.srd(20, 60, 131072); k.srd(40, 62, 131072); k.srd(44, 64, 131072); k.srd(48, 70, 4*MB)
    e("s_add_u32 s66, s66, s25"); e("s_addc_u32 s67, s67, 0")
    e("s_add_u32 s68, s68, s25"); e("s_addc_u32 s69, s69, 0")
    e("s_load_dword s52, s[66:67], 0"); e("s_load_dword s54, s[68:69], 0")
    e("v_lshlrev_b32 v3, 13, v1"); e("v_add_u32 v3, s25, v3"); e("v_add_u32 v4, 4096, v3")
    for j in range(8):
        e(f"buffer_load_dword v{200+j}, v{3 if j<4 else 4}, s[12:15], 0 offen offset:{(j%4)*1024}")
    e("s_lshr_b32 s26, s3, 1")
    e("s_and_b32 s27, s3, 1")
    e("s_add_u32 s28, s24, s26"); e("s_lshl_b32 s28, s28, 8"); e("s_lshl_b32 s29, s27, 7"); e("s_add_u32 s28, s28, s29")
    e("v_lshrrev_b32 v5, 4, v0"); e("v_lshlrev_b32 v5, 5, v5"); e("v_add_u32 v5, s28, v5")
    for base, srd in ((64, 16), (72, 20), (80, 40), (88, 44)):
        e(f"buffer_load_dwordx4 {vr(base,4)}, v5, s[{srd}:{srd+3}], 0 offen")
        e(f"buffer_load_dwordx4 {vr(base+4,4)}, v5, s[{srd}:{srd+3}], 0 offen offset:16")
    e("v_and_b32 v10, 15, v0")
    e("v_lshlrev_b32 v6, 3, v10"); e("v_cvt_f32_u32 v6, v6")
    def zhi(dst, z):
        e(f"v_lshrrev_b32 v12, 3, v{z}"); e("v_lshlrev_b32 v12, 7, v12"); e(f"v_and_b32 v13, 7, v{z}"); e("v_add_u32 v12, v12, v13")
        e(f"v_cvt_f32_u32 v{dst}, v12")
    zhi(7, 10)
    e("v_lshlrev_b32 v11, 1, v10"); e("v_add_u32 v11, 16, v11"); e("v_lshlrev_b32 v14, 2, v10")
    e("v_cmp_gt_u32 vcc, 8, v10"); e("s_nop 1"); e("v_cndmask_b32 v11, v14, v11, vcc")
    zhi(8, 11)
    e("v_lshlrev_b32 v11, 3, v10"); e("v_add_u32 v11, 64, v11")
    zhi(9, 11)
    for i in range(4): e(f"v_mov_b32 v{16+i}, 0")
    e("v_lshlrev_b32 v12, 4, v1")
    e("v_cmp_gt_u32 vcc, 32, v1"); e("s_and_saveexec_b64 s[30:31], vcc")
    e(f"ds_write_b128 v12, v[16:19] offset:{UT}"); e(f"ds_write_b128 v12, v[16:19] offset:{UT+UTP}")
    e("s_mov_b64 exec, s[30:31]")
    e("v_cmp_gt_u32 vcc, 2, v1"); e("s_and_saveexec_b64 s[30:31], vcc")
    e(f"ds_write_b128 v12, v[16:19] offset:{KLIN}")
    e(f"ds_write_b128 v12, v[16:19] offset:{UT+4608}"); e(f"ds_write_b128 v12, v[16:19] offset:{UT+UTP+4608}")
    e("s_mov_b64 exec, s[30:31]")
    e("v_cmp_gt_u32 vcc, 6, v1"); e("s_and_saveexec_b64 s[30:31], vcc")
    e(f"ds_write_b128 v12, v[16:19] offset:{KLIN+258*16}")
    e("s_mov_b64 exec, s[30:31]")
    e("s_waitcnt lgkmcnt(0)")
    e("s_lshl_b32 s53, s52, 16"); e("s_and_b32 s55, s52, 0xffff0000"); e("s_cmp_eq_u32 s26, 0"); e("s_cselect_b32 s53, s53, s55")
    e("v_mov_b32 v15, s53"); e(f"v_mul_f32 v15, {hex(f32bits(LOG2E))}, v15"); e("v_exp_f32 v15, v15"); e("s_nop 0")
    e("v_cvt_pk_bf16_f32 v15, v15, v15"); e("v_lshlrev_b32 v15, 16, v15")
    e("s_mov_b32 s32, 0x05040100"); e("s_mov_b32 s33, 0x07060302")
    e("s_waitcnt vmcnt(8)")
    for q in range(4):
        e(f"v_perm_b32 v{208+q}, v{201+2*q}, v{200+2*q}, s32")
        e(f"v_perm_b32 v{212+q}, v{201+2*q}, v{200+2*q}, s33")
    e(f"ds_write_b128 v12, v[208:211] offset:{UT+512}"); e(f"ds_write_b128 v12, v[212:215] offset:{UT+UTP+512}")
    e("s_waitcnt vmcnt(0)")
    AR2, AI2, C2R, C2I = 96, 112, 128, 144
    e(f"s_mov_b32 s34, {hex(f32bits(LOG2E))}"); e(f"s_mov_b32 s35, {hex(f32bits(-LOG2E))}"); e(f"s_mov_b32 s36, {hex(f32bits(1/(2*3.141592653589793)))}")
    e("v_add_f32 v16, v15, v15")
    for t in range(16):
        def unp(dst, src):
            if t & 1: e(f"v_and_b32 v{dst}, 0xffff0000, v{src + t//2}")
            else: e(f"v_lshlrev_b32 v{dst}, 16, v{src + t//2}")
        unp(AR2+t, 64); unp(AI2+t, 72); unp(C2R+t, 80); unp(C2I+t, 88)
        e(f"v_mul_f32 v{AR2+t}, s34, v{AR2+t}")
        e(f"v_mul_f32 v{AI2+t}, v{AI2+t}, v15")
        e(f"v_exp_f32 v{AR2+t}, v{AR2+t}")
        e(f"v_mul_f32 v{C2R+t}, v{C2R+t}, v16")
        e(f"v_mul_f32 v{C2I+t}, v{C2I+t}, v16")
        e(f"v_cvt_pk_bf16_f32 v{AR2+t}, v{AR2+t}, v{AR2+t}")
        e(f"v_mul_f32 v{AI2+t}, s36, v{AI2+t}")
        e(f"v_lshlrev_b32 v{AR2+t}, 16, v{AR2+t}")
        e(f"v_mul_f32 v{AR2+t}, v{AR2+t}, v15")
        e(f"v_mul_f32 v{AR2+t}, s35, v{AR2+t}")
    ACC = 160
    for i in range(12): e(f"v_mov_b32 v{ACC+i}, 0")
    for t in range(16):
        for c in range(4):
            e(f"v_mul_f32 v{20+c}, v{AR2+t}, v{6+c}")
            e(f"v_mul_f32 v{24+c}, v{AI2+t}, v{6+c}")
        for c in range(4):
            e(f"v_exp_f32 v{20+c}, v{20+c}")
            e(f"v_fract_f32 v{24+c}, v{24+c}")
        for c in range(4):
            e(f"v_sin_f32 v{28+c}, v{24+c}")
            e(f"v_cos_f32 v{32+c}, v{24+c}")
        e("s_nop 0")
        for c in range(4):
            e(f"v_mul_f32 v{36+c}, v{20+c}, v{32+c}")
            e(f"v_mul_f32 v{40+c}, v{20+c}, v{28+c}")
        e(f"v_mul_f32 v44, v{C2I+t}, v40")
        e(f"v_mul_f32 v45, v{C2I+t}, v36")
        e(f"v_fma_f32 v46, v{C2R+t}, v36, -v44")
        e(f"v_fma_f32 v47, -v{C2R+t}, v40, -v45")
        e("s_nop 1")
        for mb in range(3):
            e(f"v_mfma_f32_16x16x4_f32 {vr(ACC+4*mb,4)}, v{37+mb}, v46, {vr(ACC+4*mb,4)}")
        for mb in range(3):
            e(f"v_mfma_f32_16x16x4_f32 {vr(ACC+4*mb,4)}, v{41+mb}, v47, {vr(ACC+4*mb,4)}")
    k.nop(16)
    e("v_lshrrev_b32 v12, 4, v0"); e("v_lshlrev_b32 v12, 8, v12"); e("v_lshlrev_b32 v13, 2, v10"); e("v_add_u32 v12, v12, v13")
    e("s_mul_i32 s37, s3, 3072"); e(f"s_add_u32 s37, s37, {KT}"); e("v_add_u32 v12, s37, v12")
    for mb in range(3):
        for r in range(4):
            e(f"ds_write_b32 v12, v{ACC+4*mb+r} offset:{mb*1024+r*64}")
    IDX = 176
    e("v_lshlrev_b32 v12, 3, v1"); e("v_sub_u32 v12, 2047, v12")
    for m in range(8):
        e(f"v_subrev_u32 v13, {m}, v12")
        e("v_cvt_f32_u32 v13, v13")
        e("v_cvt_pk_bf16_f32 v13, v13, v13"); e("v_lshlrev_b32 v13, 16, v13"); e("v_cvt_u32_f32 v13, v13")
        e("v_lshrrev_b32 v14, 7, v13"); e("v_lshlrev_b32 v14, 3, v14"); e("v_and_b32 v16, 7, v13"); e("v_or_b32 v14, v14, v16")
        e("v_or_b32 v16, 8, v14"); e("v_ffbh_u32 v16, v16"); e("v_sub_u32 v16, 28, v16")
        e("v_lshrrev_b32 v14, v16, v14"); e("v_lshlrev_b32 v16, 3, v16"); e("v_add_u32 v14, v14, v16")
        e("v_lshrrev_b32 v16, 3, v13"); e("v_and_b32 v16, 15, v16")
        e("v_lshlrev_b32 v14, 4, v14"); e("v_add_u32 v14, v14, v16"); e(f"v_lshlrev_b32 v{IDX+m}, 2, v14")
    e("s_waitcnt lgkmcnt(0)"); e("s_barrier")
    e("v_and_b32 v10, 15, v0"); e("v_lshrrev_b32 v11, 4, v0")
    e("v_lshlrev_b32 v12, 3, v11"); e("v_sub_u32 v12, v12, v10"); e(f"v_add_u32 v12, {P}, v12")
    e("v_and_b32 v13, 7, v12"); e("v_sub_u32 v12, v12, v13")
    e(f"s_movk_i32 s38, {KCP}"); e("v_mul_lo_u32 v13, v13, s38"); e("v_lshlrev_b32 v12, 1, v12"); e("v_add_u32 v12, v12, v13")
    e(f"v_add_u32 v184, {KC - 960}, v12")
    e("v_lshlrev_b32 v12, 5, v10"); e("v_lshlrev_b32 v13, 4, v11"); e("v_add_u32 v12, v12, v13")
    e(f"v_add_u32 v185, {UT + 512 - 960}, v12")
    e("v_lshlrev_b32 v186, 4, v1")
    RES = 188
    for ch in range(2):
        for m in range(8):
            e(f"ds_read_b32 v{16+m}, v{IDX+m} offset:{KT + (2*ch)*3072}")
            e(f"ds_read_b32 v{24+m}, v{IDX+m} offset:{KT + (2*ch+1)*3072}")
        e("s_waitcnt lgkmcnt(0)")
        for m in range(8): e(f"v_add_f32 v{16+m}, v{16+m}, v{24+m}")
        for q in range(4): e(f"v_cvt_pk_bf16_f32 v{32+q}, v{16+2*q}, v{17+2*q}")
        e(f"ds_write_b128 v186, v[32:35] offset:{KLIN+32}")
        e("s_waitcnt lgkmcnt(0)"); e("s_barrier")
        def copies(addr):
            e(f"ds_read_b128 v[16:19], v{addr} offset:{KLIN}"); e(f"ds_read_b128 v[20:23], v{addr} offset:{KLIN+16}")
            e("s_waitcnt lgkmcnt(0)")
            for q in range(1, 7): e(f"v_mov_b32 v{25+q}, v{16+q}")
            for q in range(7):
                e(f"v_alignbit_b32 v{32+q}, v{17+q}, v{16+q}, 16")
            for q in range(1, 7): e(f"v_mov_b32 v{41+q}, v{32+q}")
            for s in range(8):
                h = s // 2
                if s % 2 == 0: src = (16+h) if h % 2 == 0 else (25+h)
                else: src = (32+h) if h % 2 == 0 else (41+h)
                e(f"ds_write_b128 v{addr}, {vr(src,4)} offset:{KC + s*KCP}")
        copies(186)
        e("v_cmp_gt_u32 vcc, 6, v1"); e("s_and_saveexec_b64 s[30:31], vcc")
        e("v_add_u32 v187, 4096, v186")
        copies(187)
        e("s_mov_b64 exec, s[30:31]")
        e("s_waitcnt lgkmcnt(0)"); e("s_barrier")
        for blk in range(2):
            if blk == 0: e("s_sub_u32 s39, 7, s3")
            else: e("s_mov_b32 s39, s3")
            acc = RES + 8*ch + 4*blk
            for i in range(4): e(f"v_mov_b32 v{acc+i}, 0")
            e("v_mov_b32 v48, v184")
            e("s_lshl_b32 s40, s39, 9"); e(f"s_add_u32 s40, s40, {ch*UTP}"); e("v_add_u32 v49, s40, v185")
            FB = 64; GB = 80
            def rd(slot, stepoff):
                off = 960 - 64*stepoff
                e(f"ds_read_b128 {vr(FB+4*slot,4)}, v48 offset:{off}")
                e(f"ds_read_b128 {vr(GB+4*slot,4)}, v49 offset:{off}")
            for q in range(4): rd(q, q)
            e("s_mov_b32 s41, 0")
            lc = k.new("CV")
            k.lab(lc)
            for q in range(8):
                e("s_waitcnt lgkmcnt(6)")
                e(f"v_mfma_f32_16x16x32_bf16 {vr(acc,4)}, {vr(FB+4*(q%4),4)}, {vr(GB+4*(q%4),4)}, {vr(acc,4)}")
                rd(q % 4, q + 4)
            e("v_subrev_u32 v48, 512, v48"); e("v_subrev_u32 v49, 512, v49")
            e("s_add_u32 s41, s41, 1"); e("s_cmp_le_u32 s41, s39"); e(f"s_cbranch_scc1 {lc}")
            e("s_waitcnt lgkmcnt(6)")
            e(f"v_mfma_f32_16x16x32_bf16 {vr(acc,4)}, {vr(FB,4)}, {vr(GB,4)}, {vr(acc,4)}")
            e("s_waitcnt lgkmcnt(0)")
        if ch == 0: e("s_barrier")
    k.nop(16)
    e("s_lshl_b32 s42, s54, 16"); e("s_and_b32 s43, s54, 0xffff0000")
    e("s_movk_i32 s44, 4096")
    for blk in range(2):
        if blk == 0: e("s_sub_u32 s39, 7, s3")
        else: e("s_mov_b32 s39, s3")
        e("v_lshlrev_b32 v12, 4, v10"); e("v_lshlrev_b32 v13, 2, v11"); e("v_add_u32 v12, v12, v13")
        e("s_lshl_b32 s40, s39, 8"); e("v_add_u32 v12, s40, v12")
        e("v_lshlrev_b32 v13, 1, v12")
        e(f"ds_read_b64 v[16:17], v13 offset:{UT+512}"); e(f"ds_read_b64 v[18:19], v13 offset:{UT+UTP+512}")
        e("v_lshlrev_b32 v14, 11, v12"); e("v_add_u32 v14, s25, v14")
        e("s_waitcnt lgkmcnt(0)")
        for r in range(4):
            for ch in range(2):
                src = 16 + 2*ch + r//2
                if r & 1: e(f"v_and_b32 v{20+ch}, 0xffff0000, v{src}")
                else: e(f"v_lshlrev_b32 v{20+ch}, 16, v{src}")
                e(f"v_mul_f32 v{20+ch}, s{42+ch}, v{20+ch}")
            e(f"v_cvt_pk_bf16_f32 v22, v20, v21")
            e(f"v_cvt_pk_bf16_f32 v23, v{RES+4*blk+r}, v{RES+8+4*blk+r}")
            e("v_lshlrev_b32 v24, 16, v22"); e("v_and_b32 v25, 0xffff0000, v22")
            e("v_lshlrev_b32 v26, 16, v23"); e("v_and_b32 v27, 0xffff0000, v23")
            e("v_add_f32 v24, v24, v26"); e("v_add_f32 v25, v25, v27")
            e(f"v_cvt_pk_bf16_f32 v{28+r}, v24, v25")
            so = "0" if r < 2 else "s44"
            e(f"buffer_store_dword v{28+r}, v14, s[48:51], {so} offen offset:{(r%2)*2048}")
    return k, 216, (256, 256, LDS)

KERNELS["ssm"] = ssm
```

```python
import sys, math, struct
NAME = "concat_heads__ssm_conv_s4d__softmax_full_mha__prompt"
MB = 1 << 20
WS_Q, WS_K, WS_V, WS_O = 0, 2*MB, 4*MB, 6*MB
WS_SIZE = 8*MB

def f32bits(x): return struct.unpack("<I", struct.pack("<f", x))[0]
LOG2E = 1.4426950408889634
QSCALE = 0.25*LOG2E

class K:
    def __init__(self, name):
        self.name = name; self.L = []; self.uid = 0
    def e(self, s): self.L.append("    " + s)
    def lab(self, s): self.L.append(s + ":")
    def new(self, p="L"):
        self.uid += 1; return f"{p}_{self.name}_{self.uid}"
    def nop(self, n):
        while n > 0:
            k = min(n, 16); self.e(f"s_nop {k-1}"); n -= k
    def srd(self, s, base, size):
        self.e(f"s_mov_b32 s{s}, s{base}")
        self.e(f"s_and_b32 s{s+1}, s{base+1}, 0xffff")
        self.e(f"s_mov_b32 s{s+2}, {size}")
        self.e(f"s_mov_b32 s{s+3}, 0x00020000")
    def text(self, vgpr, sgpr=96):
        out = [f".globl {self.name}", ".p2align 8", f".type {self.name},@function", f"{self.name}:"]
        out += self.L
        out += [f"{self.name}_end:", "    s_endpgm"]
        acc = (vgpr + 3)//4*4
        desc = f""".amdhsa_kernel {self.name}
  .amdhsa_next_free_vgpr {vgpr}
  .amdhsa_next_free_sgpr {sgpr}
  .amdhsa_accum_offset {acc}
  .amdhsa_group_segment_fixed_size 0
  .amdhsa_kernarg_size 104
  .amdhsa_user_sgpr_count 2
  .amdhsa_user_sgpr_kernarg_segment_ptr 1
  .amdhsa_system_sgpr_workgroup_id_x 1
.end_amdhsa_kernel"""
        return "\n".join(out), desc

def vr(a, n): return f"v[{a}:{a+n-1}]" if n > 1 else f"v{a}"

def gemm1():
    k = K("gemm1_kernel"); e = k.e
    e("s_cmp_ge_u32 s2, 256"); e(f"s_cbranch_scc1 {k.name}_end")
    e("s_load_dwordx2 s[4:5], s[0:1], 56")
    e("s_load_dwordx2 s[6:7], s[0:1], 64")
    e("s_load_dwordx2 s[8:9], s[0:1], 96")
    e("v_lshrrev_b32 v1, 6, v0")
    e("v_and_b32 v0, 63, v0")
    e("s_nop 0")
    e("v_readfirstlane_b32 s3, v1")
    e("s_lshr_b32 s24, s2, 4")
    e("s_and_b32 s25, s2, 15")
    e("s_waitcnt lgkmcnt(0)")
    k.srd(12, 4, 2*MB); k.srd(16, 6, 512*1536*2); k.srd(20, 8, WS_SIZE)
    e("s_lshl_b32 s26, s24, 7"); e("s_lshl_b32 s27, s3, 5"); e("s_add_u32 s26, s26, s27")
    e("v_and_b32 v2, 31, v0"); e("v_add_u32 v2, s26, v2"); e("v_lshlrev_b32 v2, 10, v2")
    e("v_lshrrev_b32 v3, 5, v0"); e("v_lshlrev_b32 v3, 4, v3"); e("v_add_u32 v2, v2, v3")
    e("s_movk_i32 s28, 171"); e("s_movk_i32 s29, 3072")
    for sub in range(3):
        e(f"v_add_u32 v3, {64*sub}, v0")
        e("v_mul_lo_u32 v7, v3, s28"); e("v_lshrrev_b32 v7, 11, v7")
        e("v_mul_u32_u24 v8, 12, v7"); e("v_sub_u32 v8, v3, v8")
        e("v_mul_lo_u32 v7, v7, s29"); e("v_lshlrev_b32 v8, 4, v8")
        e(f"v_add_u32 v{4+sub}, v7, v8")
    e("v_lshrrev_b32 v7, 5, v0"); e("v_lshlrev_b32 v7, 3, v7")
    e("v_and_b32 v8, 15, v0"); e("v_lshrrev_b32 v8, 2, v8"); e("v_add_u32 v7, v7, v8")
    e("v_mul_u32_u24 v7, 192, v7")
    e("v_lshrrev_b32 v8, 4, v0"); e("v_and_b32 v8, 1, v8"); e("v_lshlrev_b32 v8, 5, v8"); e("v_add_u32 v7, v7, v8")
    e("v_and_b32 v8, 3, v0"); e("v_lshlrev_b32 v8, 3, v8"); e("v_add_u32 v7, v7, v8")
    e("v_add_u32 v8, 24576, v7"); e("v_add_u32 v9, 49152, v7")
    VB = [7, 8, 9]
    XF = 128
    ACC = 16
    WF = 64
    for i in range(48): e(f"v_mov_b32 v{ACC+i}, 0")
    e("s_mul_i32 s30, s25, 192")
    def dma(ch, buf):
        for grp in range(2):
            e(f"s_add_u32 s31, s27, {ch*128 + grp*16}")
            e("s_mul_i32 s32, s31, 3072"); e("s_add_u32 s32, s32, s30")
            e(f"s_add_u32 s33, s27, {grp*16}"); e("s_mul_i32 s33, s33, 192"); e(f"s_add_u32 s33, s33, {buf*24576}")
            for sub in range(3):
                e(f"s_add_u32 s34, s33, {sub*1024}")
                e("s_mov_b32 m0, s34"); e("s_nop 0")
                e(f"buffer_load_dwordx4 v{4+sub}, s[16:19], s32 offen lds")
    def xload(s0, s1):
        for s in range(s0, s1):
            e(f"buffer_load_dwordx4 {vr(XF+4*s,4)}, v2, s[12:15], 0 offen offset:{s*32}")
    dma(0, 0); xload(0, 8); dma(1, 1); xload(8, 16); dma(2, 2); xload(16, 24); xload(24, 32)
    lv = [k.new("V") for _ in range(3)]; lepi = k.new("EPI")
    e("s_cmp_eq_u32 s25, 10"); e(f"s_cbranch_scc1 {lv[1]}")
    e("s_cmp_gt_u32 s25, 10"); e(f"s_cbranch_scc1 {lv[2]}")
    def wread(step, pb):
        ch = step // 8; sl = step % 8; buf = ch % 3
        for t in range(3):
            for hs in range(2):
                e(f"ds_read_b64_tr_b16 {vr(WF+12*pb+4*t+2*hs,2)}, v{VB[buf]} offset:{sl*3072+hs*768+64*t}")
    for var in range(3):
        k.lab(lv[var])
        isV = [[0,0,0],[0,0,1],[1,1,1]][var]
        waits = [36, 28, 14, 0]
        for ch in range(4):
            e(f"s_waitcnt vmcnt({waits[ch]})"); e("s_barrier")
            wread(ch*8, 0)
            for sl in range(8):
                step = ch*8 + sl; pb = sl & 1
                if sl < 7:
                    wread(step+1, pb ^ 1); e("s_waitcnt lgkmcnt(6)")
                else:
                    e("s_waitcnt lgkmcnt(0)")
                for t in range(3):
                    a = vr(WF+12*pb+4*t, 4); b = vr(XF+4*step, 4)
                    if isV[t]: a, b = b, a
                    e(f"v_mfma_f32_32x32x16_bf16 {vr(ACC+16*t,16)}, {a}, {b}, {vr(ACC+16*t,16)}")
            if ch == 0:
                e("s_barrier"); dma(3, 0)
        e(f"s_branch {lepi}")
    k.lab(lepi)
    k.nop(16)
    e("v_lshlrev_b32 v2, 4, v0")
    e("v_and_b32 v3, 15, v0"); e("v_lshlrev_b32 v3, 4, v3")
    e("v_lshrrev_b32 v4, 5, v0"); e("v_lshlrev_b32 v4, 8, v4"); e("v_add_u32 v3, v3, v4")
    e("v_lshrrev_b32 v4, 4, v0"); e("v_and_b32 v4, 1, v4"); e("v_lshlrev_b32 v4, 16, v4"); e("v_add_u32 v3, v3, v4")
    e("s_lshl_b32 s35, s24, 2"); e("s_add_u32 s35, s35, s3")
    for t in range(3):
        lV = k.new("EV"); lN = k.new("EN")
        e(f"s_mul_i32 s36, s25, 96"); e(f"s_add_u32 s36, s36, {32*t}")
        e("s_lshr_b32 s37, s36, 9")
        e("s_and_b32 s38, s36, 511"); e("s_lshr_b32 s38, s38, 4")
        e("s_cmp_eq_u32 s37, 2"); e(f"s_cbranch_scc1 {lV}")
        e("s_cmp_eq_u32 s37, 0"); e(f"s_cselect_b32 s39, {hex(f32bits(QSCALE))}, 1.0")
        e("s_lshl_b32 s40, s37, 21")
        e("s_lshl_b32 s41, s38, 6"); e("s_add_u32 s41, s41, s35"); e("s_lshl_b32 s41, s41, 10"); e("s_add_u32 s40, s40, s41")
        for i in range(16): e(f"v_mul_f32 v{ACC+16*t+i}, s39, v{ACC+16*t+i}")
        for i in range(8): e(f"v_cvt_pk_bf16_f32 v{88+i}, v{ACC+16*t+2*i}, v{ACC+16*t+2*i+1}")
        e(f"buffer_store_dwordx4 v[88:91], v2, s[20:23], s40 offen")
        e("s_add_u32 s40, s40, 65536")
        e(f"buffer_store_dwordx4 v[92:95], v2, s[20:23], s40 offen")
        e(f"s_branch {lN}")
        k.lab(lV)
        e("s_lshl_b32 s40, s38, 16"); e("s_lshl_b32 s41, s35, 10"); e("s_add_u32 s40, s40, s41"); e(f"s_add_u32 s40, s40, {WS_V}")
        for i in range(8): e(f"v_cvt_pk_bf16_f32 v{88+i}, v{ACC+16*t+2*i}, v{ACC+16*t+2*i+1}")
        e(f"buffer_store_dwordx4 v[88:91], v3, s[20:23], s40 offen")
        e(f"buffer_store_dwordx4 v[92:95], v3, s[20:23], s40 offen offset:512")
        k.lab(lN)
        k.nop(4)
    return k, 256, (256, 256, 73728)

KERNELS = {"gemm1": gemm1}

def build(names, out):
    import gen_more
    allk = dict(KERNELS); allk.update(gen_more.KERNELS)
    hdr = open("cdna_kernels/%s.s.ref" % NAME).read().split("; Override")[0]
    launches = []; bodies = []; descs = []
    for n in names:
        k, vg, (grid, block, lds) = allk[n]()
        t, d = k.text(vg)
        bodies.append(t); descs.append(d)
        launches.append(f"; @launch kernel={k.name} grid=({grid},1,1) block=({block},1,1) lds={lds}")
    s = hdr + "\n".join(launches) + "\n" + '.amdgcn_target "amdgcn-amd-amdhsa--gfx950"\n.text\n'
    s += "\n".join(bodies) + '\n.section .rodata,"a"\n' + "\n".join(".p2align 6\n" + d for d in descs) + "\n"
    open(out, "w").write(s)

if __name__ == "__main__":
    build(sys.argv[2:], sys.argv[1])
```

```python
from gen import K, vr, f32bits, MB, WS_Q, WS_K, WS_V, WS_O, WS_KM, WS_SIZE, LOG2E

import os
PROF = os.environ.get("PROF", "0") == "1"
def stamp(k, idx):
    if PROF:
        k.e(f"s_memtime s[{72+2*idx}:{73+2*idx}]")
        k.e("s_waitcnt lgkmcnt(0)")
def stamp_out(k, n):
    if not PROF: return
    e = k.e
    l = k.new("NOPROF")
    e("s_memrealtime s[90:91]"); e("s_waitcnt lgkmcnt(0)")
    e("s_cmp_lg_u32 s2, 5"); e(f"s_cbranch_scc1 {l}")
    e("s_and_b32 s70, s3, 3"); e("s_cmp_lg_u32 s70, 0"); e(f"s_cbranch_scc1 {l}")
    e("s_load_dwordx2 s[92:93], s[0:1], 88"); e("s_waitcnt lgkmcnt(0)")
    e("s_mov_b32 s94, 256"); e("s_mov_b32 s95, 0x00020000")
    e("s_lshl_b32 s70, s3, 4"); e("v_mov_b32 v1, s70")
    for i in range(n):
        e(f"s_sub_u32 s70, s{72+2*i}, s72"); e("v_mov_b32 v2, s70")
        e(f"buffer_store_dword v2, v1, s[92:95], 0 offen offset:{4*i}")
    e("s_sub_u32 s70, s90, s88"); e("v_mov_b32 v2, s70")
    e(f"buffer_store_dword v2, v1, s[92:95], 0 offen offset:{4*n}")
    k.lab(l)
def attn():
    k = K("attn_kernel"); e = k.e
    e("s_cmp_ge_u32 s2, 256"); e(f"s_cbranch_scc1 {k.name}_end")
    if PROF: e("s_memrealtime s[88:89]")
    stamp(k, 0)
    e("s_load_dwordx2 s[8:9], s[0:1], 96")
    e("v_lshrrev_b32 v1, 6, v0")
    e("v_and_b32 v0, 63, v0")
    e("s_nop 0")
    e("v_readfirstlane_b32 s3, v1")
    e("s_and_b32 s24, s2, 7"); e("s_lshl_b32 s24, s24, 2")
    e("s_lshr_b32 s25, s2, 3"); e("s_and_b32 s25, s25, 3"); e("s_add_u32 s24, s24, s25")
    e("s_lshr_b32 s25, s2, 5")
    e("s_waitcnt lgkmcnt(0)")
    k.srd(20, 8, WS_SIZE)
    e("v_lshlrev_b32 v2, 4, v0")
    e("s_lshl_b32 s26, s25, 3"); e("s_add_u32 s26, s26, s3")
    e("s_lshl_b32 s27, s24, 6"); e("s_add_u32 s27, s27, s26"); e("s_lshl_b32 s27, s27, 10")
    QF = 4
    e(f"buffer_load_dwordx4 {vr(QF,4)}, v2, s[20:23], s27 offen")
    e("v_lshlrev_b32 v8, 2, v0")
    e("s_lshl_b32 s28, s24, 8"); e(f"s_add_u32 s28, s28, {WS_KM}")
    e("buffer_load_dword v11, v8, s[20:23], s28 offen")
    e("s_lshl_b32 s28, s24, 16")
    e("s_lshl_b32 s29, s3, 11")
    for c in range(4):
        for sec, base in ((0, WS_K), (1, WS_V)):
            for j in range(2):
                off = c*16384 + j*1024
                e(f"s_add_u32 s30, s29, {off + sec*65536}")
                e("s_mov_b32 m0, s30")
                e(f"s_add_u32 s31, s29, {off + base}"); e("s_add_u32 s31, s31, s28")
                e(f"buffer_load_dwordx4 v2, s[20:23], s31 offen lds")
    S = [16, 32]; CM = 48; O = 64; KB = [80, 84]; VB = [88, 96]; P = 104; MX = 112
    e("v_and_b32 v3, 15, v0"); e("v_lshlrev_b32 v3, 4, v3")
    e("v_lshrrev_b32 v8, 5, v0"); e("v_lshlrev_b32 v8, 8, v8"); e("v_add_u32 v3, v3, v8"); e("v_add_u32 v3, 65536, v3")
    e("v_mov_b32 v114, v3")
    e("v_and_b32 v8, 31, v0")
    e("v_cmp_eq_u32 s[32:33], 16, v8"); e("v_cmp_eq_u32 s[34:35], 20, v8")
    e("s_or_b64 s[32:33], s[32:33], s[34:35]")
    e("v_mov_b32 v9, 0x3f803f80")
    e("s_nop 0")
    e("v_cndmask_b32 v9, 0, v9, s[32:33]")
    for b in VB:
        for i in range(8): e(f"v_mov_b32 v{b+i}, v9")
    e("s_mov_b32 s36, 0x0000ffff"); e("s_mov_b32 s37, 0x0000ffff")
    e("s_waitcnt vmcnt(16)")
    e("v_mov_b32 v12, 0")
    for i in range(4): e(f"v_dot2c_f32_bf16 v12, v{QF+i}, v{QF+i}")
    for mod in ("quad_perm:[1,0,3,2]", "quad_perm:[2,3,0,1]", "row_half_mirror", "row_mirror"):
        k.nop(2)
        e(f"v_max_f32_dpp v11, v11, v11 {mod} row_mask:0xf bank_mask:0xf")
    e("v_mov_b32 v13, v11"); e("v_mov_b32 v14, v12")
    k.nop(2)
    e("v_permlane16_swap_b32 v11, v13"); e("v_permlane32_swap_b32 v12, v14")
    k.nop(2)
    e("v_max_f32 v11, v11, v13"); e("v_add_f32 v12, v12, v14")
    e("v_mov_b32 v13, v11")
    k.nop(2)
    e("v_permlane32_swap_b32 v11, v13")
    k.nop(2)
    e("v_max_f32 v11, v11, v13")
    e("v_mul_f32 v12, v12, v11"); e("v_sqrt_f32 v12, v12"); e("s_nop 0")
    e(f"v_mul_f32 v{MX}, {hex(f32bits(-1.01))}, v12")
    for i in range(16): e(f"v_mov_b32 v{CM+i}, v{MX}")
    def vread(buf, off):
        e("s_mov_b64 exec, s[36:37]")
        e(f"ds_read_b128 {vr(VB[buf],4)}, v3 offset:{off}")
        e(f"ds_read_b128 {vr(VB[buf]+4,4)}, v3 offset:{off+512}")
        e("s_mov_b64 exec, -1")
    def p2_start():
        for i in range(16): e(f"v_mov_b32 v{O+i}, 0")
        e("v_mov_b32 v10, v2"); e("v_mov_b32 v3, v114")
        e(f"ds_read_b128 {vr(KB[0],4)}, v10")
        e("s_waitcnt lgkmcnt(0)")
        e(f"v_mfma_f32_32x32x16_bf16 {vr(S[0],16)}, {vr(KB[0],4)}, {vr(QF,4)}, {vr(CM,16)}")
        e(f"ds_read_b128 {vr(KB[1],4)}, v10 offset:1024")
        vread(0, 0)
        k.nop(8)
    def p2_loop(n):
        e("s_mov_b32 s38, 0")
        l2 = k.new("P2"); k.lab(l2)
        for p in range(2):
            e("s_waitcnt lgkmcnt(2)")
            e(f"v_mfma_f32_32x32x16_bf16 {vr(S[1-p],16)}, {vr(KB[1-p],4)}, {vr(QF,4)}, {vr(CM,16)}")
            e(f"ds_read_b128 {vr(KB[p],4)}, v10 offset:{2048 + p*1024}")
            vread(1-p, 1024 + p*1024)
            for i in range(12): e(f"v_exp_f32 v{S[p]+i}, v{S[p]+i}")
            for i in range(4): e(f"v_cvt_pk_bf16_f32 v{P+i}, v{S[p]+2*i}, v{S[p]+2*i+1}")
            for i in range(12, 16): e(f"v_exp_f32 v{S[p]+i}, v{S[p]+i}")
            e("s_waitcnt lgkmcnt(3)")
            e(f"v_mfma_f32_32x32x16_bf16 {vr(O,16)}, {vr(VB[p],4)}, {vr(P,4)}, {vr(O,16)}")
            for i in range(4, 8): e(f"v_cvt_pk_bf16_f32 v{P+i}, v{S[p]+2*i}, v{S[p]+2*i+1}")
            k.nop(2)
            e(f"v_mfma_f32_32x32x16_bf16 {vr(O,16)}, {vr(VB[p]+4,4)}, {vr(P+4,4)}, {vr(O,16)}")
        e("v_add_u32 v10, 2048, v10"); e("v_add_u32 v3, 2048, v3")
        e("s_add_u32 s38, s38, 2"); e(f"s_cmp_lt_u32 s38, {n}"); e(f"s_cbranch_scc1 {l2}")
    e("s_waitcnt vmcnt(12)"); e("s_barrier")
    stamp(k, 1)
    p2_start()
    p2_loop(14)
    for c, n in ((1, 16), (2, 16), (3, 18)):
        e(f"s_waitcnt vmcnt({12-4*c})"); e("s_barrier")
        p2_loop(n)
    stamp(k, 2)
    k.nop(16)
    lep = k.new("EPI")
    e(f"v_cmp_gt_f32 vcc, {hex(f32bits(2.0**-60))}, v{O+8}")
    e("s_waitcnt lgkmcnt(0)")
    e(f"s_cbranch_vccz {lep}")
    e(f"v_mov_b32 v{MX}, 0xff800000")
    e("v_mov_b32 v10, v2")
    e(f"ds_read_b128 {vr(KB[0],4)}, v10")
    e(f"ds_read_b128 {vr(KB[1],4)}, v10 offset:1024")
    e("s_waitcnt lgkmcnt(1)")
    e(f"v_mfma_f32_32x32x16_bf16 {vr(S[0],16)}, {vr(KB[0],4)}, {vr(QF,4)}, 0")
    e(f"ds_read_b128 {vr(KB[0],4)}, v10 offset:2048")
    e("s_mov_b32 s38, 0")
    l1 = k.new("P1"); k.lab(l1)
    e("s_waitcnt lgkmcnt(1)")
    e(f"v_mfma_f32_32x32x16_bf16 {vr(S[1],16)}, {vr(KB[1],4)}, {vr(QF,4)}, 0")
    e(f"ds_read_b128 {vr(KB[1],4)}, v10 offset:3072")
    k.nop(10)
    for i in range(8): e(f"v_max3_f32 v{MX}, v{S[0]+2*i}, v{S[0]+2*i+1}, v{MX}")
    e("s_waitcnt lgkmcnt(1)")
    e(f"v_mfma_f32_32x32x16_bf16 {vr(S[0],16)}, {vr(KB[0],4)}, {vr(QF,4)}, 0")
    e(f"ds_read_b128 {vr(KB[0],4)}, v10 offset:4096")
    e("v_add_u32 v10, 2048, v10")
    k.nop(9)
    for i in range(8): e(f"v_max3_f32 v{MX}, v{S[1]+2*i}, v{S[1]+2*i+1}, v{MX}")
    e("s_add_u32 s38, s38, 2"); e("s_cmp_lt_u32 s38, 64"); e(f"s_cbranch_scc1 {l1}")
    e(f"v_mov_b32 v{MX+1}, v{MX}")
    k.nop(2)
    e(f"v_permlane32_swap_b32 v{MX}, v{MX+1}")
    k.nop(2)
    e(f"v_max_f32 v{MX}, v{MX}, v{MX+1}")
    e(f"v_sub_f32 v{MX}, 0, v{MX}")
    for i in range(16): e(f"v_mov_b32 v{CM+i}, v{MX}")
    e("s_waitcnt lgkmcnt(0)")
    k.nop(4)
    p2_start()
    p2_loop(64)
    k.nop(16)
    k.lab(lep)
    e(f"v_rcp_f32 v8, v{O+8}")
    k.nop(1)
    for i in range(8): e(f"v_mul_f32 v{O+i}, v{O+i}, v8")
    for i in range(4): e(f"v_cvt_pk_bf16_f32 v{P+i}, v{O+2*i}, v{O+2*i+1}")
    e(f"s_add_u32 s27, s27, {WS_O}")
    e(f"buffer_store_dwordx4 {vr(P,4)}, v2, s[20:23], s27 offen")
    e("s_waitcnt lgkmcnt(0)")
    stamp(k, 3)
    stamp_out(k, 4)
    return k, 128, (256, 512, 131072)

KERNELS = {"attn": attn}

def gemm2(k=None):
    if k is None:
        k = K("gemm2_kernel")
        k.e("s_cmp_ge_u32 s2, 256"); k.e(f"s_cbranch_scc1 {k.name}_end")
    e = k.e
    e("s_load_dwordx2 s[6:7], s[0:1], 72")
    e("s_load_dwordx2 s[8:9], s[0:1], 96")
    e("s_load_dwordx2 s[10:11], s[0:1], 80")
    e("v_lshrrev_b32 v1, 6, v0")
    e("v_and_b32 v0, 63, v0")
    e("s_nop 0")
    e("v_readfirstlane_b32 s3, v1")
    e("s_lshr_b32 s24, s2, 3")
    e("s_and_b32 s25, s2, 7")
    e("s_and_b32 s26, s3, 1")
    e("s_lshr_b32 s27, s3, 1")
    e("s_waitcnt lgkmcnt(0)")
    k.srd(12, 10, 2048*1024*2); k.srd(16, 6, 512*512*2); k.srd(20, 8, WS_SIZE)
    e("v_lshrrev_b32 v3, 3, v0")
    e("v_and_b32 v4, 2, v3"); e("v_lshlrev_b32 v4, 1, v4")
    e("v_and_b32 v5, 7, v0"); e("v_xor_b32 v5, v5, v4"); e("v_lshlrev_b32 v5, 4, v5")
    e("v_and_b32 v6, 3, v3")
    e("v_and_b32 v7, 4, v3"); e("v_lshlrev_b32 v7, 1, v7"); e("v_add_u32 v6, v6, v7")
    e("v_lshlrev_b32 v6, 10, v6"); e("v_add_u32 v4, v6, v5")
    e("s_lshl_b32 s28, s25, 7")
    OF = 128
    e("v_lshlrev_b32 v2, 4, v0")
    e("s_lshl_b32 s29, s24, 1"); e("s_add_u32 s29, s29, s26"); e("s_lshl_b32 s29, s29, 10"); e(f"s_add_u32 s29, s29, {WS_O}")
    for j in range(16):
        e(f"s_lshl_b32 s30, s3, 4"); e(f"s_add_u32 s30, s30, {j}")
        e("s_lshl_b32 s31, s30, 10"); e("s_mov_b32 m0, s31")
        e("s_lshr_b32 s32, s30, 1"); e("s_lshl_b32 s32, s32, 14")
        e("s_and_b32 s33, s30, 1"); e("s_lshl_b32 s33, s33, 12"); e("s_add_u32 s32, s32, s33"); e("s_add_u32 s32, s32, s28")
        e("buffer_load_dwordx4 v4, s[16:19], s32 offen lds")
    for s in range(32):
        e(f"buffer_load_dwordx4 {vr(OF+4*s,4)}, v2, s[20:23], s29 offen")
        if s < 31: e("s_add_u32 s29, s29, 65536")
    e("v_lshrrev_b32 v7, 5, v0"); e("v_lshlrev_b32 v7, 3, v7")
    e("v_and_b32 v8, 15, v0"); e("v_lshrrev_b32 v8, 2, v8"); e("v_add_u32 v7, v7, v8"); e("v_lshlrev_b32 v7, 7, v7")
    e("v_lshrrev_b32 v8, 1, v8"); e("v_xor_b32 v8, s27, v8"); e("v_lshlrev_b32 v8, 6, v8"); e("v_add_u32 v7, v7, v8")
    e("v_and_b32 v8, 1, v0"); e("v_lshlrev_b32 v8, 5, v8"); e("v_add_u32 v7, v7, v8")
    e("v_lshrrev_b32 v8, 4, v0"); e("v_and_b32 v8, 1, v8"); e("v_lshlrev_b32 v8, 4, v8"); e("v_add_u32 v7, v7, v8")
    e("v_lshrrev_b32 v8, 1, v0"); e("v_and_b32 v8, 1, v8"); e("v_lshlrev_b32 v8, 3, v8"); e("v_add_u32 v7, v7, v8")
    ACC = 16; WF = 32
    for i in range(16): e(f"v_mov_b32 v{ACC+i}, 0")
    e("s_waitcnt vmcnt(32)"); e("s_barrier")
    def wread(s, pb):
        for hs in range(2):
            e(f"ds_read_b64_tr_b16 {vr(WF+4*pb+2*hs,2)}, v7 offset:{s*2048+hs*512}")
    NB = 4
    for s in range(NB-1): wread(s, s % NB)
    for s in range(32):
        if s + NB - 1 < 32:
            wread(s+NB-1, (s+NB-1) % NB); e(f"s_waitcnt lgkmcnt({2*(NB-1)})")
        else:
            e(f"s_waitcnt lgkmcnt({2*(31-s)})")
        e(f"s_waitcnt vmcnt({31-s})")
        e(f"v_mfma_f32_32x32x16_bf16 {vr(ACC,16)}, {vr(WF+4*(s%NB),4)}, {vr(OF+4*s,4)}, {vr(ACC,16)}")
    k.nop(16)
    for i in range(8): e(f"v_cvt_pk_bf16_f32 v{48+i}, v{ACC+2*i}, v{ACC+2*i+1}")
    e("s_lshl_b32 s30, s24, 6"); e("s_lshl_b32 s31, s26, 5"); e("s_add_u32 s30, s30, s31")
    e("v_and_b32 v3, 31, v0"); e("v_add_u32 v3, s30, v3"); e("v_lshlrev_b32 v3, 11, v3")
    e("v_lshrrev_b32 v5, 5, v0"); e("v_lshlrev_b32 v5, 5, v5"); e("v_add_u32 v3, v3, v5")
    e("s_lshl_b32 s31, s27, 6"); e("s_add_u32 s31, s31, s28"); e("s_add_u32 s31, s31, 1024")
    e("buffer_store_dwordx4 v[48:51], v3, s[12:15], s31 offen")
    e("buffer_store_dwordx4 v[52:55], v3, s[12:15], s31 offen offset:16")
    return k, 256, (256, 256, 65536)

KERNELS["gemm2"] = gemm2

def ssm():
    k = K("ssm_kernel"); e = k.e
    UT = 1024; UTP = 4640; KT = 10304; KLIN = 22592; KC = 26816; KCP = 4288; LDS = 61120
    P = 2063
    e("s_cmp_ge_u32 s2, 256"); e(f"s_cbranch_scc1 {k.name}_end")
    if PROF: e("s_memrealtime s[88:89]")
    stamp(k, 0)
    e("s_load_dwordx4 s[56:59], s[0:1], 0")
    e("s_load_dwordx4 s[60:63], s[0:1], 16")
    e("s_load_dwordx4 s[64:67], s[0:1], 32")
    e("s_load_dwordx2 s[68:69], s[0:1], 48")
    e("s_load_dwordx2 s[70:71], s[0:1], 80")
    e("v_mov_b32 v1, v0")
    e("v_lshrrev_b32 v2, 6, v0")
    e("v_and_b32 v0, 63, v0")
    e("s_nop 0")
    e("v_readfirstlane_b32 s3, v2")
    e("s_and_b32 s24, s2, 7"); e("s_lshl_b32 s24, s24, 5"); e("s_lshr_b32 s25, s2, 3"); e("s_add_u32 s24, s24, s25")
    e("s_lshl_b32 s24, s24, 1")
    e("s_lshl_b32 s25, s24, 1")
    e("s_waitcnt lgkmcnt(0)")
    k.srd(12, 56, 2*MB); k.srd(16, 58, 131072); k.srd(20, 60, 131072); k.srd(40, 62, 131072); k.srd(44, 64, 131072); k.srd(48, 70, 4*MB)
    e("s_add_u32 s66, s66, s25"); e("s_addc_u32 s67, s67, 0")
    e("s_add_u32 s68, s68, s25"); e("s_addc_u32 s69, s69, 0")
    e("s_load_dword s52, s[66:67], 0"); e("s_load_dword s54, s[68:69], 0")
    e("s_lshr_b32 s26, s3, 1")
    e("s_and_b32 s27, s3, 1")
    e("s_add_u32 s28, s24, s26"); e("s_lshl_b32 s28, s28, 8"); e("s_lshl_b32 s29, s27, 7"); e("s_add_u32 s28, s28, s29")
    e("v_lshrrev_b32 v5, 4, v0"); e("v_lshlrev_b32 v5, 5, v5"); e("v_add_u32 v5, s28, v5")
    for base, srd in ((64, 16), (72, 20), (80, 40), (88, 44)):
        e(f"buffer_load_dwordx4 {vr(base,4)}, v5, s[{srd}:{srd+3}], 0 offen")
        e(f"buffer_load_dwordx4 {vr(base+4,4)}, v5, s[{srd}:{srd+3}], 0 offen offset:16")
    e("v_lshlrev_b32 v3, 13, v1"); e("v_add_u32 v3, s25, v3"); e("v_add_u32 v4, 4096, v3")
    for j in range(8):
        e(f"buffer_load_dword v{200+j}, v{3 if j<4 else 4}, s[12:15], 0 offen offset:{(j%4)*1024}")
    e("v_and_b32 v10, 15, v0")
    e("v_lshlrev_b32 v6, 3, v10"); e("v_cvt_f32_u32 v6, v6")
    def zhi(dst, z):
        e(f"v_lshrrev_b32 v12, 3, v{z}"); e("v_lshlrev_b32 v12, 7, v12"); e(f"v_and_b32 v13, 7, v{z}"); e("v_add_u32 v12, v12, v13")
        e(f"v_cvt_f32_u32 v{dst}, v12")
    zhi(7, 10)
    e("v_lshlrev_b32 v11, 1, v10"); e("v_add_u32 v11, 16, v11"); e("v_lshlrev_b32 v14, 2, v10")
    e("v_cmp_gt_u32 vcc, 8, v10"); e("s_nop 1"); e("v_cndmask_b32 v11, v14, v11, vcc")
    zhi(8, 11)
    e("v_lshlrev_b32 v11, 3, v10"); e("v_add_u32 v11, 64, v11")
    zhi(9, 11)
    for i in range(4): e(f"v_mov_b32 v{16+i}, 0")
    e("v_lshlrev_b32 v12, 4, v1")
    e("v_cmp_gt_u32 vcc, 32, v1"); e("s_and_saveexec_b64 s[30:31], vcc")
    e(f"ds_write_b128 v12, v[16:19] offset:{UT}"); e(f"ds_write_b128 v12, v[16:19] offset:{UT+UTP}")
    e("s_mov_b64 exec, s[30:31]")
    e("v_cmp_gt_u32 vcc, 2, v1"); e("s_and_saveexec_b64 s[30:31], vcc")
    e(f"ds_write_b128 v12, v[16:19] offset:{KLIN}")
    e(f"ds_write_b128 v12, v[16:19] offset:{UT+4608}"); e(f"ds_write_b128 v12, v[16:19] offset:{UT+UTP+4608}")
    e("s_mov_b64 exec, s[30:31]")
    e("v_cmp_gt_u32 vcc, 6, v1"); e("s_and_saveexec_b64 s[30:31], vcc")
    e(f"ds_write_b128 v12, v[16:19] offset:{KLIN+258*16}")
    e("s_mov_b64 exec, s[30:31]")
    e("s_waitcnt lgkmcnt(0)")
    e("s_lshl_b32 s53, s52, 16"); e("s_and_b32 s55, s52, 0xffff0000"); e("s_cmp_eq_u32 s26, 0"); e("s_cselect_b32 s53, s53, s55")
    e("v_mov_b32 v15, s53"); e(f"v_mul_f32 v15, {hex(f32bits(LOG2E))}, v15"); e("v_exp_f32 v15, v15"); e("s_nop 0")
    e("v_cvt_pk_bf16_f32 v15, v15, v15"); e("v_lshlrev_b32 v15, 16, v15")
    e("s_waitcnt vmcnt(8)")
    stamp(k, 1)
    AR2, AI2, C2R, C2I = 96, 112, 128, 144
    e(f"s_mov_b32 s34, {hex(f32bits(LOG2E))}"); e(f"s_mov_b32 s35, {hex(f32bits(-LOG2E))}"); e(f"s_mov_b32 s36, {hex(f32bits(1/(2*3.141592653589793)))}")
    e("v_add_f32 v16, v15, v15")
    for t in range(16):
        def unp(dst, src):
            if t & 1: e(f"v_and_b32 v{dst}, 0xffff0000, v{src + t//2}")
            else: e(f"v_lshlrev_b32 v{dst}, 16, v{src + t//2}")
        unp(AR2+t, 64); unp(AI2+t, 72); unp(C2R+t, 80); unp(C2I+t, 88)
        e(f"v_mul_f32 v{AR2+t}, s34, v{AR2+t}")
        e(f"v_mul_f32 v{AI2+t}, v{AI2+t}, v15")
        e(f"v_exp_f32 v{AR2+t}, v{AR2+t}")
        e(f"v_mul_f32 v{C2R+t}, v{C2R+t}, v16")
        e(f"v_mul_f32 v{C2I+t}, v{C2I+t}, v16")
        e(f"v_cvt_pk_bf16_f32 v{AR2+t}, v{AR2+t}, v{AR2+t}")
        e(f"v_mul_f32 v{AI2+t}, s36, v{AI2+t}")
        e(f"v_lshlrev_b32 v{AR2+t}, 16, v{AR2+t}")
        e(f"v_mul_f32 v{AR2+t}, v{AR2+t}, v15")
        e(f"v_mul_f32 v{AR2+t}, s35, v{AR2+t}")
    stamp(k, 2)
    ACC = 160
    for i in range(12): e(f"v_mov_b32 v{ACC+i}, 0")
    RB = [48, 56]
    def mf(p, j):
        mb = j % 3; part = j // 3
        e(f"v_mfma_f32_16x16x4_f32 {vr(ACC+4*mb,4)}, v{RB[p]+3*part+mb}, v{RB[p]+6+part}, {vr(ACC+4*mb,4)}")
    for t in range(16):
        p = t & 1; prev = (t > 0)
        for c in range(4):
            e(f"v_mul_f32 v{20+c}, v{AR2+t}, v{6+c}")
            e(f"v_mul_f32 v{24+c}, v{AI2+t}, v{6+c}")
        if prev: mf(1-p, 0)
        for c in range(4):
            e(f"v_exp_f32 v{20+c}, v{20+c}")
            e(f"v_fract_f32 v{24+c}, v{24+c}")
        if prev: mf(1-p, 1)
        for c in range(2):
            e(f"v_sin_f32 v{28+c}, v{24+c}")
            e(f"v_cos_f32 v{32+c}, v{24+c}")
        if prev: mf(1-p, 2)
        for c in range(2, 4):
            e(f"v_sin_f32 v{28+c}, v{24+c}")
            e(f"v_cos_f32 v{32+c}, v{24+c}")
        if prev: mf(1-p, 3)
        else: e("s_nop 0")
        e(f"v_mul_f32 v36, v20, v32"); e(f"v_mul_f32 v40, v20, v28")
        for c in range(1, 4):
            e(f"v_mul_f32 v{RB[p]+c-1}, v{20+c}, v{32+c}")
        if prev: mf(1-p, 4)
        for c in range(1, 4):
            e(f"v_mul_f32 v{RB[p]+3+c-1}, v{20+c}, v{28+c}")
        e(f"v_mul_f32 v44, v{C2I+t}, v40")
        e(f"v_mul_f32 v45, v{C2I+t}, v36")
        if prev: mf(1-p, 5)
        e(f"v_fma_f32 v{RB[p]+6}, v{C2R+t}, v36, -v44")
        e(f"v_fma_f32 v{RB[p]+7}, -v{C2R+t}, v40, -v45")
    e("s_nop 1")
    for j in range(6): mf(1, j)
    stamp(k, 4)
    e("s_mov_b32 s32, 0x05040100"); e("s_mov_b32 s33, 0x07060302")
    e("v_lshlrev_b32 v12, 4, v1")
    e("s_waitcnt vmcnt(0)")
    for q in range(4):
        e(f"v_perm_b32 v{208+q}, v{201+2*q}, v{200+2*q}, s32")
        e(f"v_perm_b32 v{212+q}, v{201+2*q}, v{200+2*q}, s33")
    e(f"ds_write_b128 v12, v[208:211] offset:{UT+512}"); e(f"ds_write_b128 v12, v[212:215] offset:{UT+UTP+512}")
    k.nop(16)
    e("v_lshrrev_b32 v12, 4, v0"); e("v_lshlrev_b32 v12, 8, v12"); e("v_lshlrev_b32 v13, 2, v10"); e("v_add_u32 v12, v12, v13")
    e("s_mul_i32 s37, s3, 3072"); e(f"s_add_u32 s37, s37, {KT}"); e("v_add_u32 v12, s37, v12")
    for mb in range(3):
        for r in range(4):
            e(f"ds_write_b32 v12, v{ACC+4*mb+r} offset:{mb*1024+r*64}")
    stamp(k, 5)
    IDX = 176
    e("v_lshlrev_b32 v12, 3, v1"); e("v_sub_u32 v12, 2047, v12")
    for m in range(8):
        e(f"v_subrev_u32 v13, {m}, v12")
        e("v_cvt_f32_u32 v13, v13")
        e("v_cvt_pk_bf16_f32 v13, v13, v13"); e("v_lshlrev_b32 v13, 16, v13"); e("v_cvt_u32_f32 v13, v13")
        e("v_lshrrev_b32 v14, 7, v13"); e("v_lshlrev_b32 v14, 3, v14"); e("v_and_b32 v16, 7, v13"); e("v_or_b32 v14, v14, v16")
        e("v_or_b32 v16, 8, v14"); e("v_ffbh_u32 v16, v16"); e("v_sub_u32 v16, 28, v16")
        e("v_lshrrev_b32 v14, v16, v14"); e("v_lshlrev_b32 v16, 3, v16"); e("v_add_u32 v14, v14, v16")
        e("v_lshrrev_b32 v16, 3, v13"); e("v_and_b32 v16, 15, v16")
        e("v_lshlrev_b32 v14, 4, v14"); e("v_add_u32 v14, v14, v16"); e(f"v_lshlrev_b32 v{IDX+m}, 2, v14")
    e("s_waitcnt lgkmcnt(0)"); e("s_barrier")
    stamp(k, 3)
    e("v_and_b32 v10, 15, v0"); e("v_lshrrev_b32 v11, 4, v0")
    e("v_lshlrev_b32 v12, 3, v11"); e("v_sub_u32 v12, v12, v10"); e(f"v_add_u32 v12, {P}, v12")
    e("v_and_b32 v13, 7, v12"); e("v_sub_u32 v12, v12, v13")
    e(f"s_movk_i32 s38, {KCP}"); e("v_mul_lo_u32 v13, v13, s38"); e("v_lshlrev_b32 v12, 1, v12"); e("v_add_u32 v12, v12, v13")
    e(f"v_add_u32 v184, {KC - 960}, v12")
    e("v_lshlrev_b32 v12, 5, v10"); e("v_lshlrev_b32 v13, 4, v11"); e("v_add_u32 v12, v12, v13")
    e(f"v_add_u32 v185, {UT + 512 - 960}, v12")
    e("v_lshlrev_b32 v186, 4, v1")
    RES = 188
    for ch in range(2):
        for m in range(8):
            e(f"ds_read_b32 v{16+m}, v{IDX+m} offset:{KT + (2*ch)*3072}")
            e(f"ds_read_b32 v{24+m}, v{IDX+m} offset:{KT + (2*ch+1)*3072}")
        e("s_waitcnt lgkmcnt(0)")
        for m in range(8): e(f"v_add_f32 v{16+m}, v{16+m}, v{24+m}")
        for q in range(4): e(f"v_cvt_pk_bf16_f32 v{32+q}, v{16+2*q}, v{17+2*q}")
        e(f"ds_write_b128 v186, v[32:35] offset:{KLIN+32}")
        e("s_waitcnt lgkmcnt(0)"); e("s_barrier")
        def copies(addr):
            e(f"ds_read_b128 v[16:19], v{addr} offset:{KLIN}"); e(f"ds_read_b128 v[20:23], v{addr} offset:{KLIN+16}")
            e("s_waitcnt lgkmcnt(0)")
            for q in range(1, 7): e(f"v_mov_b32 v{25+q}, v{16+q}")
            for q in range(7):
                e(f"v_alignbit_b32 v{32+q}, v{17+q}, v{16+q}, 16")
            for q in range(1, 7): e(f"v_mov_b32 v{41+q}, v{32+q}")
            for s in range(8):
                h = s // 2
                if s % 2 == 0: src = (16+h) if h % 2 == 0 else (25+h)
                else: src = (32+h) if h % 2 == 0 else (41+h)
                e(f"ds_write_b128 v{addr}, {vr(src,4)} offset:{KC + s*KCP}")
        copies(186)
        e("v_cmp_gt_u32 vcc, 6, v1"); e("s_and_saveexec_b64 s[30:31], vcc")
        e("v_add_u32 v187, 4096, v186")
        copies(187)
        e("s_mov_b64 exec, s[30:31]")
        e("s_waitcnt lgkmcnt(0)"); e("s_barrier")
        if ch == 1: stamp(k, 6)
        for blk in range(2):
            if blk == 0: e("s_sub_u32 s39, 7, s3")
            else: e("s_mov_b32 s39, s3")
            acc = RES + 8*ch + 4*blk
            for i in range(4): e(f"v_mov_b32 v{acc+i}, 0")
            e("v_mov_b32 v48, v184")
            e("s_lshl_b32 s40, s39, 9"); e(f"s_add_u32 s40, s40, {ch*UTP}"); e("v_add_u32 v49, s40, v185")
            FB = 64; GB = 80
            def rd(slot, stepoff):
                off = 960 - 64*stepoff
                e(f"ds_read_b128 {vr(FB+4*slot,4)}, v48 offset:{off}")
                e(f"ds_read_b128 {vr(GB+4*slot,4)}, v49 offset:{off}")
            for q in range(4): rd(q, q)
            e("s_mov_b32 s41, 0")
            lc = k.new("CV")
            k.lab(lc)
            for q in range(8):
                e("s_waitcnt lgkmcnt(6)")
                e(f"v_mfma_f32_16x16x32_bf16 {vr(acc,4)}, {vr(FB+4*(q%4),4)}, {vr(GB+4*(q%4),4)}, {vr(acc,4)}")
                rd(q % 4, q + 4)
            e("v_subrev_u32 v48, 512, v48"); e("v_subrev_u32 v49, 512, v49")
            e("s_add_u32 s41, s41, 1"); e("s_cmp_le_u32 s41, s39"); e(f"s_cbranch_scc1 {lc}")
            e("s_waitcnt lgkmcnt(6)")
            e(f"v_mfma_f32_16x16x32_bf16 {vr(acc,4)}, {vr(FB,4)}, {vr(GB,4)}, {vr(acc,4)}")
            e("s_waitcnt lgkmcnt(0)")
        if ch == 0: e("s_barrier")
    stamp(k, 7)
    k.nop(16)
    e("s_lshl_b32 s42, s54, 16"); e("s_and_b32 s43, s54, 0xffff0000")
    e("s_movk_i32 s44, 4096")
    for blk in range(2):
        if blk == 0: e("s_sub_u32 s39, 7, s3")
        else: e("s_mov_b32 s39, s3")
        e("v_lshlrev_b32 v12, 4, v10"); e("v_lshlrev_b32 v13, 2, v11"); e("v_add_u32 v12, v12, v13")
        e("s_lshl_b32 s40, s39, 8"); e("v_add_u32 v12, s40, v12")
        e("v_lshlrev_b32 v13, 1, v12")
        e(f"ds_read_b64 v[16:17], v13 offset:{UT+512}"); e(f"ds_read_b64 v[18:19], v13 offset:{UT+UTP+512}")
        e("v_lshlrev_b32 v14, 11, v12"); e("v_add_u32 v14, s25, v14")
        e("s_waitcnt lgkmcnt(0)")
        for r in range(4):
            for ch in range(2):
                src = 16 + 2*ch + r//2
                if r & 1: e(f"v_and_b32 v{20+ch}, 0xffff0000, v{src}")
                else: e(f"v_lshlrev_b32 v{20+ch}, 16, v{src}")
                e(f"v_mul_f32 v{20+ch}, s{42+ch}, v{20+ch}")
            e(f"v_cvt_pk_bf16_f32 v22, v20, v21")
            e(f"v_cvt_pk_bf16_f32 v23, v{RES+4*blk+r}, v{RES+8+4*blk+r}")
            e("v_lshlrev_b32 v24, 16, v22"); e("v_and_b32 v25, 0xffff0000, v22")
            e("v_lshlrev_b32 v26, 16, v23"); e("v_and_b32 v27, 0xffff0000, v23")
            e("v_add_f32 v24, v24, v26"); e("v_add_f32 v25, v25, v27")
            e(f"v_cvt_pk_bf16_f32 v{28+r}, v24, v25")
            so = "0" if r < 2 else "s44"
            e(f"buffer_store_dword v{28+r}, v14, s[48:51], {so} offen offset:{(r%2)*2048}")
    if PROF: e("s_waitcnt vmcnt(0)")
    stamp_out(k, 8)
    return k, 216, (256, 256, LDS)

KERNELS["ssm"] = ssm
```

```python
from gen import K, vr, f32bits, MB, LOG2E, WS_UT, WS_KL, WS_SIZE
import gen_more as GM

PREP_LDS = 12288 + 12288 + 9216
def prep_body(k):
    e = k.e; stamp = GM.stamp; PROF = GM.PROF
    KT = 0; TT = 12288
    e("s_load_dwordx4 s[56:59], s[0:1], 0")
    e("s_load_dwordx4 s[60:63], s[0:1], 16")
    e("s_load_dwordx4 s[64:67], s[0:1], 32")
    e("s_load_dwordx2 s[70:71], s[0:1], 96")
    e("v_mov_b32 v1, v0")
    e("v_lshrrev_b32 v2, 6, v0")
    e("v_and_b32 v0, 63, v0")
    e("s_nop 0")
    e("v_readfirstlane_b32 s3, v2")
    e("s_and_b32 s24, s2, 7"); e("s_lshl_b32 s24, s24, 5"); e("s_lshr_b32 s25, s2, 3"); e("s_add_u32 s24, s24, s25")
    e("s_lshl_b32 s24, s24, 1")
    e("s_lshl_b32 s25, s24, 1")
    e("s_waitcnt lgkmcnt(0)")
    k.srd(12, 56, 2*MB); k.srd(16, 58, 131072); k.srd(20, 60, 131072); k.srd(40, 62, 131072); k.srd(44, 64, 131072); k.srd(48, 70, WS_SIZE)
    e("s_add_u32 s66, s66, s25"); e("s_addc_u32 s67, s67, 0")
    e("s_load_dword s52, s[66:67], 0")
    e("s_lshr_b32 s26, s3, 1"); e("s_and_b32 s27, s3, 1")
    e("s_add_u32 s28, s24, s26"); e("s_lshl_b32 s28, s28, 8"); e("s_lshl_b32 s29, s27, 7"); e("s_add_u32 s28, s28, s29")
    e("v_lshrrev_b32 v5, 4, v0"); e("v_lshlrev_b32 v5, 5, v5"); e("v_add_u32 v5, s28, v5")
    for base, srd in ((64, 16), (72, 20), (80, 40), (88, 44)):
        e(f"buffer_load_dwordx4 {vr(base,4)}, v5, s[{srd}:{srd+3}], 0 offen")
        e(f"buffer_load_dwordx4 {vr(base+4,4)}, v5, s[{srd}:{srd+3}], 0 offen offset:16")
    e("s_lshr_b32 s30, s2, 3"); e("s_and_b32 s31, s2, 7")
    e("v_lshrrev_b32 v3, 2, v1"); e("s_lshl_b32 s32, s30, 6"); e("v_add_u32 v4, s32, v3"); e("v_lshlrev_b32 v4, 10, v4")
    e("v_and_b32 v16, 3, v1"); e("v_lshlrev_b32 v16, 5, v16"); e("v_add_u32 v4, v4, v16")
    e("s_lshl_b32 s32, s31, 7")
    e("buffer_load_dwordx4 v[200:203], v4, s[12:15], s32 offen")
    e("buffer_load_dwordx4 v[204:207], v4, s[12:15], s32 offen offset:16")
    e("v_mul_u32_u24 v3, 192, v3"); e("v_add_u32 v3, v3, v16")
    e("v_and_b32 v14, 15, v0")
    e("v_lshlrev_b32 v6, 3, v14"); e("v_cvt_f32_u32 v6, v6"); e("v_mov_b32 v7, v6")
    def zhi(dst, z):
        e(f"v_lshrrev_b32 v16, 3, v{z}"); e("v_lshlrev_b32 v16, 7, v16"); e(f"v_and_b32 v17, 7, v{z}"); e("v_add_u32 v16, v16, v17")
        e(f"v_cvt_f32_u32 v{dst}, v16"); e(f"v_mov_b32 v{dst+1}, v{dst}")
    zhi(8, 14)
    e("v_lshlrev_b32 v15, 1, v14"); e("v_add_u32 v15, 16, v15"); e("v_lshlrev_b32 v18, 2, v14")
    e("v_cmp_gt_u32 vcc, 8, v14"); e("s_nop 1"); e("v_cndmask_b32 v15, v18, v15, vcc")
    zhi(10, 15)
    e("v_lshlrev_b32 v15, 3, v14"); e("v_add_u32 v15, 64, v15")
    zhi(12, 15)
    e("v_lshlrev_b32 v186, 4, v1")
    IDX = 176
    e("v_lshlrev_b32 v20, 3, v1"); e("v_sub_u32 v20, 2047, v20")
    for m in range(8):
        e(f"v_subrev_u32 v21, {m}, v20")
        e("v_cvt_f32_u32 v21, v21")
        e("v_cvt_pk_bf16_f32 v21, v21, v21"); e("v_lshlrev_b32 v21, 16, v21"); e("v_cvt_u32_f32 v21, v21")
        e("v_lshrrev_b32 v22, 7, v21"); e("v_lshlrev_b32 v22, 3, v22"); e("v_and_b32 v23, 7, v21"); e("v_or_b32 v22, v22, v23")
        e("v_or_b32 v23, 8, v22"); e("v_ffbh_u32 v23, v23"); e("v_sub_u32 v23, 28, v23")
        e("v_lshrrev_b32 v22, v23, v22"); e("v_lshlrev_b32 v23, 3, v23"); e("v_add_u32 v22, v22, v23")
        e("v_lshrrev_b32 v23, 3, v21"); e("v_and_b32 v23, 15, v23")
        e("v_lshlrev_b32 v22, 4, v22"); e("v_add_u32 v22, v22, v23"); e(f"v_lshlrev_b32 v{IDX+m}, 2, v22")
    e("s_waitcnt lgkmcnt(0)")
    e("s_lshl_b32 s53, s52, 16"); e("s_and_b32 s55, s52, 0xffff0000"); e("s_cmp_eq_u32 s26, 0"); e("s_cselect_b32 s53, s53, s55")
    e("v_mov_b32 v15, s53"); e(f"v_mul_f32 v15, {hex(f32bits(LOG2E))}, v15"); e("v_exp_f32 v15, v15"); e("s_nop 0")
    e("v_cvt_pk_bf16_f32 v15, v15, v15"); e("v_lshlrev_b32 v15, 16, v15")
    e(f"s_mov_b32 s34, {hex(f32bits(LOG2E))}"); e(f"s_mov_b32 s35, {hex(f32bits(-LOG2E))}"); e(f"s_mov_b32 s36, {hex(f32bits(1/(2*3.141592653589793)))}")
    e("v_add_f32 v16, v15, v15")
    e("s_waitcnt vmcnt(0)")
    e(f"ds_write_b128 v3, v[200:203] offset:{TT}"); e(f"ds_write_b128 v3, v[204:207] offset:{TT+16}")
    stamp(k, 1)
    AP, CP = 96, 128
    for t in range(16):
        def unp(dst, src):
            if t & 1: e(f"v_and_b32 v{dst}, 0xffff0000, v{src + t//2}")
            else: e(f"v_lshlrev_b32 v{dst}, 16, v{src + t//2}")
        a, b, c, d = AP+2*t, AP+2*t+1, CP+2*t, CP+2*t+1
        unp(a, 64); unp(b, 72); unp(c, 80); unp(d, 88)
        e(f"v_mul_f32 v{a}, s34, v{a}"); e(f"v_mul_f32 v{b}, v{b}, v15"); e(f"v_exp_f32 v{a}, v{a}")
        e(f"v_mul_f32 v{c}, v{c}, v16"); e(f"v_mul_f32 v{d}, v{d}, v16")
        e(f"v_cvt_pk_bf16_f32 v{a}, v{a}, v{a}"); e(f"v_mul_f32 v{b}, s36, v{b}")
        e(f"v_lshlrev_b32 v{a}, 16, v{a}"); e(f"v_mul_f32 v{a}, v{a}, v15"); e(f"v_mul_f32 v{a}, s35, v{a}")
    e("s_waitcnt lgkmcnt(0)"); e("s_barrier")
    stamp(k, 2)
    e("v_lshrrev_b32 v20, 2, v14"); e("s_lshl_b32 s37, s3, 4"); e("v_add_u32 v20, s37, v20"); e("v_mul_u32_u24 v20, 192, v20")
    e("v_lshrrev_b32 v21, 4, v0"); e("v_lshlrev_b32 v21, 5, v21"); e("v_add_u32 v20, v20, v21")
    e("v_and_b32 v21, 3, v0"); e("v_lshlrev_b32 v21, 3, v21"); e("v_add_u32 v20, v20, v21")
    for rho in range(2):
        for hs in range(2):
            e(f"ds_read_b64_tr_b16 v[{200+4*rho+2*hs}:{201+4*rho+2*hs}], v20 offset:{TT + (8*rho+4*hs)*192}")
    T2 = TT + 12288
    e("v_mul_u32_u24 v21, 144, v0"); e("s_lshl_b32 s38, s3, 5"); e("v_add_u32 v21, s38, v21")
    e("s_waitcnt lgkmcnt(0)")
    e(f"ds_write_b128 v21, v[200:203] offset:{T2}"); e(f"ds_write_b128 v21, v[204:207] offset:{T2+16}")
    e("s_waitcnt lgkmcnt(0)"); e("s_barrier")
    e("v_lshrrev_b32 v20, 2, v1"); e("v_mul_u32_u24 v21, 144, v20"); e("v_and_b32 v22, 3, v1"); e("v_lshlrev_b32 v22, 5, v22"); e("v_add_u32 v21, v21, v22")
    e(f"ds_read_b128 v[200:203], v21 offset:{T2}"); e(f"ds_read_b128 v[204:207], v21 offset:{T2+16}")
    e("v_lshlrev_b32 v20, 12, v20"); e("v_add_u32 v21, v20, v22")
    e("s_lshl_b32 s37, s31, 18"); e("s_lshl_b32 s38, s30, 7"); e("s_add_u32 s37, s37, s38")
    e(f"s_add_u32 s37, s37, {WS_UT}")
    e("s_waitcnt lgkmcnt(0)")
    e("buffer_store_dwordx4 v[200:203], v21, s[48:51], s37 offen")
    e("buffer_store_dwordx4 v[204:207], v21, s[48:51], s37 offen offset:16")
    ACC = 160
    for i in range(12): e(f"v_mov_b32 v{ACC+i}, 0")
    FR = [40, 208]
    for t in range(16):
        q, j = t // 4, t % 4; fr = FR[q & 1]
        for c in range(4):
            e(f"v_pk_mul_f32 v[{20+2*c}:{21+2*c}], v[{AP+2*t}:{AP+2*t+1}], v[{6+2*c}:{7+2*c}]")
        for c in range(4):
            e(f"v_exp_f32 v{20+2*c}, v{20+2*c}")
            e(f"v_fract_f32 v{21+2*c}, v{21+2*c}")
        for c in range(4):
            e(f"v_cos_f32 v{28+2*c}, v{21+2*c}")
            e(f"v_sin_f32 v{29+2*c}, v{21+2*c}")
        e("s_nop 0")
        for c in range(4):
            e(f"v_pk_mul_f32 v[{28+2*c}:{29+2*c}], v[{28+2*c}:{29+2*c}], v[{20+2*c}:{21+2*c}] op_sel_hi:[1,0]")
        for mb in range(3):
            e(f"v_cvt_pk_bf16_f32 v{fr+4+4*mb+j}, v{30+2*mb}, v{31+2*mb}")
        e(f"v_mul_f32 v36, v{CP+2*t+1}, v29")
        e(f"v_mul_f32 v37, v{CP+2*t+1}, v28")
        e(f"v_fma_f32 v36, v{CP+2*t}, v28, -v36")
        e(f"v_fma_f32 v37, -v{CP+2*t}, v29, -v37")
        e(f"v_cvt_pk_bf16_f32 v{fr+j}, v36, v37")
        if j == 3:
            e("s_nop 1")
            for mb in range(3):
                e(f"v_mfma_f32_16x16x32_bf16 {vr(ACC+4*mb,4)}, {vr(fr+4+4*mb,4)}, {vr(fr,4)}, {vr(ACC+4*mb,4)}")
    stamp(k, 3)
    k.nop(8)
    e("v_lshrrev_b32 v20, 4, v0"); e("v_lshlrev_b32 v20, 8, v20"); e("v_lshlrev_b32 v21, 2, v14"); e("v_add_u32 v20, v20, v21")
    e("s_mul_i32 s37, s3, 3072"); e("v_add_u32 v20, s37, v20")
    for mb in range(3):
        for r in range(4):
            e(f"ds_write_b32 v20, v{ACC+4*mb+r} offset:{KT+mb*1024+r*64}")
    e("s_waitcnt lgkmcnt(0)")
    stamp(k, 5)
    e("s_barrier")
    stamp(k, 6)
    for ch in range(2):
        for m in range(8):
            e(f"ds_read_b32 v{16+8*ch+m}, v{IDX+m} offset:{KT+2*ch*3072}")
            e(f"ds_read_b32 v{64+8*ch+m}, v{IDX+m} offset:{KT+(2*ch+1)*3072}")
    e("s_lshl_b32 s37, s24, 12"); e(f"s_add_u32 s37, s37, {WS_KL}")
    e("s_waitcnt lgkmcnt(0)")
    for i in range(16): e(f"v_add_f32 v{16+i}, v{16+i}, v{64+i}")
    for ch in range(2):
        for q in range(4): e(f"v_cvt_pk_bf16_f32 v{32+4*ch+q}, v{16+8*ch+2*q}, v{17+8*ch+2*q}")
    e("buffer_store_dwordx4 v[32:35], v186, s[48:51], s37 offen")
    e("s_add_u32 s37, s37, 4096")
    e("buffer_store_dwordx4 v[36:39], v186, s[48:51], s37 offen")
    stamp(k, 7)
    if PROF: e("s_waitcnt vmcnt(0)")
    stamp(k, 4)

CONV_LDS = 1024 + 2*4640 + 2*34304
def conv_body(k):
    e = k.e; stamp = GM.stamp; PROF = GM.PROF
    UT = 1024; UTP = 4640; KC = UT + 2*UTP; KCP = 4288; KCC = 34304
    P = 2063
    e("s_load_dwordx2 s[68:69], s[0:1], 48")
    e("s_load_dwordx2 s[70:71], s[0:1], 80")
    e("s_load_dwordx2 s[56:57], s[0:1], 96")
    e("v_mov_b32 v1, v0")
    e("v_lshrrev_b32 v2, 6, v0")
    e("v_and_b32 v0, 63, v0")
    e("s_nop 0")
    e("v_readfirstlane_b32 s3, v2")
    e("s_and_b32 s24, s2, 7"); e("s_lshl_b32 s24, s24, 5"); e("s_lshr_b32 s25, s2, 3"); e("s_add_u32 s24, s24, s25")
    e("s_lshl_b32 s24, s24, 1"); e("s_lshl_b32 s25, s24, 1")
    e("s_waitcnt lgkmcnt(0)")
    k.srd(48, 70, 4*MB); k.srd(12, 56, WS_SIZE)
    e("s_add_u32 s68, s68, s25"); e("s_addc_u32 s69, s69, 0"); e("s_load_dword s54, s[68:69], 0")
    e("s_lshl_b32 s26, s24, 12"); e(f"s_add_u32 s26, s26, {WS_KL}")
    for ch in range(2):
        b = 16 + 4*ch
        e(f"s_add_u32 s{b}, s56, s26"); e(f"s_addc_u32 s{b+1}, s57, 0"); e(f"s_and_b32 s{b+1}, s{b+1}, 0xffff")
        e(f"s_mov_b32 s{b+2}, 4096"); e(f"s_mov_b32 s{b+3}, 0x00020000")
        if ch == 0: e("s_add_u32 s26, s26, 4096")
    e("v_lshlrev_b32 v186, 4, v1")
    e("v_subrev_u32 v3, 32, v186")
    e("v_add_u32 v4, 4096, v3")
    for ch in range(2):
        e(f"buffer_load_dwordx4 {vr(64+8*ch,4)}, v3, s[{16+4*ch}:{19+4*ch}], 0 offen")
        e(f"buffer_load_dwordx4 {vr(68+8*ch,4)}, v3, s[{16+4*ch}:{19+4*ch}], 0 offen offset:16")
    e("s_lshl_b32 s27, s24, 12"); e(f"s_add_u32 s27, s27, {WS_UT}")
    e("buffer_load_dwordx4 v[200:203], v186, s[12:15], s27 offen")
    e("s_add_u32 s27, s27, 4096")
    e("buffer_load_dwordx4 v[204:207], v186, s[12:15], s27 offen")
    for ch in range(2):
        e(f"buffer_load_dwordx4 {vr(80+8*ch,4)}, v4, s[{16+4*ch}:{19+4*ch}], 0 offen")
        e(f"buffer_load_dwordx4 {vr(84+8*ch,4)}, v4, s[{16+4*ch}:{19+4*ch}], 0 offen offset:16")
    for i in range(4): e(f"v_mov_b32 v{16+i}, 0")
    e("v_cmp_gt_u32 vcc, 32, v1"); e("s_and_saveexec_b64 s[30:31], vcc")
    e(f"ds_write_b128 v186, v[16:19] offset:{UT}"); e(f"ds_write_b128 v186, v[16:19] offset:{UT+UTP}")
    e("s_mov_b64 exec, s[30:31]")
    e("v_cmp_gt_u32 vcc, 2, v1"); e("s_and_saveexec_b64 s[30:31], vcc")
    e(f"ds_write_b128 v186, v[16:19] offset:{UT+4608}"); e(f"ds_write_b128 v186, v[16:19] offset:{UT+UTP+4608}")
    e("s_mov_b64 exec, s[30:31]")
    e("v_and_b32 v14, 15, v0"); e("v_lshrrev_b32 v11, 4, v0")
    e("v_lshlrev_b32 v12, 3, v11"); e("v_sub_u32 v12, v12, v14"); e(f"v_add_u32 v12, {P}, v12")
    e("v_and_b32 v13, 7, v12"); e("v_sub_u32 v12, v12, v13")
    e(f"s_movk_i32 s38, {KCP}"); e("v_mul_lo_u32 v13, v13, s38"); e("v_lshlrev_b32 v12, 1, v12"); e("v_add_u32 v12, v12, v13")
    e(f"v_add_u32 v184, {KC - 960}, v12")
    e("v_lshlrev_b32 v12, 5, v14"); e("v_lshlrev_b32 v13, 4, v11"); e("v_add_u32 v12, v12, v13")
    e(f"v_add_u32 v185, {UT + 512 - 960}, v12")
    e("v_add_u32 v187, 4096, v186")
    def copies(addr, src, ch):
        if ch: e(f"v_add_u32 v50, {KCC}, v{addr}"); addr = 50
        for q in range(1, 7): e(f"v_mov_b32 v{25+q}, v{src+q}")
        for q in range(7): e(f"v_alignbit_b32 v{32+q}, v{src+1+q}, v{src+q}, 16")
        for q in range(1, 7): e(f"v_mov_b32 v{41+q}, v{32+q}")
        for s in range(8):
            h = s // 2
            if s % 2 == 0: r = (src+h) if h % 2 == 0 else (25+h)
            else: r = (32+h) if h % 2 == 0 else (41+h)
            e(f"ds_write_b128 v{addr}, {vr(r,4)} offset:{KC + s*KCP}")
    e("s_waitcnt vmcnt(6)")
    stamp(k, 1)
    copies(186, 64, 0); copies(186, 72, 1)
    e("s_waitcnt vmcnt(4)")
    e(f"ds_write_b128 v186, v[200:203] offset:{UT+512}"); e(f"ds_write_b128 v186, v[204:207] offset:{UT+UTP+512}")
    e("s_waitcnt vmcnt(0)")
    e("v_cmp_gt_u32 vcc, 6, v1"); e("s_and_saveexec_b64 s[30:31], vcc")
    copies(187, 80, 0); copies(187, 88, 1)
    e("s_mov_b64 exec, s[30:31]")
    e("s_waitcnt lgkmcnt(0)"); e("s_barrier")
    stamp(k, 2)
    RES = 188
    e("s_lshl_b32 s42, s54, 16"); e("s_and_b32 s43, s54, 0xffff0000")
    e("s_movk_i32 s44, 4096")
    for blk in range(2):
        if blk == 0: e("s_sub_u32 s39, 7, s3")
        else: e("s_mov_b32 s39, s3")
        for ch in range(2):
            acc = RES + 8*ch + 4*blk
            for i in range(4): e(f"v_mov_b32 v{acc+i}, 0")
            e(f"v_add_u32 v48, {ch*KCC}, v184")
            e("s_lshl_b32 s40, s39, 9"); e(f"s_add_u32 s40, s40, {ch*UTP}"); e("v_add_u32 v49, s40, v185")
            FB = 64; GB = 80
            def rd(slot, stepoff):
                off = 960 - 64*stepoff
                e(f"ds_read_b128 {vr(FB+4*slot,4)}, v48 offset:{off}")
                e(f"ds_read_b128 {vr(GB+4*slot,4)}, v49 offset:{off}")
            for q in range(4): rd(q, q)
            e("s_mov_b32 s41, 0")
            lc = k.new("CV"); k.lab(lc)
            for q in range(8):
                e("s_waitcnt lgkmcnt(6)")
                e(f"v_mfma_f32_16x16x32_bf16 {vr(acc,4)}, {vr(FB+4*(q%4),4)}, {vr(GB+4*(q%4),4)}, {vr(acc,4)}")
                rd(q % 4, q + 4)
            e("v_subrev_u32 v48, 512, v48"); e("v_subrev_u32 v49, 512, v49")
            e("s_add_u32 s41, s41, 1"); e("s_cmp_le_u32 s41, s39"); e(f"s_cbranch_scc1 {lc}")
            e("s_waitcnt lgkmcnt(6)")
            e(f"v_mfma_f32_16x16x32_bf16 {vr(acc,4)}, {vr(FB,4)}, {vr(GB,4)}, {vr(acc,4)}")
            e("s_waitcnt lgkmcnt(0)")
        e("v_lshlrev_b32 v12, 4, v14"); e("v_lshlrev_b32 v13, 2, v11"); e("v_add_u32 v12, v12, v13")
        e("s_lshl_b32 s40, s39, 8"); e("v_add_u32 v12, s40, v12")
        e("v_lshlrev_b32 v13, 1, v12")
        e(f"ds_read_b64 v[16:17], v13 offset:{UT+512}"); e(f"ds_read_b64 v[18:19], v13 offset:{UT+UTP+512}")
        e("v_lshlrev_b32 v15, 11, v12"); e("v_add_u32 v15, s25, v15")
        k.nop(6)
        e("s_waitcnt lgkmcnt(0)")
        for r in range(4):
            for ch in range(2):
                src = 16 + 2*ch + r//2
                if r & 1: e(f"v_and_b32 v{20+ch}, 0xffff0000, v{src}")
                else: e(f"v_lshlrev_b32 v{20+ch}, 16, v{src}")
                e(f"v_mul_f32 v{20+ch}, s{42+ch}, v{20+ch}")
            e("v_cvt_pk_bf16_f32 v22, v20, v21")
            e(f"v_cvt_pk_bf16_f32 v23, v{RES+4*blk+r}, v{RES+8+4*blk+r}")
            e("v_lshlrev_b32 v24, 16, v22"); e("v_and_b32 v25, 0xffff0000, v22")
            e("v_lshlrev_b32 v26, 16, v23"); e("v_and_b32 v27, 0xffff0000, v23")
            e("v_add_f32 v24, v24, v26"); e("v_add_f32 v25, v25, v27")
            e(f"v_cvt_pk_bf16_f32 v{28+4*blk+r}, v24, v25")
            so = "0" if r < 2 else "s44"
            e(f"buffer_store_dword v{28+4*blk+r}, v15, s[48:51], {so} offen offset:{(r%2)*2048}")
        if blk == 0: stamp(k, 3)
    if PROF: e("s_waitcnt vmcnt(0)")
    stamp(k, 4)

def mk(name, body, lds):
    def f():
        k = K(name); e = k.e
        e("s_cmp_ge_u32 s2, 256"); e(f"s_cbranch_scc1 {k.name}_end")
        if GM.PROF: e("s_memrealtime s[88:89]")
        GM.stamp(k, 0)
        body(k)
        GM.stamp_out(k, 8)
        return k, 224, (256, 256, lds)
    return f
KERNELS = {"prep": mk("prep_kernel", prep_body, PREP_LDS), "conv": mk("conv_kernel", conv_body, CONV_LDS)}

def merged(name, first, second, lds, vg):
    def f():
        import gen
        k = K(name); e = k.e
        l2 = k.new("SECOND")
        e("s_cmp_ge_u32 s2, 512"); e(f"s_cbranch_scc1 {k.name}_end")
        e("s_cmp_ge_u32 s2, 256"); e(f"s_cbranch_scc1 {l2}")
        first(k)
        e("s_endpgm")
        k.lab(l2)
        e("s_sub_u32 s2, s2, 256")
        second(k)
        return k, vg, (512, 256, lds)
    return f
import gen
KERNELS["l1"] = merged("l1_kernel", gen.gemm1, prep_body, max(49152, PREP_LDS), 224)
KERNELS["l3"] = merged("l3_kernel", GM.gemm2, conv_body, max(65536, CONV_LDS), 256)
```

```python
import sys, math, struct
NAME = "concat_heads__ssm_conv_s4d__softmax_full_mha__prompt"
MB = 1 << 20
WS_Q, WS_K, WS_V, WS_O = 0, 2*MB, 4*MB, 6*MB
WS_KM = 8*MB
WS_UT = 9*MB
WS_KL = 11*MB
WS_SIZE = 13*MB

def f32bits(x): return struct.unpack("<I", struct.pack("<f", x))[0]
LOG2E = 1.4426950408889634
QSCALE = 0.25*LOG2E

class K:
    def __init__(self, name):
        self.name = name; self.L = []; self.uid = 0
    def e(self, s): self.L.append("    " + s)
    def lab(self, s): self.L.append(s + ":")
    def new(self, p="L"):
        self.uid += 1; return f"{p}_{self.name}_{self.uid}"
    def nop(self, n):
        while n > 0:
            k = min(n, 16); self.e(f"s_nop {k-1}"); n -= k
    def srd(self, s, base, size):
        self.e(f"s_mov_b32 s{s}, s{base}")
        self.e(f"s_and_b32 s{s+1}, s{base+1}, 0xffff")
        self.e(f"s_mov_b32 s{s+2}, {size}")
        self.e(f"s_mov_b32 s{s+3}, 0x00020000")
    def text(self, vgpr, sgpr=96):
        out = [f".globl {self.name}", ".p2align 8", f".type {self.name},@function", f"{self.name}:"]
        out += self.L
        out += [f"{self.name}_end:", "    s_endpgm"]
        acc = (vgpr + 3)//4*4
        desc = f""".amdhsa_kernel {self.name}
  .amdhsa_next_free_vgpr {vgpr}
  .amdhsa_next_free_sgpr {sgpr}
  .amdhsa_accum_offset {acc}
  .amdhsa_group_segment_fixed_size 0
  .amdhsa_kernarg_size 104
  .amdhsa_user_sgpr_count 2
  .amdhsa_user_sgpr_kernarg_segment_ptr 1
  .amdhsa_system_sgpr_workgroup_id_x 1
.end_amdhsa_kernel"""
        return "\n".join(out), desc

def vr(a, n): return f"v[{a}:{a+n-1}]" if n > 1 else f"v{a}"

def gemm1(k=None):
    from gen_more import stamp, stamp_out, PROF
    own = k is None
    if own:
        k = K("gemm1_kernel")
        k.e("s_cmp_ge_u32 s2, 256"); k.e(f"s_cbranch_scc1 {k.name}_end")
    e = k.e
    if PROF: e("s_memrealtime s[88:89]")
    stamp(k, 0)
    e("s_load_dwordx2 s[4:5], s[0:1], 56")
    e("s_load_dwordx2 s[6:7], s[0:1], 64")
    e("s_load_dwordx2 s[8:9], s[0:1], 96")
    e("v_lshrrev_b32 v1, 6, v0")
    e("v_and_b32 v0, 63, v0")
    e("s_nop 0")
    e("v_readfirstlane_b32 s3, v1")
    e("s_lshr_b32 s24, s2, 4")
    e("s_and_b32 s25, s2, 15")
    e("s_waitcnt lgkmcnt(0)")
    k.srd(12, 4, 2*MB); k.srd(16, 6, 512*1536*2); k.srd(20, 8, WS_SIZE)
    e("s_lshl_b32 s26, s24, 7"); e("s_lshl_b32 s27, s3, 5"); e("s_add_u32 s26, s26, s27")
    e("v_and_b32 v2, 31, v0"); e("v_add_u32 v2, s26, v2"); e("v_lshlrev_b32 v2, 10, v2")
    e("v_lshrrev_b32 v3, 5, v0"); e("v_lshlrev_b32 v3, 4, v3"); e("v_add_u32 v2, v2, v3")
    e("s_movk_i32 s28, 171"); e("s_movk_i32 s29, 3072")
    for sub in range(3):
        e(f"v_add_u32 v3, {64*sub}, v0")
        e("v_mul_lo_u32 v7, v3, s28"); e("v_lshrrev_b32 v7, 11, v7")
        e("v_mul_u32_u24 v8, 12, v7"); e("v_sub_u32 v8, v3, v8")
        e("v_mul_lo_u32 v7, v7, s29"); e("v_lshlrev_b32 v8, 4, v8")
        e(f"v_add_u32 v{4+sub}, v7, v8")
    e("v_lshrrev_b32 v7, 5, v0"); e("v_lshlrev_b32 v7, 3, v7")
    e("v_and_b32 v8, 15, v0"); e("v_lshrrev_b32 v8, 2, v8"); e("v_add_u32 v7, v7, v8")
    e("v_mul_u32_u24 v7, 192, v7")
    e("v_lshrrev_b32 v8, 4, v0"); e("v_and_b32 v8, 1, v8"); e("v_lshlrev_b32 v8, 5, v8"); e("v_add_u32 v7, v7, v8")
    e("v_and_b32 v8, 3, v0"); e("v_lshlrev_b32 v8, 3, v8"); e("v_add_u32 v7, v7, v8")
    XF = 128
    ACC = 16
    WF = 64
    for i in range(48): e(f"v_mov_b32 v{ACC+i}, 0")
    e("s_mul_i32 s30, s25, 192")
    e("s_lshl_b32 s42, s3, 4")
    e("s_mul_i32 s43, s42, 3072"); e("s_add_u32 s43, s43, s30")
    e("s_mul_i32 s44, s42, 192")
    def loads(slot):
        for sub in range(3):
            e(f"s_add_u32 s34, s44, {slot*12288 + sub*1024}")
            e("s_mov_b32 m0, s34"); e("s_nop 0")
            e(f"buffer_load_dwordx4 v{4+sub}, s[16:19], s43 offen lds")
        for s_ in range(4):
            e(f"buffer_load_dwordx4 {vr(XF+16*slot+4*s_,4)}, v2, s[12:15], 0 offen offset:{s_*32}")
        e(f"s_add_u32 s43, s43, {64*3072}"); e("v_add_u32 v2, 128, v2")
    loads(0); loads(1); loads(2)
    lv = [k.new("V") for _ in range(3)]; lepi = k.new("EPI")
    e("s_cmp_eq_u32 s25, 10"); e(f"s_cbranch_scc1 {lv[1]}")
    e("s_cmp_gt_u32 s25, 10"); e(f"s_cbranch_scc1 {lv[2]}")
    def wread(slot, sl, pb):
        for t in range(3):
            for hs in range(2):
                e(f"ds_read_b64_tr_b16 {vr(WF+12*pb+4*t+2*hs,2)}, v7 offset:{slot*12288+sl*3072+hs*768+64*t}")
    for var in range(3):
        k.lab(lv[var])
        isV = [[0,0,0],[0,0,1],[1,1,1]][var]
        e("s_mov_b32 s46, 0")
        lp = k.new("LP"); k.lab(lp)
        for slot in range(4):
            lw = k.new("W"); lw2 = k.new("W")
            if slot < 2:
                e("s_waitcnt vmcnt(14)")
            else:
                e("s_cmp_eq_u32 s46, 0"); e(f"s_cbranch_scc1 {lw}")
                e(f"s_waitcnt vmcnt({7 if slot == 2 else 0})"); e(f"s_branch {lw2}")
                k.lab(lw); e("s_waitcnt vmcnt(14)"); k.lab(lw2)
            e("s_barrier")
            if PROF:
                e("s_cmp_lg_u32 s46, 0"); lq = k.new("Q"); e(f"s_cbranch_scc1 {lq}"); stamp(k, 1+slot); k.lab(lq)
            wread(slot, 0, 0)
            ls = k.new("SK")
            if slot == 0:
                loads(3)
            else:
                e("s_cmp_lg_u32 s46, 0"); e(f"s_cbranch_scc1 {ls}")
                loads((slot+3) % 4)
                k.lab(ls)
            for sl in range(4):
                pb = sl & 1
                if sl < 3:
                    wread(slot, sl+1, pb ^ 1); e("s_waitcnt lgkmcnt(6)")
                else:
                    e("s_waitcnt lgkmcnt(0)")
                for t in range(3):
                    a_ = vr(WF+12*pb+4*t, 4); b_ = vr(XF+16*slot+4*sl, 4)
                    if isV[t]: a_, b_ = b_, a_
                    e(f"v_mfma_f32_32x32x16_bf16 {vr(ACC+16*t,16)}, {a_}, {b_}, {vr(ACC+16*t,16)}")
        e("s_add_u32 s46, s46, 1"); e("s_cmp_lt_u32 s46, 2"); e(f"s_cbranch_scc1 {lp}")
        e(f"s_branch {lepi}")
    k.lab(lepi)
    k.nop(16)
    stamp(k, 5)
    e("v_lshlrev_b32 v2, 4, v0")
    e("v_and_b32 v3, 15, v0"); e("v_lshlrev_b32 v3, 4, v3")
    e("v_lshrrev_b32 v4, 5, v0"); e("v_lshlrev_b32 v4, 8, v4"); e("v_add_u32 v3, v3, v4")
    e("v_lshrrev_b32 v4, 4, v0"); e("v_and_b32 v4, 1, v4"); e("v_lshlrev_b32 v4, 16, v4"); e("v_add_u32 v3, v3, v4")
    e("s_lshl_b32 s35, s24, 2"); e("s_add_u32 s35, s35, s3")
    for t in range(3):
        lV = k.new("EV"); lN = k.new("EN")
        e(f"s_mul_i32 s36, s25, 96"); e(f"s_add_u32 s36, s36, {32*t}")
        e("s_lshr_b32 s37, s36, 9")
        e("s_and_b32 s38, s36, 511"); e("s_lshr_b32 s38, s38, 4")
        e("s_cmp_eq_u32 s37, 2"); e(f"s_cbranch_scc1 {lV}")
        e("s_cmp_eq_u32 s37, 0"); e(f"s_cselect_b32 s39, {hex(f32bits(QSCALE))}, 1.0")
        e("s_lshl_b32 s40, s37, 21")
        e("s_lshl_b32 s41, s38, 6"); e("s_add_u32 s41, s41, s35"); e("s_lshl_b32 s41, s41, 10"); e("s_add_u32 s40, s40, s41")
        for i in range(16): e(f"v_mul_f32 v{ACC+16*t+i}, s39, v{ACC+16*t+i}")
        for i in range(8): e(f"v_cvt_pk_bf16_f32 v{88+i}, v{ACC+16*t+2*i}, v{ACC+16*t+2*i+1}")
        e(f"buffer_store_dwordx4 v[88:91], v2, s[20:23], s40 offen")
        e("s_add_u32 s40, s40, 65536")
        e(f"buffer_store_dwordx4 v[92:95], v2, s[20:23], s40 offen")
        e("s_cmp_lg_u32 s37, 1"); e(f"s_cbranch_scc1 {lN}")
        for hh in range(2):
            b = ACC+16*t+8*hh
            e(f"v_mul_f32 v{96+hh}, v{b}, v{b}")
            for i in range(1, 8): e(f"v_fmac_f32 v{96+hh}, v{b+i}, v{b+i}")
        for hh in range(2): e(f"v_mov_b32 v{98+hh}, v{96+hh}")
        k.nop(2)
        for hh in range(2): e(f"v_permlane32_swap_b32 v{96+hh}, v{98+hh}")
        k.nop(2)
        for hh in range(2): e(f"v_add_f32 v{96+hh}, v{96+hh}, v{98+hh}")
        for mod in ("quad_perm:[1,0,3,2]", "quad_perm:[2,3,0,1]", "row_half_mirror", "row_mirror"):
            k.nop(2)
            for hh in range(2): e(f"v_max_f32_dpp v{96+hh}, v{96+hh}, v{96+hh} {mod} row_mask:0xf bank_mask:0xf")
        for hh in range(2): e(f"v_mov_b32 v{98+hh}, v{96+hh}")
        k.nop(2)
        for hh in range(2): e(f"v_permlane16_swap_b32 v{96+hh}, v{98+hh}")
        k.nop(2)
        for hh in range(2): e(f"v_max_f32 v{96+hh}, v{96+hh}, v{98+hh}")
        e("s_lshl_b32 s41, s38, 6"); e("s_add_u32 s41, s41, s35"); e("s_lshl_b32 s41, s41, 2"); e(f"s_add_u32 s41, s41, {WS_KM}")
        e("v_mov_b32 v100, 0")
        e("s_mov_b64 exec, 1")
        e("buffer_store_dword v96, v100, s[20:23], s41 offen")
        e("buffer_store_dword v97, v100, s[20:23], s41 offen offset:256")
        e("s_mov_b64 exec, -1")
        e(f"s_branch {lN}")
        k.lab(lV)
        e("s_lshl_b32 s40, s38, 16"); e("s_lshl_b32 s41, s35, 10"); e("s_add_u32 s40, s40, s41"); e(f"s_add_u32 s40, s40, {WS_V}")
        for i in range(8): e(f"v_cvt_pk_bf16_f32 v{88+i}, v{ACC+16*t+2*i}, v{ACC+16*t+2*i+1}")
        e(f"buffer_store_dwordx4 v[88:91], v3, s[20:23], s40 offen")
        e(f"buffer_store_dwordx4 v[92:95], v3, s[20:23], s40 offen offset:512")
        k.lab(lN)
        k.nop(4)
    if PROF: e("s_waitcnt vmcnt(0)")
    stamp(k, 6)
    stamp_out(k, 7, 64)
    return k, 192, (256, 256, 49152)

KERNELS = {"gemm1": gemm1}

def build(names, out):
    import gen_more, gen_ssm
    allk = dict(KERNELS); allk.update(gen_more.KERNELS); allk.update(gen_ssm.KERNELS)
    hdr = open("cdna_kernels/%s.s.ref" % NAME).read().split("; Override")[0]
    launches = []; bodies = []; descs = []
    for n in names:
        k, vg, (grid, block, lds) = allk[n]()
        t, d = k.text(vg)
        bodies.append(t); descs.append(d)
        launches.append(f"; @launch kernel={k.name} grid=({grid},1,1) block=({block},1,1) lds={lds}")
    s = hdr + "\n".join(launches) + "\n" + '.amdgcn_target "amdgcn-amd-amdhsa--gfx950"\n.text\n'
    s += "\n".join(bodies) + '\n.section .rodata,"a"\n' + "\n".join(".p2align 6\n" + d for d in descs) + "\n"
    open(out, "w").write(s)

if __name__ == "__main__":
    build(sys.argv[2:], sys.argv[1])
```

```python
from gen import K, vr, f32bits, MB, WS_Q, WS_K, WS_V, WS_O, WS_KM, WS_SIZE, LOG2E

import os
PROF = os.environ.get("PROF", "0") == "1"
def stamp(k, idx):
    if PROF:
        k.e(f"s_memtime s[{72+2*idx}:{73+2*idx}]")
        k.e("s_waitcnt lgkmcnt(0)")
def stamp_out(k, n, base=0):
    if not PROF: return
    e = k.e
    l = k.new("NOPROF")
    e("s_memrealtime s[90:91]"); e("s_waitcnt lgkmcnt(0)")
    e("s_cmp_lg_u32 s2, 5"); e(f"s_cbranch_scc1 {l}")
    e("s_and_b32 s70, s3, 3"); e("s_cmp_lg_u32 s70, 0"); e(f"s_cbranch_scc1 {l}")
    e("s_load_dwordx2 s[92:93], s[0:1], 88"); e("s_waitcnt lgkmcnt(0)")
    e("s_mov_b32 s94, 256"); e("s_mov_b32 s95, 0x00020000")
    e("s_lshl_b32 s70, s3, 4"); e(f"s_add_u32 s70, s70, {base}"); e("v_mov_b32 v1, s70")
    for i in range(n):
        e(f"s_sub_u32 s70, s{72+2*i}, s72"); e("v_mov_b32 v2, s70")
        e(f"buffer_store_dword v2, v1, s[92:95], 0 offen offset:{4*i}")
    e("s_sub_u32 s70, s90, s88"); e("v_mov_b32 v2, s70")
    e(f"buffer_store_dword v2, v1, s[92:95], 0 offen offset:{4*n}")
    k.lab(l)
def attn():
    k = K("attn_kernel"); e = k.e
    e("s_cmp_ge_u32 s2, 256"); e(f"s_cbranch_scc1 {k.name}_end")
    if PROF: e("s_memrealtime s[88:89]")
    stamp(k, 0)
    e("s_load_dwordx2 s[8:9], s[0:1], 96")
    e("v_lshrrev_b32 v1, 6, v0")
    e("v_and_b32 v0, 63, v0")
    e("s_nop 0")
    e("v_readfirstlane_b32 s3, v1")
    e("s_and_b32 s24, s2, 7"); e("s_lshl_b32 s24, s24, 2")
    e("s_lshr_b32 s25, s2, 3"); e("s_and_b32 s25, s25, 3"); e("s_add_u32 s24, s24, s25")
    e("s_lshr_b32 s25, s2, 5")
    e("s_waitcnt lgkmcnt(0)")
    k.srd(20, 8, WS_SIZE)
    e("v_lshlrev_b32 v2, 4, v0")
    e("s_lshl_b32 s26, s25, 3"); e("s_add_u32 s26, s26, s3")
    e("s_lshl_b32 s27, s24, 6"); e("s_add_u32 s27, s27, s26"); e("s_lshl_b32 s27, s27, 10")
    QF = 4
    e(f"buffer_load_dwordx4 {vr(QF,4)}, v2, s[20:23], s27 offen")
    e("v_lshlrev_b32 v8, 2, v0")
    e("s_lshl_b32 s28, s24, 8"); e(f"s_add_u32 s28, s28, {WS_KM}")
    e("buffer_load_dword v11, v8, s[20:23], s28 offen")
    e("s_lshl_b32 s28, s24, 16")
    e("s_lshl_b32 s29, s3, 11")
    for c in range(4):
        for sec, base in ((0, WS_K), (1, WS_V)):
            for j in range(2):
                off = c*16384 + j*1024
                e(f"s_add_u32 s30, s29, {off + sec*65536}")
                e("s_mov_b32 m0, s30")
                e(f"s_add_u32 s31, s29, {off + base}"); e("s_add_u32 s31, s31, s28")
                e(f"buffer_load_dwordx4 v2, s[20:23], s31 offen lds")
    S = [16, 32]; CM = 48; O = 64; KB = [80, 84]; VB = [88, 96]; P = 104; MX = 112
    e("v_and_b32 v3, 15, v0"); e("v_lshlrev_b32 v3, 4, v3")
    e("v_lshrrev_b32 v8, 5, v0"); e("v_lshlrev_b32 v8, 8, v8"); e("v_add_u32 v3, v3, v8"); e("v_add_u32 v3, 65536, v3")
    e("v_mov_b32 v114, v3")
    e("v_and_b32 v8, 31, v0")
    e("v_cmp_eq_u32 s[32:33], 16, v8"); e("v_cmp_eq_u32 s[34:35], 20, v8")
    e("s_or_b64 s[32:33], s[32:33], s[34:35]")
    e("v_mov_b32 v9, 0x3f803f80")
    e("s_nop 0")
    e("v_cndmask_b32 v9, 0, v9, s[32:33]")
    for b in VB:
        for i in range(8): e(f"v_mov_b32 v{b+i}, v9")
    e("s_mov_b32 s36, 0x0000ffff"); e("s_mov_b32 s37, 0x0000ffff")
    e("s_waitcnt vmcnt(16)")
    e("v_mov_b32 v12, 0")
    for i in range(4): e(f"v_dot2c_f32_bf16 v12, v{QF+i}, v{QF+i}")
    for mod in ("quad_perm:[1,0,3,2]", "quad_perm:[2,3,0,1]", "row_half_mirror", "row_mirror"):
        k.nop(2)
        e(f"v_max_f32_dpp v11, v11, v11 {mod} row_mask:0xf bank_mask:0xf")
    e("v_mov_b32 v13, v11"); e("v_mov_b32 v14, v12")
    k.nop(2)
    e("v_permlane16_swap_b32 v11, v13"); e("v_permlane32_swap_b32 v12, v14")
    k.nop(2)
    e("v_max_f32 v11, v11, v13"); e("v_add_f32 v12, v12, v14")
    e("v_mov_b32 v13, v11")
    k.nop(2)
    e("v_permlane32_swap_b32 v11, v13")
    k.nop(2)
    e("v_max_f32 v11, v11, v13")
    e("v_mul_f32 v12, v12, v11"); e("v_sqrt_f32 v12, v12"); e("s_nop 0")
    e(f"v_mul_f32 v{MX}, {hex(f32bits(-1.01))}, v12")
    for i in range(16): e(f"v_mov_b32 v{CM+i}, v{MX}")
    def vread(buf, off):
        e("s_mov_b64 exec, s[36:37]")
        e(f"ds_read_b128 {vr(VB[buf],4)}, v3 offset:{off}")
        e(f"ds_read_b128 {vr(VB[buf]+4,4)}, v3 offset:{off+512}")
        e("s_mov_b64 exec, -1")
    def p2_start():
        for i in range(16): e(f"v_mov_b32 v{O+i}, 0")
        e("v_mov_b32 v10, v2"); e("v_mov_b32 v3, v114")
        e(f"ds_read_b128 {vr(KB[0],4)}, v10")
        e("s_waitcnt lgkmcnt(0)")
        e(f"v_mfma_f32_32x32x16_bf16 {vr(S[0],16)}, {vr(KB[0],4)}, {vr(QF,4)}, {vr(CM,16)}")
        e(f"ds_read_b128 {vr(KB[1],4)}, v10 offset:1024")
        vread(0, 0)
        k.nop(8)
    def p2_loop(n):
        e("s_mov_b32 s38, 0")
        l2 = k.new("P2"); k.lab(l2)
        for p in range(2):
            e("s_waitcnt lgkmcnt(2)")
            e(f"v_mfma_f32_32x32x16_bf16 {vr(S[1-p],16)}, {vr(KB[1-p],4)}, {vr(QF,4)}, {vr(CM,16)}")
            e(f"ds_read_b128 {vr(KB[p],4)}, v10 offset:{2048 + p*1024}")
            vread(1-p, 1024 + p*1024)
            for i in range(12): e(f"v_exp_f32 v{S[p]+i}, v{S[p]+i}")
            for i in range(4): e(f"v_cvt_pk_bf16_f32 v{P+i}, v{S[p]+2*i}, v{S[p]+2*i+1}")
            for i in range(12, 16): e(f"v_exp_f32 v{S[p]+i}, v{S[p]+i}")
            e("s_waitcnt lgkmcnt(3)")
            e(f"v_mfma_f32_32x32x16_bf16 {vr(O,16)}, {vr(VB[p],4)}, {vr(P,4)}, {vr(O,16)}")
            for i in range(4, 8): e(f"v_cvt_pk_bf16_f32 v{P+i}, v{S[p]+2*i}, v{S[p]+2*i+1}")
            k.nop(2)
            e(f"v_mfma_f32_32x32x16_bf16 {vr(O,16)}, {vr(VB[p]+4,4)}, {vr(P+4,4)}, {vr(O,16)}")
        e("v_add_u32 v10, 2048, v10"); e("v_add_u32 v3, 2048, v3")
        e("s_add_u32 s38, s38, 2"); e(f"s_cmp_lt_u32 s38, {n}"); e(f"s_cbranch_scc1 {l2}")
    e("s_waitcnt vmcnt(12)"); e("s_barrier")
    stamp(k, 1)
    p2_start()
    p2_loop(14)
    for c, n in ((1, 16), (2, 16), (3, 18)):
        e(f"s_waitcnt vmcnt({12-4*c})"); e("s_barrier")
        p2_loop(n)
    stamp(k, 2)
    k.nop(16)
    lep = k.new("EPI")
    e(f"v_cmp_gt_f32 vcc, {hex(f32bits(2.0**-60))}, v{O+8}")
    e("s_waitcnt lgkmcnt(0)")
    e(f"s_cbranch_vccz {lep}")
    e(f"v_mov_b32 v{MX}, 0xff800000")
    e("v_mov_b32 v10, v2")
    e(f"ds_read_b128 {vr(KB[0],4)}, v10")
    e(f"ds_read_b128 {vr(KB[1],4)}, v10 offset:1024")
    e("s_waitcnt lgkmcnt(1)")
    e(f"v_mfma_f32_32x32x16_bf16 {vr(S[0],16)}, {vr(KB[0],4)}, {vr(QF,4)}, 0")
    e(f"ds_read_b128 {vr(KB[0],4)}, v10 offset:2048")
    e("s_mov_b32 s38, 0")
    l1 = k.new("P1"); k.lab(l1)
    e("s_waitcnt lgkmcnt(1)")
    e(f"v_mfma_f32_32x32x16_bf16 {vr(S[1],16)}, {vr(KB[1],4)}, {vr(QF,4)}, 0")
    e(f"ds_read_b128 {vr(KB[1],4)}, v10 offset:3072")
    k.nop(10)
    for i in range(8): e(f"v_max3_f32 v{MX}, v{S[0]+2*i}, v{S[0]+2*i+1}, v{MX}")
    e("s_waitcnt lgkmcnt(1)")
    e(f"v_mfma_f32_32x32x16_bf16 {vr(S[0],16)}, {vr(KB[0],4)}, {vr(QF,4)}, 0")
    e(f"ds_read_b128 {vr(KB[0],4)}, v10 offset:4096")
    e("v_add_u32 v10, 2048, v10")
    k.nop(9)
    for i in range(8): e(f"v_max3_f32 v{MX}, v{S[1]+2*i}, v{S[1]+2*i+1}, v{MX}")
    e("s_add_u32 s38, s38, 2"); e("s_cmp_lt_u32 s38, 64"); e(f"s_cbranch_scc1 {l1}")
    e(f"v_mov_b32 v{MX+1}, v{MX}")
    k.nop(2)
    e(f"v_permlane32_swap_b32 v{MX}, v{MX+1}")
    k.nop(2)
    e(f"v_max_f32 v{MX}, v{MX}, v{MX+1}")
    e(f"v_sub_f32 v{MX}, 0, v{MX}")
    for i in range(16): e(f"v_mov_b32 v{CM+i}, v{MX}")
    e("s_waitcnt lgkmcnt(0)")
    k.nop(4)
    p2_start()
    p2_loop(64)
    k.nop(16)
    k.lab(lep)
    e(f"v_rcp_f32 v8, v{O+8}")
    k.nop(1)
    for i in range(8): e(f"v_mul_f32 v{O+i}, v{O+i}, v8")
    for i in range(4): e(f"v_cvt_pk_bf16_f32 v{P+i}, v{O+2*i}, v{O+2*i+1}")
    e(f"s_add_u32 s27, s27, {WS_O}")
    e(f"buffer_store_dwordx4 {vr(P,4)}, v2, s[20:23], s27 offen")
    e("s_waitcnt lgkmcnt(0)")
    stamp(k, 3)
    stamp_out(k, 4)
    return k, 128, (256, 512, 131072)

KERNELS = {"attn": attn}

def gemm2(k=None):
    if k is None:
        k = K("gemm2_kernel")
        k.e("s_cmp_ge_u32 s2, 256"); k.e(f"s_cbranch_scc1 {k.name}_end")
    e = k.e
    if PROF: e("s_memrealtime s[88:89]")
    stamp(k, 0)
    e("s_load_dwordx2 s[6:7], s[0:1], 72")
    e("s_load_dwordx2 s[8:9], s[0:1], 96")
    e("s_load_dwordx2 s[10:11], s[0:1], 80")
    e("v_lshrrev_b32 v1, 6, v0")
    e("v_and_b32 v0, 63, v0")
    e("s_nop 0")
    e("v_readfirstlane_b32 s3, v1")
    e("s_and_b32 s26, s2, 7"); e("s_lshr_b32 s27, s2, 3")
    e("s_lshr_b32 s24, s26, 1"); e("s_lshl_b32 s24, s24, 3"); e("s_and_b32 s28, s27, 7"); e("s_add_u32 s24, s24, s28")
    e("s_and_b32 s25, s26, 1"); e("s_lshl_b32 s25, s25, 2"); e("s_lshr_b32 s28, s27, 3"); e("s_add_u32 s25, s25, s28")
    e("s_and_b32 s26, s3, 1")
    e("s_lshr_b32 s27, s3, 1")
    e("s_waitcnt lgkmcnt(0)")
    k.srd(12, 10, 2048*1024*2); k.srd(16, 6, 512*512*2); k.srd(20, 8, WS_SIZE)
    e("v_lshrrev_b32 v3, 3, v0")
    e("v_and_b32 v4, 2, v3"); e("v_lshlrev_b32 v4, 1, v4")
    e("v_and_b32 v5, 7, v0"); e("v_xor_b32 v5, v5, v4"); e("v_lshlrev_b32 v5, 4, v5")
    e("v_and_b32 v6, 3, v3")
    e("v_and_b32 v7, 4, v3"); e("v_lshlrev_b32 v7, 1, v7"); e("v_add_u32 v6, v6, v7")
    e("v_lshlrev_b32 v6, 10, v6"); e("v_add_u32 v4, v6, v5")
    e("s_lshl_b32 s28, s25, 7")
    OF = 128
    e("v_lshlrev_b32 v2, 4, v0")
    e("s_lshl_b32 s29, s24, 1"); e("s_add_u32 s29, s29, s26"); e("s_lshl_b32 s29, s29, 10"); e(f"s_add_u32 s29, s29, {WS_O}")
    for j in range(16):
        e(f"s_lshl_b32 s30, s3, 4"); e(f"s_add_u32 s30, s30, {j}")
        e("s_lshl_b32 s31, s30, 10"); e("s_mov_b32 m0, s31")
        e("s_lshr_b32 s32, s30, 1"); e("s_lshl_b32 s32, s32, 14")
        e("s_and_b32 s33, s30, 1"); e("s_lshl_b32 s33, s33, 12"); e("s_add_u32 s32, s32, s33"); e("s_add_u32 s32, s32, s28")
        e("buffer_load_dwordx4 v4, s[16:19], s32 offen lds")
    for s in range(32):
        e(f"buffer_load_dwordx4 {vr(OF+4*s,4)}, v2, s[20:23], s29 offen")
        if s < 31: e("s_add_u32 s29, s29, 65536")
    e("v_lshrrev_b32 v7, 5, v0"); e("v_lshlrev_b32 v7, 3, v7")
    e("v_and_b32 v8, 15, v0"); e("v_lshrrev_b32 v8, 2, v8"); e("v_add_u32 v7, v7, v8"); e("v_lshlrev_b32 v7, 7, v7")
    e("v_lshrrev_b32 v8, 1, v8"); e("v_xor_b32 v8, s27, v8"); e("v_lshlrev_b32 v8, 6, v8"); e("v_add_u32 v7, v7, v8")
    e("v_and_b32 v8, 1, v0"); e("v_lshlrev_b32 v8, 5, v8"); e("v_add_u32 v7, v7, v8")
    e("v_lshrrev_b32 v8, 4, v0"); e("v_and_b32 v8, 1, v8"); e("v_lshlrev_b32 v8, 4, v8"); e("v_add_u32 v7, v7, v8")
    e("v_lshrrev_b32 v8, 1, v0"); e("v_and_b32 v8, 1, v8"); e("v_lshlrev_b32 v8, 3, v8"); e("v_add_u32 v7, v7, v8")
    ACC = 16; WF = 32
    for i in range(16): e(f"v_mov_b32 v{ACC+i}, 0")
    stamp(k, 1)
    e("s_waitcnt vmcnt(32)"); e("s_barrier")
    stamp(k, 2)
    def wread(s, pb):
        for hs in range(2):
            e(f"ds_read_b64_tr_b16 {vr(WF+4*pb+2*hs,2)}, v7 offset:{s*2048+hs*512}")
    NB = 4
    for s in range(NB-1): wread(s, s % NB)
    for s in range(32):
        if s + NB - 1 < 32:
            wread(s+NB-1, (s+NB-1) % NB); e(f"s_waitcnt lgkmcnt({2*(NB-1)})")
        else:
            e(f"s_waitcnt lgkmcnt({2*(31-s)})")
        e(f"s_waitcnt vmcnt({31-s})")
        e(f"v_mfma_f32_32x32x16_bf16 {vr(ACC,16)}, {vr(WF+4*(s%NB),4)}, {vr(OF+4*s,4)}, {vr(ACC,16)}")
    k.nop(16)
    for i in range(8): e(f"v_cvt_pk_bf16_f32 v{48+i}, v{ACC+2*i}, v{ACC+2*i+1}")
    e("s_lshl_b32 s30, s24, 6"); e("s_lshl_b32 s31, s26, 5"); e("s_add_u32 s30, s30, s31")
    e("v_and_b32 v3, 31, v0"); e("v_add_u32 v3, s30, v3"); e("v_lshlrev_b32 v3, 11, v3")
    e("v_lshrrev_b32 v5, 5, v0"); e("v_lshlrev_b32 v5, 5, v5"); e("v_add_u32 v3, v3, v5")
    e("s_lshl_b32 s31, s27, 6"); e("s_add_u32 s31, s31, s28"); e("s_add_u32 s31, s31, 1024")
    e("buffer_store_dwordx4 v[48:51], v3, s[12:15], s31 offen")
    e("buffer_store_dwordx4 v[52:55], v3, s[12:15], s31 offen offset:16")
    stamp(k, 3)
    if PROF: e("s_waitcnt vmcnt(0)")
    stamp(k, 4)
    stamp_out(k, 5, 64)
    return k, 256, (256, 256, 65536)

KERNELS["gemm2"] = gemm2

def ssm():
    k = K("ssm_kernel"); e = k.e
    UT = 1024; UTP = 4640; KT = 10304; KLIN = 22592; KC = 26816; KCP = 4288; LDS = 61120
    P = 2063
    e("s_cmp_ge_u32 s2, 256"); e(f"s_cbranch_scc1 {k.name}_end")
    if PROF: e("s_memrealtime s[88:89]")
    stamp(k, 0)
    e("s_load_dwordx4 s[56:59], s[0:1], 0")
    e("s_load_dwordx4 s[60:63], s[0:1], 16")
    e("s_load_dwordx4 s[64:67], s[0:1], 32")
    e("s_load_dwordx2 s[68:69], s[0:1], 48")
    e("s_load_dwordx2 s[70:71], s[0:1], 80")
    e("v_mov_b32 v1, v0")
    e("v_lshrrev_b32 v2, 6, v0")
    e("v_and_b32 v0, 63, v0")
    e("s_nop 0")
    e("v_readfirstlane_b32 s3, v2")
    e("s_and_b32 s24, s2, 7"); e("s_lshl_b32 s24, s24, 5"); e("s_lshr_b32 s25, s2, 3"); e("s_add_u32 s24, s24, s25")
    e("s_lshl_b32 s24, s24, 1")
    e("s_lshl_b32 s25, s24, 1")
    e("s_waitcnt lgkmcnt(0)")
    k.srd(12, 56, 2*MB); k.srd(16, 58, 131072); k.srd(20, 60, 131072); k.srd(40, 62, 131072); k.srd(44, 64, 131072); k.srd(48, 70, 4*MB)
    e("s_add_u32 s66, s66, s25"); e("s_addc_u32 s67, s67, 0")
    e("s_add_u32 s68, s68, s25"); e("s_addc_u32 s69, s69, 0")
    e("s_load_dword s52, s[66:67], 0"); e("s_load_dword s54, s[68:69], 0")
    e("s_lshr_b32 s26, s3, 1")
    e("s_and_b32 s27, s3, 1")
    e("s_add_u32 s28, s24, s26"); e("s_lshl_b32 s28, s28, 8"); e("s_lshl_b32 s29, s27, 7"); e("s_add_u32 s28, s28, s29")
    e("v_lshrrev_b32 v5, 4, v0"); e("v_lshlrev_b32 v5, 5, v5"); e("v_add_u32 v5, s28, v5")
    for base, srd in ((64, 16), (72, 20), (80, 40), (88, 44)):
        e(f"buffer_load_dwordx4 {vr(base,4)}, v5, s[{srd}:{srd+3}], 0 offen")
        e(f"buffer_load_dwordx4 {vr(base+4,4)}, v5, s[{srd}:{srd+3}], 0 offen offset:16")
    e("v_lshlrev_b32 v3, 13, v1"); e("v_add_u32 v3, s25, v3"); e("v_add_u32 v4, 4096, v3")
    for j in range(8):
        e(f"buffer_load_dword v{200+j}, v{3 if j<4 else 4}, s[12:15], 0 offen offset:{(j%4)*1024}")
    e("v_and_b32 v10, 15, v0")
    e("v_lshlrev_b32 v6, 3, v10"); e("v_cvt_f32_u32 v6, v6")
    def zhi(dst, z):
        e(f"v_lshrrev_b32 v12, 3, v{z}"); e("v_lshlrev_b32 v12, 7, v12"); e(f"v_and_b32 v13, 7, v{z}"); e("v_add_u32 v12, v12, v13")
        e(f"v_cvt_f32_u32 v{dst}, v12")
    zhi(7, 10)
    e("v_lshlrev_b32 v11, 1, v10"); e("v_add_u32 v11, 16, v11"); e("v_lshlrev_b32 v14, 2, v10")
    e("v_cmp_gt_u32 vcc, 8, v10"); e("s_nop 1"); e("v_cndmask_b32 v11, v14, v11, vcc")
    zhi(8, 11)
    e("v_lshlrev_b32 v11, 3, v10"); e("v_add_u32 v11, 64, v11")
    zhi(9, 11)
    for i in range(4): e(f"v_mov_b32 v{16+i}, 0")
    e("v_lshlrev_b32 v12, 4, v1")
    e("v_cmp_gt_u32 vcc, 32, v1"); e("s_and_saveexec_b64 s[30:31], vcc")
    e(f"ds_write_b128 v12, v[16:19] offset:{UT}"); e(f"ds_write_b128 v12, v[16:19] offset:{UT+UTP}")
    e("s_mov_b64 exec, s[30:31]")
    e("v_cmp_gt_u32 vcc, 2, v1"); e("s_and_saveexec_b64 s[30:31], vcc")
    e(f"ds_write_b128 v12, v[16:19] offset:{KLIN}")
    e(f"ds_write_b128 v12, v[16:19] offset:{UT+4608}"); e(f"ds_write_b128 v12, v[16:19] offset:{UT+UTP+4608}")
    e("s_mov_b64 exec, s[30:31]")
    e("v_cmp_gt_u32 vcc, 6, v1"); e("s_and_saveexec_b64 s[30:31], vcc")
    e(f"ds_write_b128 v12, v[16:19] offset:{KLIN+258*16}")
    e("s_mov_b64 exec, s[30:31]")
    e("s_waitcnt lgkmcnt(0)")
    e("s_lshl_b32 s53, s52, 16"); e("s_and_b32 s55, s52, 0xffff0000"); e("s_cmp_eq_u32 s26, 0"); e("s_cselect_b32 s53, s53, s55")
    e("v_mov_b32 v15, s53"); e(f"v_mul_f32 v15, {hex(f32bits(LOG2E))}, v15"); e("v_exp_f32 v15, v15"); e("s_nop 0")
    e("v_cvt_pk_bf16_f32 v15, v15, v15"); e("v_lshlrev_b32 v15, 16, v15")
    e("s_waitcnt vmcnt(8)")
    stamp(k, 1)
    AR2, AI2, C2R, C2I = 96, 112, 128, 144
    e(f"s_mov_b32 s34, {hex(f32bits(LOG2E))}"); e(f"s_mov_b32 s35, {hex(f32bits(-LOG2E))}"); e(f"s_mov_b32 s36, {hex(f32bits(1/(2*3.141592653589793)))}")
    e("v_add_f32 v16, v15, v15")
    for t in range(16):
        def unp(dst, src):
            if t & 1: e(f"v_and_b32 v{dst}, 0xffff0000, v{src + t//2}")
            else: e(f"v_lshlrev_b32 v{dst}, 16, v{src + t//2}")
        unp(AR2+t, 64); unp(AI2+t, 72); unp(C2R+t, 80); unp(C2I+t, 88)
        e(f"v_mul_f32 v{AR2+t}, s34, v{AR2+t}")
        e(f"v_mul_f32 v{AI2+t}, v{AI2+t}, v15")
        e(f"v_exp_f32 v{AR2+t}, v{AR2+t}")
        e(f"v_mul_f32 v{C2R+t}, v{C2R+t}, v16")
        e(f"v_mul_f32 v{C2I+t}, v{C2I+t}, v16")
        e(f"v_cvt_pk_bf16_f32 v{AR2+t}, v{AR2+t}, v{AR2+t}")
        e(f"v_mul_f32 v{AI2+t}, s36, v{AI2+t}")
        e(f"v_lshlrev_b32 v{AR2+t}, 16, v{AR2+t}")
        e(f"v_mul_f32 v{AR2+t}, v{AR2+t}, v15")
        e(f"v_mul_f32 v{AR2+t}, s35, v{AR2+t}")
    stamp(k, 2)
    ACC = 160
    for i in range(12): e(f"v_mov_b32 v{ACC+i}, 0")
    RB = [48, 56]
    def mf(p, j):
        mb = j % 3; part = j // 3
        e(f"v_mfma_f32_16x16x4_f32 {vr(ACC+4*mb,4)}, v{RB[p]+3*part+mb}, v{RB[p]+6+part}, {vr(ACC+4*mb,4)}")
    for t in range(16):
        p = t & 1; prev = (t > 0)
        for c in range(4):
            e(f"v_mul_f32 v{20+c}, v{AR2+t}, v{6+c}")
            e(f"v_mul_f32 v{24+c}, v{AI2+t}, v{6+c}")
        if prev: mf(1-p, 0)
        for c in range(4):
            e(f"v_exp_f32 v{20+c}, v{20+c}")
            e(f"v_fract_f32 v{24+c}, v{24+c}")
        if prev: mf(1-p, 1)
        for c in range(2):
            e(f"v_sin_f32 v{28+c}, v{24+c}")
            e(f"v_cos_f32 v{32+c}, v{24+c}")
        if prev: mf(1-p, 2)
        for c in range(2, 4):
            e(f"v_sin_f32 v{28+c}, v{24+c}")
            e(f"v_cos_f32 v{32+c}, v{24+c}")
        if prev: mf(1-p, 3)
        else: e("s_nop 0")
        e(f"v_mul_f32 v36, v20, v32"); e(f"v_mul_f32 v40, v20, v28")
        for c in range(1, 4):
            e(f"v_mul_f32 v{RB[p]+c-1}, v{20+c}, v{32+c}")
        if prev: mf(1-p, 4)
        for c in range(1, 4):
            e(f"v_mul_f32 v{RB[p]+3+c-1}, v{20+c}, v{28+c}")
        e(f"v_mul_f32 v44, v{C2I+t}, v40")
        e(f"v_mul_f32 v45, v{C2I+t}, v36")
        if prev: mf(1-p, 5)
        e(f"v_fma_f32 v{RB[p]+6}, v{C2R+t}, v36, -v44")
        e(f"v_fma_f32 v{RB[p]+7}, -v{C2R+t}, v40, -v45")
    e("s_nop 1")
    for j in range(6): mf(1, j)
    stamp(k, 4)
    e("s_mov_b32 s32, 0x05040100"); e("s_mov_b32 s33, 0x07060302")
    e("v_lshlrev_b32 v12, 4, v1")
    e("s_waitcnt vmcnt(0)")
    for q in range(4):
        e(f"v_perm_b32 v{208+q}, v{201+2*q}, v{200+2*q}, s32")
        e(f"v_perm_b32 v{212+q}, v{201+2*q}, v{200+2*q}, s33")
    e(f"ds_write_b128 v12, v[208:211] offset:{UT+512}"); e(f"ds_write_b128 v12, v[212:215] offset:{UT+UTP+512}")
    k.nop(16)
    e("v_lshrrev_b32 v12, 4, v0"); e("v_lshlrev_b32 v12, 8, v12"); e("v_lshlrev_b32 v13, 2, v10"); e("v_add_u32 v12, v12, v13")
    e("s_mul_i32 s37, s3, 3072"); e(f"s_add_u32 s37, s37, {KT}"); e("v_add_u32 v12, s37, v12")
    for mb in range(3):
        for r in range(4):
            e(f"ds_write_b32 v12, v{ACC+4*mb+r} offset:{mb*1024+r*64}")
    stamp(k, 5)
    IDX = 176
    e("v_lshlrev_b32 v12, 3, v1"); e("v_sub_u32 v12, 2047, v12")
    for m in range(8):
        e(f"v_subrev_u32 v13, {m}, v12")
        e("v_cvt_f32_u32 v13, v13")
        e("v_cvt_pk_bf16_f32 v13, v13, v13"); e("v_lshlrev_b32 v13, 16, v13"); e("v_cvt_u32_f32 v13, v13")
        e("v_lshrrev_b32 v14, 7, v13"); e("v_lshlrev_b32 v14, 3, v14"); e("v_and_b32 v16, 7, v13"); e("v_or_b32 v14, v14, v16")
        e("v_or_b32 v16, 8, v14"); e("v_ffbh_u32 v16, v16"); e("v_sub_u32 v16, 28, v16")
        e("v_lshrrev_b32 v14, v16, v14"); e("v_lshlrev_b32 v16, 3, v16"); e("v_add_u32 v14, v14, v16")
        e("v_lshrrev_b32 v16, 3, v13"); e("v_and_b32 v16, 15, v16")
        e("v_lshlrev_b32 v14, 4, v14"); e("v_add_u32 v14, v14, v16"); e(f"v_lshlrev_b32 v{IDX+m}, 2, v14")
    e("s_waitcnt lgkmcnt(0)"); e("s_barrier")
    stamp(k, 3)
    e("v_and_b32 v10, 15, v0"); e("v_lshrrev_b32 v11, 4, v0")
    e("v_lshlrev_b32 v12, 3, v11"); e("v_sub_u32 v12, v12, v10"); e(f"v_add_u32 v12, {P}, v12")
    e("v_and_b32 v13, 7, v12"); e("v_sub_u32 v12, v12, v13")
    e(f"s_movk_i32 s38, {KCP}"); e("v_mul_lo_u32 v13, v13, s38"); e("v_lshlrev_b32 v12, 1, v12"); e("v_add_u32 v12, v12, v13")
    e(f"v_add_u32 v184, {KC - 960}, v12")
    e("v_lshlrev_b32 v12, 5, v10"); e("v_lshlrev_b32 v13, 4, v11"); e("v_add_u32 v12, v12, v13")
    e(f"v_add_u32 v185, {UT + 512 - 960}, v12")
    e("v_lshlrev_b32 v186, 4, v1")
    RES = 188
    for ch in range(2):
        for m in range(8):
            e(f"ds_read_b32 v{16+m}, v{IDX+m} offset:{KT + (2*ch)*3072}")
            e(f"ds_read_b32 v{24+m}, v{IDX+m} offset:{KT + (2*ch+1)*3072}")
        e("s_waitcnt lgkmcnt(0)")
        for m in range(8): e(f"v_add_f32 v{16+m}, v{16+m}, v{24+m}")
        for q in range(4): e(f"v_cvt_pk_bf16_f32 v{32+q}, v{16+2*q}, v{17+2*q}")
        e(f"ds_write_b128 v186, v[32:35] offset:{KLIN+32}")
        e("s_waitcnt lgkmcnt(0)"); e("s_barrier")
        def copies(addr):
            e(f"ds_read_b128 v[16:19], v{addr} offset:{KLIN}"); e(f"ds_read_b128 v[20:23], v{addr} offset:{KLIN+16}")
            e("s_waitcnt lgkmcnt(0)")
            for q in range(1, 7): e(f"v_mov_b32 v{25+q}, v{16+q}")
            for q in range(7):
                e(f"v_alignbit_b32 v{32+q}, v{17+q}, v{16+q}, 16")
            for q in range(1, 7): e(f"v_mov_b32 v{41+q}, v{32+q}")
            for s in range(8):
                h = s // 2
                if s % 2 == 0: src = (16+h) if h % 2 == 0 else (25+h)
                else: src = (32+h) if h % 2 == 0 else (41+h)
                e(f"ds_write_b128 v{addr}, {vr(src,4)} offset:{KC + s*KCP}")
        copies(186)
        e("v_cmp_gt_u32 vcc, 6, v1"); e("s_and_saveexec_b64 s[30:31], vcc")
        e("v_add_u32 v187, 4096, v186")
        copies(187)
        e("s_mov_b64 exec, s[30:31]")
        e("s_waitcnt lgkmcnt(0)"); e("s_barrier")
        if ch == 1: stamp(k, 6)
        for blk in range(2):
            if blk == 0: e("s_sub_u32 s39, 7, s3")
            else: e("s_mov_b32 s39, s3")
            acc = RES + 8*ch + 4*blk
            for i in range(4): e(f"v_mov_b32 v{acc+i}, 0")
            e("v_mov_b32 v48, v184")
            e("s_lshl_b32 s40, s39, 9"); e(f"s_add_u32 s40, s40, {ch*UTP}"); e("v_add_u32 v49, s40, v185")
            FB = 64; GB = 80
            def rd(slot, stepoff):
                off = 960 - 64*stepoff
                e(f"ds_read_b128 {vr(FB+4*slot,4)}, v48 offset:{off}")
                e(f"ds_read_b128 {vr(GB+4*slot,4)}, v49 offset:{off}")
            for q in range(4): rd(q, q)
            e("s_mov_b32 s41, 0")
            lc = k.new("CV")
            k.lab(lc)
            for q in range(8):
                e("s_waitcnt lgkmcnt(6)")
                e(f"v_mfma_f32_16x16x32_bf16 {vr(acc,4)}, {vr(FB+4*(q%4),4)}, {vr(GB+4*(q%4),4)}, {vr(acc,4)}")
                rd(q % 4, q + 4)
            e("v_subrev_u32 v48, 512, v48"); e("v_subrev_u32 v49, 512, v49")
            e("s_add_u32 s41, s41, 1"); e("s_cmp_le_u32 s41, s39"); e(f"s_cbranch_scc1 {lc}")
            e("s_waitcnt lgkmcnt(6)")
            e(f"v_mfma_f32_16x16x32_bf16 {vr(acc,4)}, {vr(FB,4)}, {vr(GB,4)}, {vr(acc,4)}")
            e("s_waitcnt lgkmcnt(0)")
        if ch == 0: e("s_barrier")
    stamp(k, 7)
    k.nop(16)
    e("s_lshl_b32 s42, s54, 16"); e("s_and_b32 s43, s54, 0xffff0000")
    e("s_movk_i32 s44, 4096")
    for blk in range(2):
        if blk == 0: e("s_sub_u32 s39, 7, s3")
        else: e("s_mov_b32 s39, s3")
        e("v_lshlrev_b32 v12, 4, v10"); e("v_lshlrev_b32 v13, 2, v11"); e("v_add_u32 v12, v12, v13")
        e("s_lshl_b32 s40, s39, 8"); e("v_add_u32 v12, s40, v12")
        e("v_lshlrev_b32 v13, 1, v12")
        e(f"ds_read_b64 v[16:17], v13 offset:{UT+512}"); e(f"ds_read_b64 v[18:19], v13 offset:{UT+UTP+512}")
        e("v_lshlrev_b32 v14, 11, v12"); e("v_add_u32 v14, s25, v14")
        e("s_waitcnt lgkmcnt(0)")
        for r in range(4):
            for ch in range(2):
                src = 16 + 2*ch + r//2
                if r & 1: e(f"v_and_b32 v{20+ch}, 0xffff0000, v{src}")
                else: e(f"v_lshlrev_b32 v{20+ch}, 16, v{src}")
                e(f"v_mul_f32 v{20+ch}, s{42+ch}, v{20+ch}")
            e(f"v_cvt_pk_bf16_f32 v22, v20, v21")
            e(f"v_cvt_pk_bf16_f32 v23, v{RES+4*blk+r}, v{RES+8+4*blk+r}")
            e("v_lshlrev_b32 v24, 16, v22"); e("v_and_b32 v25, 0xffff0000, v22")
            e("v_lshlrev_b32 v26, 16, v23"); e("v_and_b32 v27, 0xffff0000, v23")
            e("v_add_f32 v24, v24, v26"); e("v_add_f32 v25, v25, v27")
            e(f"v_cvt_pk_bf16_f32 v{28+r}, v24, v25")
            so = "0" if r < 2 else "s44"
            e(f"buffer_store_dword v{28+r}, v14, s[48:51], {so} offen offset:{(r%2)*2048}")
    if PROF: e("s_waitcnt vmcnt(0)")
    stamp_out(k, 8)
    return k, 216, (256, 256, LDS)

KERNELS["ssm"] = ssm
```

```python
from gen import K, vr, f32bits, MB, LOG2E, WS_UT, WS_KL, WS_SIZE
import gen_more as GM

PREP_LDS = 12288 + 12288 + 9216
def prep_body(k):
    e = k.e; stamp = GM.stamp; PROF = GM.PROF
    KT = 0; TT = 12288
    e("s_load_dwordx4 s[56:59], s[0:1], 0")
    e("s_load_dwordx4 s[60:63], s[0:1], 16")
    e("s_load_dwordx4 s[64:67], s[0:1], 32")
    e("s_load_dwordx2 s[70:71], s[0:1], 96")
    e("v_mov_b32 v1, v0")
    e("v_lshrrev_b32 v2, 6, v0")
    e("v_and_b32 v0, 63, v0")
    e("s_nop 0")
    e("v_readfirstlane_b32 s3, v2")
    e("s_and_b32 s24, s2, 7"); e("s_lshl_b32 s24, s24, 5"); e("s_lshr_b32 s25, s2, 3"); e("s_add_u32 s24, s24, s25")
    e("s_lshl_b32 s24, s24, 1")
    e("s_lshl_b32 s25, s24, 1")
    e("s_waitcnt lgkmcnt(0)")
    k.srd(12, 56, 2*MB); k.srd(16, 58, 131072); k.srd(20, 60, 131072); k.srd(40, 62, 131072); k.srd(44, 64, 131072); k.srd(48, 70, WS_SIZE)
    e("s_add_u32 s66, s66, s25"); e("s_addc_u32 s67, s67, 0")
    e("s_load_dword s52, s[66:67], 0")
    e("s_lshr_b32 s26, s3, 1"); e("s_and_b32 s27, s3, 1")
    e("s_add_u32 s28, s24, s26"); e("s_lshl_b32 s28, s28, 8"); e("s_lshl_b32 s29, s27, 7"); e("s_add_u32 s28, s28, s29")
    e("v_lshrrev_b32 v5, 4, v0"); e("v_lshlrev_b32 v5, 5, v5"); e("v_add_u32 v5, s28, v5")
    for base, srd in ((64, 16), (72, 20), (80, 40), (88, 44)):
        e(f"buffer_load_dwordx4 {vr(base,4)}, v5, s[{srd}:{srd+3}], 0 offen")
        e(f"buffer_load_dwordx4 {vr(base+4,4)}, v5, s[{srd}:{srd+3}], 0 offen offset:16")
    e("s_lshr_b32 s30, s2, 3"); e("s_and_b32 s31, s2, 7")
    e("v_lshrrev_b32 v3, 2, v1"); e("s_lshl_b32 s32, s30, 6"); e("v_add_u32 v4, s32, v3"); e("v_lshlrev_b32 v4, 10, v4")
    e("v_and_b32 v16, 3, v1"); e("v_lshlrev_b32 v16, 5, v16"); e("v_add_u32 v4, v4, v16")
    e("s_lshl_b32 s32, s31, 7")
    e("buffer_load_dwordx4 v[200:203], v4, s[12:15], s32 offen")
    e("buffer_load_dwordx4 v[204:207], v4, s[12:15], s32 offen offset:16")
    e("v_mul_u32_u24 v3, 192, v3"); e("v_add_u32 v3, v3, v16")
    e("v_and_b32 v14, 15, v0")
    e("v_lshlrev_b32 v6, 3, v14"); e("v_cvt_f32_u32 v6, v6"); e("v_mov_b32 v7, v6")
    def zhi(dst, z):
        e(f"v_lshrrev_b32 v16, 3, v{z}"); e("v_lshlrev_b32 v16, 7, v16"); e(f"v_and_b32 v17, 7, v{z}"); e("v_add_u32 v16, v16, v17")
        e(f"v_cvt_f32_u32 v{dst}, v16"); e(f"v_mov_b32 v{dst+1}, v{dst}")
    zhi(8, 14)
    e("v_lshlrev_b32 v15, 1, v14"); e("v_add_u32 v15, 16, v15"); e("v_lshlrev_b32 v18, 2, v14")
    e("v_cmp_gt_u32 vcc, 8, v14"); e("s_nop 1"); e("v_cndmask_b32 v15, v18, v15, vcc")
    zhi(10, 15)
    e("v_lshlrev_b32 v15, 3, v14"); e("v_add_u32 v15, 64, v15")
    zhi(12, 15)
    e("v_lshlrev_b32 v186, 4, v1")
    IDX = 176
    e("v_lshlrev_b32 v20, 3, v1"); e("v_sub_u32 v20, 2047, v20")
    for m in range(8):
        e(f"v_subrev_u32 v21, {m}, v20")
        e("v_cvt_f32_u32 v21, v21")
        e("v_cvt_pk_bf16_f32 v21, v21, v21"); e("v_lshlrev_b32 v21, 16, v21"); e("v_cvt_u32_f32 v21, v21")
        e("v_lshrrev_b32 v22, 7, v21"); e("v_lshlrev_b32 v22, 3, v22"); e("v_and_b32 v23, 7, v21"); e("v_or_b32 v22, v22, v23")
        e("v_or_b32 v23, 8, v22"); e("v_ffbh_u32 v23, v23"); e("v_sub_u32 v23, 28, v23")
        e("v_lshrrev_b32 v22, v23, v22"); e("v_lshlrev_b32 v23, 3, v23"); e("v_add_u32 v22, v22, v23")
        e("v_lshrrev_b32 v23, 3, v21"); e("v_and_b32 v23, 15, v23")
        e("v_lshlrev_b32 v22, 4, v22"); e("v_add_u32 v22, v22, v23"); e(f"v_lshlrev_b32 v{IDX+m}, 2, v22")
    e("s_waitcnt lgkmcnt(0)")
    e("s_lshl_b32 s53, s52, 16"); e("s_and_b32 s55, s52, 0xffff0000"); e("s_cmp_eq_u32 s26, 0"); e("s_cselect_b32 s53, s53, s55")
    e("v_mov_b32 v15, s53"); e(f"v_mul_f32 v15, {hex(f32bits(LOG2E))}, v15"); e("v_exp_f32 v15, v15"); e("s_nop 0")
    e("v_cvt_pk_bf16_f32 v15, v15, v15"); e("v_lshlrev_b32 v15, 16, v15")
    e(f"s_mov_b32 s34, {hex(f32bits(LOG2E))}"); e(f"s_mov_b32 s35, {hex(f32bits(-LOG2E))}"); e(f"s_mov_b32 s36, {hex(f32bits(1/(2*3.141592653589793)))}")
    e("v_add_f32 v16, v15, v15")
    e("s_waitcnt vmcnt(0)")
    e(f"ds_write_b128 v3, v[200:203] offset:{TT}"); e(f"ds_write_b128 v3, v[204:207] offset:{TT+16}")
    stamp(k, 1)
    AP, CP = 96, 128
    for t in range(16):
        def unp(dst, src):
            if t & 1: e(f"v_and_b32 v{dst}, 0xffff0000, v{src + t//2}")
            else: e(f"v_lshlrev_b32 v{dst}, 16, v{src + t//2}")
        a, b, c, d = AP+2*t, AP+2*t+1, CP+2*t, CP+2*t+1
        unp(a, 64); unp(b, 72); unp(c, 80); unp(d, 88)
        e(f"v_mul_f32 v{a}, s34, v{a}"); e(f"v_mul_f32 v{b}, v{b}, v15"); e(f"v_exp_f32 v{a}, v{a}")
        e(f"v_mul_f32 v{c}, v{c}, v16"); e(f"v_mul_f32 v{d}, v{d}, v16")
        e(f"v_cvt_pk_bf16_f32 v{a}, v{a}, v{a}"); e(f"v_mul_f32 v{b}, s36, v{b}")
        e(f"v_lshlrev_b32 v{a}, 16, v{a}"); e(f"v_mul_f32 v{a}, v{a}, v15"); e(f"v_mul_f32 v{a}, s35, v{a}")
    e("s_waitcnt lgkmcnt(0)"); e("s_barrier")
    stamp(k, 2)
    e("v_lshrrev_b32 v20, 2, v14"); e("s_lshl_b32 s37, s3, 4"); e("v_add_u32 v20, s37, v20"); e("v_mul_u32_u24 v20, 192, v20")
    e("v_lshrrev_b32 v21, 4, v0"); e("v_lshlrev_b32 v21, 5, v21"); e("v_add_u32 v20, v20, v21")
    e("v_and_b32 v21, 3, v0"); e("v_lshlrev_b32 v21, 3, v21"); e("v_add_u32 v20, v20, v21")
    for rho in range(2):
        for hs in range(2):
            e(f"ds_read_b64_tr_b16 v[{200+4*rho+2*hs}:{201+4*rho+2*hs}], v20 offset:{TT + (8*rho+4*hs)*192}")
    T2 = TT + 12288
    e("v_mul_u32_u24 v21, 144, v0"); e("s_lshl_b32 s38, s3, 5"); e("v_add_u32 v21, s38, v21")
    e("s_waitcnt lgkmcnt(0)")
    e(f"ds_write_b128 v21, v[200:203] offset:{T2}"); e(f"ds_write_b128 v21, v[204:207] offset:{T2+16}")
    e("s_waitcnt lgkmcnt(0)"); e("s_barrier")
    e("v_lshrrev_b32 v20, 2, v1"); e("v_mul_u32_u24 v21, 144, v20"); e("v_and_b32 v22, 3, v1"); e("v_lshlrev_b32 v22, 5, v22"); e("v_add_u32 v21, v21, v22")
    e(f"ds_read_b128 v[200:203], v21 offset:{T2}"); e(f"ds_read_b128 v[204:207], v21 offset:{T2+16}")
    e("v_lshlrev_b32 v20, 12, v20"); e("v_add_u32 v21, v20, v22")
    e("s_lshl_b32 s37, s31, 18"); e("s_lshl_b32 s38, s30, 7"); e("s_add_u32 s37, s37, s38")
    e(f"s_add_u32 s37, s37, {WS_UT}")
    e("s_waitcnt lgkmcnt(0)")
    e("buffer_store_dwordx4 v[200:203], v21, s[48:51], s37 offen")
    e("buffer_store_dwordx4 v[204:207], v21, s[48:51], s37 offen offset:16")
    ACC = 160
    for i in range(12): e(f"v_mov_b32 v{ACC+i}, 0")
    FR = [40, 208]
    for t in range(16):
        q, j = t // 4, t % 4; fr = FR[q & 1]
        for c in range(4):
            e(f"v_pk_mul_f32 v[{20+2*c}:{21+2*c}], v[{AP+2*t}:{AP+2*t+1}], v[{6+2*c}:{7+2*c}]")
        for c in range(4):
            e(f"v_exp_f32 v{20+2*c}, v{20+2*c}")
            e(f"v_fract_f32 v{21+2*c}, v{21+2*c}")
        for c in range(4):
            e(f"v_cos_f32 v{28+2*c}, v{21+2*c}")
            e(f"v_sin_f32 v{29+2*c}, v{21+2*c}")
        e("s_nop 0")
        for c in range(4):
            e(f"v_pk_mul_f32 v[{28+2*c}:{29+2*c}], v[{28+2*c}:{29+2*c}], v[{20+2*c}:{21+2*c}] op_sel_hi:[1,0]")
        for mb in range(3):
            e(f"v_cvt_pk_bf16_f32 v{fr+4+4*mb+j}, v{30+2*mb}, v{31+2*mb}")
        e(f"v_mul_f32 v36, v{CP+2*t+1}, v29")
        e(f"v_mul_f32 v37, v{CP+2*t+1}, v28")
        e(f"v_fma_f32 v36, v{CP+2*t}, v28, -v36")
        e(f"v_fma_f32 v37, -v{CP+2*t}, v29, -v37")
        e(f"v_cvt_pk_bf16_f32 v{fr+j}, v36, v37")
        if j == 3:
            e("s_nop 1")
            for mb in range(3):
                e(f"v_mfma_f32_16x16x32_bf16 {vr(ACC+4*mb,4)}, {vr(fr+4+4*mb,4)}, {vr(fr,4)}, {vr(ACC+4*mb,4)}")
    stamp(k, 3)
    k.nop(8)
    e("v_lshrrev_b32 v20, 4, v0"); e("v_lshlrev_b32 v20, 8, v20"); e("v_lshlrev_b32 v21, 2, v14"); e("v_add_u32 v20, v20, v21")
    e("s_mul_i32 s37, s3, 3072"); e("v_add_u32 v20, s37, v20")
    for mb in range(3):
        for r in range(4):
            e(f"ds_write_b32 v20, v{ACC+4*mb+r} offset:{KT+mb*1024+r*64}")
    e("s_waitcnt lgkmcnt(0)")
    stamp(k, 5)
    e("s_barrier")
    stamp(k, 6)
    for ch in range(2):
        for m in range(8):
            e(f"ds_read_b32 v{16+8*ch+m}, v{IDX+m} offset:{KT+2*ch*3072}")
            e(f"ds_read_b32 v{64+8*ch+m}, v{IDX+m} offset:{KT+(2*ch+1)*3072}")
    e("s_lshl_b32 s37, s24, 12"); e(f"s_add_u32 s37, s37, {WS_KL}")
    e("s_waitcnt lgkmcnt(0)")
    for i in range(16): e(f"v_add_f32 v{16+i}, v{16+i}, v{64+i}")
    for ch in range(2):
        for q in range(4): e(f"v_cvt_pk_bf16_f32 v{32+4*ch+q}, v{16+8*ch+2*q}, v{17+8*ch+2*q}")
    e("buffer_store_dwordx4 v[32:35], v186, s[48:51], s37 offen")
    e("s_add_u32 s37, s37, 4096")
    e("buffer_store_dwordx4 v[36:39], v186, s[48:51], s37 offen")
    stamp(k, 7)
    if PROF: e("s_waitcnt vmcnt(0)")
    stamp(k, 4)

CONV_LDS = 1024 + 2*4640 + 2*34304
def conv_body(k):
    e = k.e; stamp = GM.stamp; PROF = GM.PROF
    UT = 1024; UTP = 4640; KC = UT + 2*UTP; KCP = 4288; KCC = 34304
    P = 2063
    e("s_load_dwordx2 s[68:69], s[0:1], 48")
    e("s_load_dwordx2 s[70:71], s[0:1], 80")
    e("s_load_dwordx2 s[56:57], s[0:1], 96")
    e("v_mov_b32 v1, v0")
    e("v_lshrrev_b32 v2, 6, v0")
    e("v_and_b32 v0, 63, v0")
    e("s_nop 0")
    e("v_readfirstlane_b32 s3, v2")
    e("s_and_b32 s24, s2, 7"); e("s_lshl_b32 s24, s24, 5"); e("s_lshr_b32 s25, s2, 3"); e("s_add_u32 s24, s24, s25")
    e("s_lshl_b32 s24, s24, 1"); e("s_lshl_b32 s25, s24, 1")
    e("s_waitcnt lgkmcnt(0)")
    k.srd(48, 70, 4*MB); k.srd(12, 56, WS_SIZE)
    e("s_add_u32 s68, s68, s25"); e("s_addc_u32 s69, s69, 0"); e("s_load_dword s54, s[68:69], 0")
    e("s_lshl_b32 s26, s24, 12"); e(f"s_add_u32 s26, s26, {WS_KL}")
    for ch in range(2):
        b = 16 + 4*ch
        e(f"s_add_u32 s{b}, s56, s26"); e(f"s_addc_u32 s{b+1}, s57, 0"); e(f"s_and_b32 s{b+1}, s{b+1}, 0xffff")
        e(f"s_mov_b32 s{b+2}, 4096"); e(f"s_mov_b32 s{b+3}, 0x00020000")
        if ch == 0: e("s_add_u32 s26, s26, 4096")
    e("v_lshlrev_b32 v186, 4, v1")
    e("v_subrev_u32 v3, 32, v186")
    e("v_add_u32 v4, 4096, v3")
    for ch in range(2):
        e(f"buffer_load_dwordx4 {vr(64+8*ch,4)}, v3, s[{16+4*ch}:{19+4*ch}], 0 offen")
        e(f"buffer_load_dwordx4 {vr(68+8*ch,4)}, v3, s[{16+4*ch}:{19+4*ch}], 0 offen offset:16")
    e("s_lshl_b32 s27, s24, 12"); e(f"s_add_u32 s27, s27, {WS_UT}")
    e("buffer_load_dwordx4 v[200:203], v186, s[12:15], s27 offen")
    e("s_add_u32 s27, s27, 4096")
    e("buffer_load_dwordx4 v[204:207], v186, s[12:15], s27 offen")
    for ch in range(2):
        e(f"buffer_load_dwordx4 {vr(80+8*ch,4)}, v4, s[{16+4*ch}:{19+4*ch}], 0 offen")
        e(f"buffer_load_dwordx4 {vr(84+8*ch,4)}, v4, s[{16+4*ch}:{19+4*ch}], 0 offen offset:16")
    for i in range(4): e(f"v_mov_b32 v{16+i}, 0")
    e("v_cmp_gt_u32 vcc, 32, v1"); e("s_and_saveexec_b64 s[30:31], vcc")
    e(f"ds_write_b128 v186, v[16:19] offset:{UT}"); e(f"ds_write_b128 v186, v[16:19] offset:{UT+UTP}")
    e("s_mov_b64 exec, s[30:31]")
    e("v_cmp_gt_u32 vcc, 2, v1"); e("s_and_saveexec_b64 s[30:31], vcc")
    e(f"ds_write_b128 v186, v[16:19] offset:{UT+4608}"); e(f"ds_write_b128 v186, v[16:19] offset:{UT+UTP+4608}")
    e("s_mov_b64 exec, s[30:31]")
    e("v_and_b32 v14, 15, v0"); e("v_lshrrev_b32 v11, 4, v0")
    e("v_lshlrev_b32 v12, 3, v11"); e("v_sub_u32 v12, v12, v14"); e(f"v_add_u32 v12, {P}, v12")
    e("v_and_b32 v13, 7, v12"); e("v_sub_u32 v12, v12, v13")
    e(f"s_movk_i32 s38, {KCP}"); e("v_mul_lo_u32 v13, v13, s38"); e("v_lshlrev_b32 v12, 1, v12"); e("v_add_u32 v12, v12, v13")
    e(f"v_add_u32 v184, {KC - 960}, v12")
    e("v_lshlrev_b32 v12, 5, v14"); e("v_lshlrev_b32 v13, 4, v11"); e("v_add_u32 v12, v12, v13")
    e(f"v_add_u32 v185, {UT + 512 - 960}, v12")
    e("v_add_u32 v187, 4096, v186")
    def copies(addr, src, ch):
        if ch: e(f"v_add_u32 v50, {KCC}, v{addr}"); addr = 50
        for q in range(1, 7): e(f"v_mov_b32 v{25+q}, v{src+q}")
        for q in range(7): e(f"v_alignbit_b32 v{32+q}, v{src+1+q}, v{src+q}, 16")
        for q in range(1, 7): e(f"v_mov_b32 v{41+q}, v{32+q}")
        for s in range(8):
            h = s // 2
            if s % 2 == 0: r = (src+h) if h % 2 == 0 else (25+h)
            else: r = (32+h) if h % 2 == 0 else (41+h)
            e(f"ds_write_b128 v{addr}, {vr(r,4)} offset:{KC + s*KCP}")
    e("s_waitcnt vmcnt(6)")
    stamp(k, 1)
    copies(186, 64, 0); copies(186, 72, 1)
    e("s_waitcnt vmcnt(4)")
    e(f"ds_write_b128 v186, v[200:203] offset:{UT+512}"); e(f"ds_write_b128 v186, v[204:207] offset:{UT+UTP+512}")
    e("s_waitcnt vmcnt(0)")
    e("v_cmp_gt_u32 vcc, 6, v1"); e("s_and_saveexec_b64 s[30:31], vcc")
    copies(187, 80, 0); copies(187, 88, 1)
    e("s_mov_b64 exec, s[30:31]")
    e("s_waitcnt lgkmcnt(0)"); e("s_barrier")
    stamp(k, 2)
    RES = 188
    e("s_lshl_b32 s42, s54, 16"); e("s_and_b32 s43, s54, 0xffff0000")
    e("s_movk_i32 s44, 4096")
    for blk in range(2):
        if blk == 0: e("s_sub_u32 s39, 7, s3")
        else: e("s_mov_b32 s39, s3")
        for ch in range(2):
            acc = RES + 8*ch + 4*blk
            for i in range(4): e(f"v_mov_b32 v{acc+i}, 0")
            e(f"v_add_u32 v48, {ch*KCC}, v184")
            e("s_lshl_b32 s40, s39, 9"); e(f"s_add_u32 s40, s40, {ch*UTP}"); e("v_add_u32 v49, s40, v185")
            FB = 64; GB = 80
            def rd(slot, stepoff):
                off = 960 - 64*stepoff
                e(f"ds_read_b128 {vr(FB+4*slot,4)}, v48 offset:{off}")
                e(f"ds_read_b128 {vr(GB+4*slot,4)}, v49 offset:{off}")
            for q in range(4): rd(q, q)
            e("s_mov_b32 s41, 0")
            lc = k.new("CV"); k.lab(lc)
            for q in range(8):
                e("s_waitcnt lgkmcnt(6)")
                e(f"v_mfma_f32_16x16x32_bf16 {vr(acc,4)}, {vr(FB+4*(q%4),4)}, {vr(GB+4*(q%4),4)}, {vr(acc,4)}")
                rd(q % 4, q + 4)
            e("v_subrev_u32 v48, 512, v48"); e("v_subrev_u32 v49, 512, v49")
            e("s_add_u32 s41, s41, 1"); e("s_cmp_le_u32 s41, s39"); e(f"s_cbranch_scc1 {lc}")
            e("s_waitcnt lgkmcnt(6)")
            e(f"v_mfma_f32_16x16x32_bf16 {vr(acc,4)}, {vr(FB,4)}, {vr(GB,4)}, {vr(acc,4)}")
            e("s_waitcnt lgkmcnt(0)")
        e("v_lshlrev_b32 v12, 4, v14"); e("v_lshlrev_b32 v13, 2, v11"); e("v_add_u32 v12, v12, v13")
        e("s_lshl_b32 s40, s39, 8"); e("v_add_u32 v12, s40, v12")
        e("v_lshlrev_b32 v13, 1, v12")
        e(f"ds_read_b64 v[16:17], v13 offset:{UT+512}"); e(f"ds_read_b64 v[18:19], v13 offset:{UT+UTP+512}")
        e("v_lshlrev_b32 v15, 11, v12"); e("v_add_u32 v15, s25, v15")
        k.nop(6)
        e("s_waitcnt lgkmcnt(0)")
        for r in range(4):
            for ch in range(2):
                src = 16 + 2*ch + r//2
                if r & 1: e(f"v_and_b32 v{20+ch}, 0xffff0000, v{src}")
                else: e(f"v_lshlrev_b32 v{20+ch}, 16, v{src}")
                e(f"v_mul_f32 v{20+ch}, s{42+ch}, v{20+ch}")
            e("v_cvt_pk_bf16_f32 v22, v20, v21")
            e(f"v_cvt_pk_bf16_f32 v23, v{RES+4*blk+r}, v{RES+8+4*blk+r}")
            e("v_lshlrev_b32 v24, 16, v22"); e("v_and_b32 v25, 0xffff0000, v22")
            e("v_lshlrev_b32 v26, 16, v23"); e("v_and_b32 v27, 0xffff0000, v23")
            e("v_add_f32 v24, v24, v26"); e("v_add_f32 v25, v25, v27")
            e(f"v_cvt_pk_bf16_f32 v{28+4*blk+r}, v24, v25")
            so = "0" if r < 2 else "s44"
            e(f"buffer_store_dword v{28+4*blk+r}, v15, s[48:51], {so} offen offset:{(r%2)*2048}")
        if blk == 0: stamp(k, 3)
    if PROF: e("s_waitcnt vmcnt(0)")
    stamp(k, 4)

def mk(name, body, lds):
    def f():
        k = K(name); e = k.e
        e("s_cmp_ge_u32 s2, 256"); e(f"s_cbranch_scc1 {k.name}_end")
        if GM.PROF: e("s_memrealtime s[88:89]")
        GM.stamp(k, 0)
        body(k)
        GM.stamp_out(k, 8)
        return k, 224, (256, 256, lds)
    return f
KERNELS = {"prep": mk("prep_kernel", prep_body, PREP_LDS), "conv": mk("conv_kernel", conv_body, CONV_LDS)}

def merged(name, first, second, lds, vg):
    def f():
        import gen
        k = K(name); e = k.e
        l2 = k.new("SECOND")
        e("s_cmp_ge_u32 s2, 512"); e(f"s_cbranch_scc1 {k.name}_end")
        import os
        if os.environ.get("ROLE", "0") == "1":
            e("s_and_b32 s4, s2, 8")
            e("s_lshr_b32 s5, s2, 4"); e("s_lshl_b32 s5, s5, 3"); e("s_and_b32 s2, s2, 7"); e("s_or_b32 s2, s2, s5")
            e("s_cmp_lg_u32 s4, 0"); e(f"s_cbranch_scc1 {l2}")
            first(k)
            e("s_endpgm")
            k.lab(l2)
        else:
            e("s_cmp_lt_u32 s2, 256"); e(f"s_cbranch_scc1 {l2}")
            e("s_sub_u32 s2, s2, 256")
            if name == "l1_kernel": e("s_setprio 3")
            first(k)
            e("s_endpgm")
            k.lab(l2)
        if GM.PROF: e("s_memrealtime s[88:89]")
        GM.stamp(k, 0)
        second(k)
        GM.stamp_out(k, 8)
        return k, vg, (512, 256, lds)
    return f
import gen
KERNELS["l1"] = merged("l1_kernel", gen.gemm1, prep_body, max(57344, PREP_LDS), 224)
KERNELS["l3"] = merged("l3_kernel", GM.gemm2, conv_body, max(65536, CONV_LDS), 256)
```

```python
import sys, math, struct, os
NAME = "concat_heads__ssm_conv_s4d__softmax_full_mha__prompt"
MB = 1 << 20
WS_Q, WS_K, WS_V, WS_O = 0, 2*MB, 4*MB, 6*MB
WS_KM = 8*MB
WS_UT = 9*MB
WS_KL = 11*MB
WS_SIZE = 13*MB

def f32bits(x): return struct.unpack("<I", struct.pack("<f", x))[0]
LOG2E = 1.4426950408889634
QSCALE = 0.25*LOG2E

class K:
    def __init__(self, name):
        self.name = name; self.L = []; self.uid = 0
    def e(self, s): self.L.append("    " + s)
    def lab(self, s): self.L.append(s + ":")
    def new(self, p="L"):
        self.uid += 1; return f"{p}_{self.name}_{self.uid}"
    def nop(self, n):
        while n > 0:
            k = min(n, 16); self.e(f"s_nop {k-1}"); n -= k
    def srd(self, s, base, size):
        self.e(f"s_mov_b32 s{s}, s{base}")
        self.e(f"s_and_b32 s{s+1}, s{base+1}, 0xffff")
        self.e(f"s_mov_b32 s{s+2}, {size}")
        self.e(f"s_mov_b32 s{s+3}, 0x00020000")
    def text(self, vgpr, sgpr=96):
        out = [f".globl {self.name}", ".p2align 8", f".type {self.name},@function", f"{self.name}:"]
        out += self.L
        out += [f"{self.name}_end:", "    s_endpgm"]
        acc = (vgpr + 3)//4*4
        desc = f""".amdhsa_kernel {self.name}
  .amdhsa_next_free_vgpr {vgpr}
  .amdhsa_next_free_sgpr {sgpr}
  .amdhsa_accum_offset {acc}
  .amdhsa_group_segment_fixed_size 0
  .amdhsa_kernarg_size 104
  .amdhsa_user_sgpr_count 2
  .amdhsa_user_sgpr_kernarg_segment_ptr 1
  .amdhsa_system_sgpr_workgroup_id_x 1
.end_amdhsa_kernel"""
        return "\n".join(out), desc

def vr(a, n): return f"v[{a}:{a+n-1}]" if n > 1 else f"v{a}"

def gemm1(k=None):
    from gen_more import stamp, stamp_out, PROF
    own = k is None
    if own:
        k = K("gemm1_kernel")
        k.e("s_cmp_ge_u32 s2, 256"); k.e(f"s_cbranch_scc1 {k.name}_end")
    e = k.e
    if PROF: e("s_memrealtime s[88:89]")
    stamp(k, 0)
    e("s_load_dwordx2 s[4:5], s[0:1], 56")
    e("s_load_dwordx2 s[6:7], s[0:1], 64")
    e("s_load_dwordx2 s[8:9], s[0:1], 96")
    e("v_lshrrev_b32 v1, 6, v0")
    e("v_and_b32 v0, 63, v0")
    e("s_nop 0")
    e("v_readfirstlane_b32 s3, v1")
    e("s_and_b32 s26, s2, 7"); e("s_lshr_b32 s27, s2, 3")
    e("s_lshr_b32 s24, s26, 1"); e("s_lshl_b32 s24, s24, 2"); e("s_and_b32 s28, s27, 3"); e("s_add_u32 s24, s24, s28")
    e("s_and_b32 s25, s26, 1"); e("s_lshl_b32 s25, s25, 3"); e("s_lshr_b32 s28, s27, 2"); e("s_add_u32 s25, s25, s28")
    e("s_waitcnt lgkmcnt(0)")
    k.srd(12, 4, 2*MB); k.srd(16, 6, 512*1536*2); k.srd(20, 8, WS_SIZE)
    e("s_lshl_b32 s26, s24, 7"); e("s_lshl_b32 s27, s3, 5"); e("s_add_u32 s26, s26, s27")
    e("v_and_b32 v2, 31, v0"); e("v_add_u32 v2, s26, v2"); e("v_lshlrev_b32 v2, 10, v2")
    e("v_lshrrev_b32 v3, 5, v0"); e("v_lshlrev_b32 v3, 4, v3"); e("v_add_u32 v2, v2, v3")
    e("s_movk_i32 s28, 171"); e("s_movk_i32 s29, 3072")
    for sub in range(3):
        e(f"v_add_u32 v3, {64*sub}, v0")
        e("v_mul_lo_u32 v7, v3, s28"); e("v_lshrrev_b32 v7, 11, v7")
        e("v_mul_u32_u24 v8, 12, v7"); e("v_sub_u32 v8, v3, v8")
        e("v_mul_lo_u32 v7, v7, s29"); e("v_lshlrev_b32 v8, 4, v8")
        e(f"v_add_u32 v{4+sub}, v7, v8")
    e("v_lshrrev_b32 v7, 5, v0"); e("v_lshlrev_b32 v7, 3, v7")
    e("v_and_b32 v8, 15, v0"); e("v_lshrrev_b32 v8, 2, v8"); e("v_add_u32 v7, v7, v8")
    e("v_mul_u32_u24 v7, 192, v7")
    e("v_lshrrev_b32 v8, 4, v0"); e("v_and_b32 v8, 1, v8"); e("v_lshlrev_b32 v8, 5, v8"); e("v_add_u32 v7, v7, v8")
    e("v_and_b32 v8, 3, v0"); e("v_lshlrev_b32 v8, 3, v8"); e("v_add_u32 v7, v7, v8")
    NR = 2
    XB = NR*12288
    XF = 128
    ACC = 16
    WF = 64
    for i in range(48): e(f"v_mov_b32 v{ACC+i}, 0")
    e("s_mul_i32 s30, s25, 192")
    e("s_lshl_b32 s42, s3, 4")
    e("s_mul_i32 s43, s42, 3072"); e("s_add_u32 s43, s43, s30")
    e("s_mul_i32 s44, s42, 192")
    e("v_lshrrev_b32 v10, 3, v0"); e("v_lshrrev_b32 v11, 1, v10"); e("v_and_b32 v12, 7, v0"); e("v_xor_b32 v12, v12, v11")
    e("v_lshlrev_b32 v10, 10, v10"); e("v_lshlrev_b32 v13, 4, v12"); e("v_add_u32 v8, v10, v13")
    e("v_xor_b32 v12, 4, v12"); e("v_lshlrev_b32 v13, 4, v12"); e("v_add_u32 v9, v10, v13")
    e("s_lshl_b32 s47, s26, 10")
    e("s_lshl_b32 s48, s3, 12")
    e("v_and_b32 v10, 31, v0"); e("v_lshrrev_b32 v11, 1, v10"); e("v_and_b32 v11, 7, v11"); e("v_lshrrev_b32 v12, 5, v0")
    e("v_lshlrev_b32 v10, 7, v10"); e("v_add_u32 v10, s48, v10"); e(f"v_add_u32 v10, {XB}, v10")
    for sl in range(4):
        e(f"v_add_u32 v13, {2*sl}, v12"); e("v_xor_b32 v13, v13, v11"); e("v_lshlrev_b32 v13, 4, v13"); e(f"v_add_u32 v{88+sl}, v10, v13")
    def loads(slot):
        for sub in range(3):
            e(f"s_add_u32 s34, s44, {slot*12288 + sub*1024}")
            e("s_mov_b32 m0, s34"); e("s_nop 0")
            e(f"buffer_load_dwordx4 v{4+sub}, s[16:19], s43 offen lds")
        for b8 in range(4):
            e(f"s_add_u32 s34, s48, {XB + slot*16384 + b8*1024}")
            e("s_mov_b32 m0, s34"); e(f"s_add_u32 s49, s47, {b8*8192}")
            e(f"buffer_load_dwordx4 v{8 + (b8&1)}, s[12:15], s49 offen lds")
        e(f"s_add_u32 s43, s43, {64*3072}"); e("s_add_u32 s47, s47, 128")
    loads(0)
    lepi = k.new("EPI")
    def fread(slot, sl, pb):
        e(f"ds_read_b128 {vr(XF+4*pb,4)}, v{88+sl} offset:{slot*16384}")
        for t in range(3):
            for hs in range(2):
                e(f"ds_read_b64_tr_b16 {vr(WF+12*pb+4*t+2*hs,2)}, v7 offset:{slot*12288+sl*3072+hs*768+64*t}")
    def mf(t, pb, isV):
        a_ = vr(WF+12*pb+4*t, 4); b_ = vr(XF+4*pb, 4)
        if isV: a_, b_ = b_, a_
        e(f"v_mfma_f32_32x32x16_bf16 {vr(ACC+16*t,16)}, {a_}, {b_}, {vr(ACC+16*t,16)}")
    e("s_mov_b32 s46, 0")
    lp = k.new("LP"); k.lab(lp)
    for slot in range(2):
        e("s_waitcnt vmcnt(0)"); e("s_barrier")
        fread(slot, 0, 0)
        if slot == 0:
            loads(1)
        else:
            ls = k.new("SK"); e("s_cmp_eq_u32 s46, 3"); e(f"s_cbranch_scc1 {ls}"); loads(0); k.lab(ls)
        for sl in range(4):
            pb = sl & 1
            if sl < 3:
                fread(slot, sl+1, pb ^ 1); e("s_waitcnt lgkmcnt(7)")
            else:
                e("s_waitcnt lgkmcnt(0)")
            la = k.new("A"); lb = k.new("B"); lc = k.new("C"); ld = k.new("D")
            e("s_cmp_gt_u32 s25, 10"); e(f"s_cbranch_scc1 {la}")
            mf(0, pb, 0); mf(1, pb, 0)
            e("s_cmp_eq_u32 s25, 10"); e(f"s_cbranch_scc1 {lc}")
            mf(2, pb, 0); e(f"s_branch {ld}")
            k.lab(la); mf(0, pb, 1); mf(1, pb, 1)
            k.lab(lc); mf(2, pb, 1)
            k.lab(ld)
    e("s_add_u32 s46, s46, 1"); e("s_cmp_lt_u32 s46, 4"); e(f"s_cbranch_scc1 {lp}")
    k.lab(lepi)
    k.nop(16)
    stamp(k, 5)
    e("v_lshlrev_b32 v2, 4, v0")
    e("v_and_b32 v3, 15, v0"); e("v_lshlrev_b32 v3, 4, v3")
    e("v_lshrrev_b32 v4, 5, v0"); e("v_lshlrev_b32 v4, 8, v4"); e("v_add_u32 v3, v3, v4")
    e("v_lshrrev_b32 v4, 4, v0"); e("v_and_b32 v4, 1, v4"); e("v_lshlrev_b32 v4, 16, v4"); e("v_add_u32 v3, v3, v4")
    e("s_lshl_b32 s35, s24, 2"); e("s_add_u32 s35, s35, s3")
    for t in range(3):
        lV = k.new("EV"); lN = k.new("EN")
        e(f"s_mul_i32 s36, s25, 96"); e(f"s_add_u32 s36, s36, {32*t}")
        e("s_lshr_b32 s37, s36, 9")
        e("s_and_b32 s38, s36, 511"); e("s_lshr_b32 s38, s38, 4")
        e("s_cmp_eq_u32 s37, 2"); e(f"s_cbranch_scc1 {lV}")
        e("s_cmp_eq_u32 s37, 0"); e(f"s_cselect_b32 s39, {hex(f32bits(QSCALE))}, 1.0")
        e("s_lshl_b32 s40, s37, 21")
        e("s_lshl_b32 s41, s38, 6"); e("s_add_u32 s41, s41, s35"); e("s_lshl_b32 s41, s41, 10"); e("s_add_u32 s40, s40, s41")
        for i in range(16): e(f"v_mul_f32 v{ACC+16*t+i}, s39, v{ACC+16*t+i}")
        for i in range(8): e(f"v_cvt_pk_bf16_f32 v{88+i}, v{ACC+16*t+2*i}, v{ACC+16*t+2*i+1}")
        e(f"buffer_store_dwordx4 v[88:91], v2, s[20:23], s40 offen")
        e("s_add_u32 s40, s40, 65536")
        e(f"buffer_store_dwordx4 v[92:95], v2, s[20:23], s40 offen")
        e("s_cmp_lg_u32 s37, 1"); e(f"s_cbranch_scc1 {lN}")
        for hh in range(2):
            b = ACC+16*t+8*hh
            e(f"v_mul_f32 v{96+hh}, v{b}, v{b}")
            for i in range(1, 8): e(f"v_fmac_f32 v{96+hh}, v{b+i}, v{b+i}")
        for hh in range(2): e(f"v_mov_b32 v{98+hh}, v{96+hh}")
        k.nop(2)
        for hh in range(2): e(f"v_permlane32_swap_b32 v{96+hh}, v{98+hh}")
        k.nop(2)
        for hh in range(2): e(f"v_add_f32 v{96+hh}, v{96+hh}, v{98+hh}")
        for mod in ("quad_perm:[1,0,3,2]", "quad_perm:[2,3,0,1]", "row_half_mirror", "row_mirror"):
            k.nop(2)
            for hh in range(2): e(f"v_max_f32_dpp v{96+hh}, v{96+hh}, v{96+hh} {mod} row_mask:0xf bank_mask:0xf")
        for hh in range(2): e(f"v_mov_b32 v{98+hh}, v{96+hh}")
        k.nop(2)
        for hh in range(2): e(f"v_permlane16_swap_b32 v{96+hh}, v{98+hh}")
        k.nop(2)
        for hh in range(2): e(f"v_max_f32 v{96+hh}, v{96+hh}, v{98+hh}")
        e("s_lshl_b32 s41, s38, 6"); e("s_add_u32 s41, s41, s35"); e("s_lshl_b32 s41, s41, 2"); e(f"s_add_u32 s41, s41, {WS_KM}")
        e("v_mov_b32 v100, 0")
        e("s_mov_b64 exec, 1")
        e("buffer_store_dword v96, v100, s[20:23], s41 offen")
        e("buffer_store_dword v97, v100, s[20:23], s41 offen offset:256")
        e("s_mov_b64 exec, -1")
        e(f"s_branch {lN}")
        k.lab(lV)
        e("s_lshl_b32 s40, s38, 16"); e("s_lshl_b32 s41, s35, 10"); e("s_add_u32 s40, s40, s41"); e(f"s_add_u32 s40, s40, {WS_V}")
        for i in range(8): e(f"v_cvt_pk_bf16_f32 v{88+i}, v{ACC+16*t+2*i}, v{ACC+16*t+2*i+1}")
        e(f"buffer_store_dwordx4 v[88:91], v3, s[20:23], s40 offen")
        e(f"buffer_store_dwordx4 v[92:95], v3, s[20:23], s40 offen offset:512")
        k.lab(lN)
        k.nop(4)
    if PROF: e("s_waitcnt vmcnt(0)")
    stamp(k, 6)
    stamp_out(k, 7, int(os.environ.get('G1BASE','64')))
    return k, 144, (256, 256, 57344)

KERNELS = {"gemm1": gemm1}

def build(names, out):
    import gen_more, gen_ssm, gen_l2
    allk = dict(KERNELS); allk.update(gen_more.KERNELS); allk.update(gen_ssm.KERNELS); allk.update(gen_l2.KERNELS)
    hdr = open("cdna_kernels/%s.s.ref" % NAME).read().split("; Override")[0]
    launches = []; bodies = []; descs = []
    for n in names:
        k, vg, (grid, block, lds) = allk[n]()
        t, d = k.text(vg)
        bodies.append(t); descs.append(d)
        launches.append(f"; @launch kernel={k.name} grid=({grid},1,1) block=({block},1,1) lds={lds}")
    s = hdr + "\n".join(launches) + "\n" + '.amdgcn_target "amdgcn-amd-amdhsa--gfx950"\n.text\n'
    s += "\n".join(bodies) + '\n.section .rodata,"a"\n' + "\n".join(".p2align 6\n" + d for d in descs) + "\n"
    open(out, "w").write(s)

if __name__ == "__main__":
    build(sys.argv[2:], sys.argv[1])
```

```python
from gen import K, vr, f32bits, MB, WS_Q, WS_K, WS_V, WS_O, WS_KM, WS_SIZE, LOG2E

import os
PROF = os.environ.get("PROF", "0") == "1"
def stamp(k, idx):
    if PROF:
        k.e(f"s_memtime s[{72+2*idx}:{73+2*idx}]")
        k.e("s_waitcnt lgkmcnt(0)")
def stamp_out(k, n, base=0):
    if not PROF: return
    e = k.e
    l = k.new("NOPROF")
    e("s_memrealtime s[90:91]"); e("s_waitcnt lgkmcnt(0)")
    e("s_cmp_lg_u32 s2, 5"); e(f"s_cbranch_scc1 {l}")
    e("s_and_b32 s70, s3, 3"); e("s_cmp_lg_u32 s70, 0"); e(f"s_cbranch_scc1 {l}")
    e("s_load_dwordx2 s[92:93], s[0:1], 88"); e("s_waitcnt lgkmcnt(0)")
    e("s_mov_b32 s94, 256"); e("s_mov_b32 s95, 0x00020000")
    e("s_lshl_b32 s70, s3, 4"); e(f"s_add_u32 s70, s70, {base}"); e("v_mov_b32 v1, s70")
    for i in range(n):
        e(f"s_sub_u32 s70, s{72+2*i}, s72"); e("v_mov_b32 v2, s70")
        e(f"buffer_store_dword v2, v1, s[92:95], 0 offen offset:{4*i}")
    e("s_sub_u32 s70, s90, s88"); e("v_mov_b32 v2, s70")
    e(f"buffer_store_dword v2, v1, s[92:95], 0 offen offset:{4*n}")
    k.lab(l)
def attn():
    k = K("attn_kernel"); e = k.e
    e("s_cmp_ge_u32 s2, 256"); e(f"s_cbranch_scc1 {k.name}_end")
    if PROF: e("s_memrealtime s[88:89]")
    stamp(k, 0)
    e("s_load_dwordx2 s[8:9], s[0:1], 96")
    e("v_lshrrev_b32 v1, 6, v0")
    e("v_and_b32 v0, 63, v0")
    e("s_nop 0")
    e("v_readfirstlane_b32 s3, v1")
    e("s_and_b32 s24, s2, 7"); e("s_lshl_b32 s24, s24, 2")
    e("s_lshr_b32 s25, s2, 3"); e("s_and_b32 s25, s25, 3"); e("s_add_u32 s24, s24, s25")
    e("s_lshr_b32 s25, s2, 5")
    e("s_waitcnt lgkmcnt(0)")
    k.srd(20, 8, WS_SIZE)
    e("v_lshlrev_b32 v2, 4, v0")
    e("s_lshl_b32 s26, s25, 3"); e("s_add_u32 s26, s26, s3")
    e("s_lshl_b32 s27, s24, 6"); e("s_add_u32 s27, s27, s26"); e("s_lshl_b32 s27, s27, 10")
    QF = 4
    e(f"buffer_load_dwordx4 {vr(QF,4)}, v2, s[20:23], s27 offen")
    e("v_lshlrev_b32 v8, 2, v0")
    e("s_lshl_b32 s28, s24, 8"); e(f"s_add_u32 s28, s28, {WS_KM}")
    e("buffer_load_dword v11, v8, s[20:23], s28 offen")
    e("s_lshl_b32 s28, s24, 16")
    e("s_lshl_b32 s29, s3, 11")
    e("s_add_u32 s31, s29, s28")
    e("s_mov_b32 s30, s29")
    e("s_mov_b32 s38, 0")
    ld = k.new("DMA"); k.lab(ld)
    for sec, base in ((0, WS_K), (1, WS_V)):
        for j in range(2):
            e(f"s_add_u32 s39, s30, {j*1024 + sec*65536}")
            e("s_mov_b32 m0, s39")
            e(f"s_add_u32 s40, s31, {j*1024 + base}")
            e(f"buffer_load_dwordx4 v2, s[20:23], s40 offen lds")
    e("s_add_u32 s30, s30, 16384"); e("s_add_u32 s31, s31, 16384")
    e("s_add_u32 s38, s38, 1"); e("s_cmp_lt_u32 s38, 4"); e(f"s_cbranch_scc1 {ld}")
    S = [16, 32]; CM = 48; O = 64; KB = [80, 84]; VB = [88, 96]; P = 104; MX = 112
    e("v_and_b32 v3, 15, v0"); e("v_lshlrev_b32 v3, 4, v3")
    e("v_lshrrev_b32 v8, 5, v0"); e("v_lshlrev_b32 v8, 8, v8"); e("v_add_u32 v3, v3, v8"); e("v_add_u32 v3, 65536, v3")
    e("v_mov_b32 v114, v3")
    e("v_and_b32 v8, 31, v0")
    e("v_cmp_eq_u32 s[32:33], 16, v8"); e("v_cmp_eq_u32 s[34:35], 20, v8")
    e("s_or_b64 s[32:33], s[32:33], s[34:35]")
    e("v_mov_b32 v9, 0x3f803f80")
    e("s_nop 0")
    e("v_cndmask_b32 v9, 0, v9, s[32:33]")
    for b in VB:
        for i in range(8): e(f"v_mov_b32 v{b+i}, v9")
    e("s_mov_b32 s36, 0x0000ffff"); e("s_mov_b32 s37, 0x0000ffff")
    e("s_waitcnt vmcnt(16)")
    e("v_mov_b32 v12, 0")
    for i in range(4): e(f"v_dot2c_f32_bf16 v12, v{QF+i}, v{QF+i}")
    for mod in ("quad_perm:[1,0,3,2]", "quad_perm:[2,3,0,1]", "row_half_mirror", "row_mirror"):
        k.nop(2)
        e(f"v_max_f32_dpp v11, v11, v11 {mod} row_mask:0xf bank_mask:0xf")
    e("v_mov_b32 v13, v11"); e("v_mov_b32 v14, v12")
    k.nop(2)
    e("v_permlane16_swap_b32 v11, v13"); e("v_permlane32_swap_b32 v12, v14")
    k.nop(2)
    e("v_max_f32 v11, v11, v13"); e("v_add_f32 v12, v12, v14")
    e("v_mov_b32 v13, v11")
    k.nop(2)
    e("v_permlane32_swap_b32 v11, v13")
    k.nop(2)
    e("v_max_f32 v11, v11, v13")
    e("v_mul_f32 v12, v12, v11"); e("v_sqrt_f32 v12, v12"); e("s_nop 0")
    e(f"v_mul_f32 v{MX}, {hex(f32bits(-1.01))}, v12")
    for i in range(16): e(f"v_mov_b32 v{CM+i}, v{MX}")
    def vread(buf, off):
        e("s_mov_b64 exec, s[36:37]")
        e(f"ds_read_b128 {vr(VB[buf],4)}, v3 offset:{off}")
        e(f"ds_read_b128 {vr(VB[buf]+4,4)}, v3 offset:{off+512}")
        e("s_mov_b64 exec, -1")
    def p2_start():
        for i in range(16): e(f"v_mov_b32 v{O+i}, 0")
        e("v_mov_b32 v10, v2"); e("v_mov_b32 v3, v114")
        e(f"ds_read_b128 {vr(KB[0],4)}, v10")
        e("s_waitcnt lgkmcnt(0)")
        e(f"v_mfma_f32_32x32x16_bf16 {vr(S[0],16)}, {vr(KB[0],4)}, {vr(QF,4)}, {vr(CM,16)}")
        e(f"ds_read_b128 {vr(KB[1],4)}, v10 offset:1024")
        vread(0, 0)
        k.nop(8)
    lstart = k.new("P2S"); lep = k.new("EPI")
    e("s_mov_b32 s41, 15")
    e("s_waitcnt vmcnt(12)"); e("s_barrier")
    stamp(k, 1)
    k.lab(lstart)
    p2_start()
    e("s_mov_b32 s38, 0")
    l2 = k.new("P2"); k.lab(l2)
    lnb = k.new("NB"); lb1 = k.new("B1"); lb2 = k.new("B2"); lbar = k.new("BAR")
    e("s_and_b32 s39, s38, s41"); e("s_cmp_lg_u32 s39, 14"); e(f"s_cbranch_scc1 {lnb}")
    e("s_cmp_eq_u32 s38, 62"); e(f"s_cbranch_scc1 {lnb}")
    e("s_cmp_eq_u32 s38, 14"); e(f"s_cbranch_scc0 {lb1}"); e("s_waitcnt vmcnt(8)"); e(f"s_branch {lbar}")
    k.lab(lb1); e("s_cmp_eq_u32 s38, 30"); e(f"s_cbranch_scc0 {lb2}"); e("s_waitcnt vmcnt(4)"); e(f"s_branch {lbar}")
    k.lab(lb2); e("s_waitcnt vmcnt(0)")
    k.lab(lbar); e("s_barrier")
    k.lab(lnb)
    for p in range(2):
        e("s_waitcnt lgkmcnt(2)")
        e(f"v_mfma_f32_32x32x16_bf16 {vr(S[1-p],16)}, {vr(KB[1-p],4)}, {vr(QF,4)}, {vr(CM,16)}")
        e(f"ds_read_b128 {vr(KB[p],4)}, v10 offset:{2048 + p*1024}")
        vread(1-p, 1024 + p*1024)
        for i in range(12): e(f"v_exp_f32 v{S[p]+i}, v{S[p]+i}")
        for i in range(4): e(f"v_cvt_pk_bf16_f32 v{P+i}, v{S[p]+2*i}, v{S[p]+2*i+1}")
        for i in range(12, 16): e(f"v_exp_f32 v{S[p]+i}, v{S[p]+i}")
        e("s_waitcnt lgkmcnt(3)")
        e(f"v_mfma_f32_32x32x16_bf16 {vr(O,16)}, {vr(VB[p],4)}, {vr(P,4)}, {vr(O,16)}")
        for i in range(4, 8): e(f"v_cvt_pk_bf16_f32 v{P+i}, v{S[p]+2*i}, v{S[p]+2*i+1}")
        k.nop(2)
        e(f"v_mfma_f32_32x32x16_bf16 {vr(O,16)}, {vr(VB[p]+4,4)}, {vr(P+4,4)}, {vr(O,16)}")
    e("v_add_u32 v10, 2048, v10"); e("v_add_u32 v3, 2048, v3")
    e("s_add_u32 s38, s38, 2"); e("s_cmp_lt_u32 s38, 64"); e(f"s_cbranch_scc1 {l2}")
    stamp(k, 2)
    k.nop(16)
    e(f"v_cmp_gt_f32 vcc, {hex(f32bits(2.0**-60))}, v{O+8}")
    e("s_waitcnt lgkmcnt(0)")
    e("s_cmp_eq_u32 s41, 0"); e(f"s_cbranch_scc1 {lep}")
    e(f"s_cbranch_vccz {lep}")
    e("s_mov_b32 s41, 0")
    e(f"v_mov_b32 v{MX}, 0xff800000")
    e("v_mov_b32 v10, v2")
    e(f"ds_read_b128 {vr(KB[0],4)}, v10")
    e(f"ds_read_b128 {vr(KB[1],4)}, v10 offset:1024")
    e("s_waitcnt lgkmcnt(1)")
    e(f"v_mfma_f32_32x32x16_bf16 {vr(S[0],16)}, {vr(KB[0],4)}, {vr(QF,4)}, 0")
    e(f"ds_read_b128 {vr(KB[0],4)}, v10 offset:2048")
    e("s_mov_b32 s38, 0")
    l1 = k.new("P1"); k.lab(l1)
    e("s_waitcnt lgkmcnt(1)")
    e(f"v_mfma_f32_32x32x16_bf16 {vr(S[1],16)}, {vr(KB[1],4)}, {vr(QF,4)}, 0")
    e(f"ds_read_b128 {vr(KB[1],4)}, v10 offset:3072")
    k.nop(10)
    for i in range(8): e(f"v_max3_f32 v{MX}, v{S[0]+2*i}, v{S[0]+2*i+1}, v{MX}")
    e("s_waitcnt lgkmcnt(1)")
    e(f"v_mfma_f32_32x32x16_bf16 {vr(S[0],16)}, {vr(KB[0],4)}, {vr(QF,4)}, 0")
    e(f"ds_read_b128 {vr(KB[0],4)}, v10 offset:4096")
    e("v_add_u32 v10, 2048, v10")
    k.nop(9)
    for i in range(8): e(f"v_max3_f32 v{MX}, v{S[1]+2*i}, v{S[1]+2*i+1}, v{MX}")
    e("s_add_u32 s38, s38, 2"); e("s_cmp_lt_u32 s38, 64"); e(f"s_cbranch_scc1 {l1}")
    e(f"v_mov_b32 v{MX+1}, v{MX}")
    k.nop(2)
    e(f"v_permlane32_swap_b32 v{MX}, v{MX+1}")
    k.nop(2)
    e(f"v_max_f32 v{MX}, v{MX}, v{MX+1}")
    e(f"v_sub_f32 v{MX}, 0, v{MX}")
    for i in range(16): e(f"v_mov_b32 v{CM+i}, v{MX}")
    e("s_waitcnt lgkmcnt(0)")
    k.nop(4)
    e(f"s_branch {lstart}")
    k.lab(lep)
    e(f"v_rcp_f32 v8, v{O+8}")
    k.nop(1)
    for i in range(8): e(f"v_mul_f32 v{O+i}, v{O+i}, v8")
    for i in range(4): e(f"v_cvt_pk_bf16_f32 v{P+i}, v{O+2*i}, v{O+2*i+1}")
    e(f"s_add_u32 s27, s27, {WS_O}")
    e(f"buffer_store_dwordx4 {vr(P,4)}, v2, s[20:23], s27 offen")
    e("s_waitcnt lgkmcnt(0)")
    stamp(k, 3)
    stamp_out(k, 4)
    return k, 128, (256, 512, 131072)

KERNELS = {"attn": attn}

def gemm2(k=None):
    if k is None:
        k = K("gemm2_kernel")
        k.e("s_cmp_ge_u32 s2, 256"); k.e(f"s_cbranch_scc1 {k.name}_end")
    e = k.e
    if PROF: e("s_memrealtime s[88:89]")
    stamp(k, 0)
    e("s_load_dwordx2 s[6:7], s[0:1], 72")
    e("s_load_dwordx2 s[8:9], s[0:1], 96")
    e("s_load_dwordx2 s[10:11], s[0:1], 80")
    e("v_lshrrev_b32 v1, 6, v0")
    e("v_and_b32 v0, 63, v0")
    e("s_nop 0")
    e("v_readfirstlane_b32 s3, v1")
    e("s_and_b32 s26, s2, 7"); e("s_lshr_b32 s27, s2, 3")
    e("s_lshr_b32 s24, s26, 1"); e("s_lshl_b32 s24, s24, 3"); e("s_and_b32 s28, s27, 7"); e("s_add_u32 s24, s24, s28")
    e("s_and_b32 s25, s26, 1"); e("s_lshl_b32 s25, s25, 2"); e("s_lshr_b32 s28, s27, 3"); e("s_add_u32 s25, s25, s28")
    e("s_and_b32 s26, s3, 1")
    e("s_lshr_b32 s27, s3, 1")
    e("s_waitcnt lgkmcnt(0)")
    k.srd(12, 10, 2048*1024*2); k.srd(16, 6, 512*512*2); k.srd(20, 8, WS_SIZE)
    e("v_lshrrev_b32 v3, 3, v0")
    e("v_and_b32 v4, 2, v3"); e("v_lshlrev_b32 v4, 1, v4")
    e("v_and_b32 v5, 7, v0"); e("v_xor_b32 v5, v5, v4"); e("v_lshlrev_b32 v5, 4, v5")
    e("v_and_b32 v6, 3, v3")
    e("v_and_b32 v7, 4, v3"); e("v_lshlrev_b32 v7, 1, v7"); e("v_add_u32 v6, v6, v7")
    e("v_lshlrev_b32 v6, 10, v6"); e("v_add_u32 v4, v6, v5")
    e("s_lshl_b32 s28, s25, 7")
    OF = 128
    e("v_lshlrev_b32 v2, 4, v0")
    e("s_lshl_b32 s29, s24, 1"); e("s_add_u32 s29, s29, s26"); e("s_lshl_b32 s29, s29, 10"); e(f"s_add_u32 s29, s29, {WS_O}")
    e("s_lshl_b32 s30, s3, 4"); e("s_add_u32 s34, s30, 16")
    ld = k.new("DMA"); k.lab(ld)
    e("s_lshl_b32 s31, s30, 10"); e("s_mov_b32 m0, s31")
    e("s_lshr_b32 s32, s30, 1"); e("s_lshl_b32 s32, s32, 14")
    e("s_and_b32 s33, s30, 1"); e("s_lshl_b32 s33, s33, 12"); e("s_add_u32 s32, s32, s33"); e("s_add_u32 s32, s32, s28")
    e("buffer_load_dwordx4 v4, s[16:19], s32 offen lds")
    e("s_add_u32 s30, s30, 1"); e("s_cmp_lt_u32 s30, s34"); e(f"s_cbranch_scc1 {ld}")
    for s_ in range(8):
        e(f"buffer_load_dwordx4 {vr(OF+4*s_,4)}, v2, s[20:23], s29 offen")
        e("s_add_u32 s29, s29, 65536")
    e("v_lshrrev_b32 v7, 5, v0"); e("v_lshlrev_b32 v7, 3, v7")
    e("v_and_b32 v8, 15, v0"); e("v_lshrrev_b32 v8, 2, v8"); e("v_add_u32 v7, v7, v8"); e("v_lshlrev_b32 v7, 7, v7")
    e("v_lshrrev_b32 v8, 1, v8"); e("v_xor_b32 v8, s27, v8"); e("v_lshlrev_b32 v8, 6, v8"); e("v_add_u32 v7, v7, v8")
    e("v_and_b32 v8, 1, v0"); e("v_lshlrev_b32 v8, 5, v8"); e("v_add_u32 v7, v7, v8")
    e("v_lshrrev_b32 v8, 4, v0"); e("v_and_b32 v8, 1, v8"); e("v_lshlrev_b32 v8, 4, v8"); e("v_add_u32 v7, v7, v8")
    e("v_lshrrev_b32 v8, 1, v0"); e("v_and_b32 v8, 1, v8"); e("v_lshlrev_b32 v8, 3, v8"); e("v_add_u32 v7, v7, v8")
    ACC = 16; WF = 32
    for i in range(16): e(f"v_mov_b32 v{ACC+i}, 0")
    stamp(k, 1)
    e("s_waitcnt vmcnt(8)"); e("s_barrier")
    stamp(k, 2)
    def wread(s, pb):
        for hs in range(2):
            e(f"ds_read_b64_tr_b16 {vr(WF+4*pb+2*hs,2)}, v7 offset:{s*2048+hs*512}")
    NB = 4
    for s_ in range(NB-1): wread(s_, s_ % NB)
    e("s_mov_b32 s30, 0")
    lm = k.new("MM"); k.lab(lm)
    for s_ in range(8):
        wread(s_+NB-1, (s_+NB-1) % NB); e(f"s_waitcnt lgkmcnt({2*(NB-1)})")
        e("s_waitcnt vmcnt(7)")
        e(f"v_mfma_f32_32x32x16_bf16 {vr(ACC,16)}, {vr(WF+4*(s_%NB),4)}, {vr(OF+4*s_,4)}, {vr(ACC,16)}")
        e(f"buffer_load_dwordx4 {vr(OF+4*s_,4)}, v2, s[20:23], s29 offen")
        e("s_add_u32 s29, s29, 65536")
    e("v_add_u32 v7, 16384, v7")
    e("s_add_u32 s30, s30, 1"); e("s_cmp_lt_u32 s30, 4"); e(f"s_cbranch_scc1 {lm}")
    e("s_waitcnt vmcnt(0) lgkmcnt(0)")
    k.nop(16)
    for i in range(8): e(f"v_cvt_pk_bf16_f32 v{48+i}, v{ACC+2*i}, v{ACC+2*i+1}")
    e("s_lshl_b32 s30, s24, 6"); e("s_lshl_b32 s31, s26, 5"); e("s_add_u32 s30, s30, s31")
    e("v_and_b32 v3, 31, v0"); e("v_add_u32 v3, s30, v3"); e("v_lshlrev_b32 v3, 11, v3")
    e("v_lshrrev_b32 v5, 5, v0"); e("v_lshlrev_b32 v5, 5, v5"); e("v_add_u32 v3, v3, v5")
    e("s_lshl_b32 s31, s27, 6"); e("s_add_u32 s31, s31, s28"); e("s_add_u32 s31, s31, 1024")
    e("buffer_store_dwordx4 v[48:51], v3, s[12:15], s31 offen")
    e("buffer_store_dwordx4 v[52:55], v3, s[12:15], s31 offen offset:16")
    stamp(k, 3)
    if PROF: e("s_waitcnt vmcnt(0)")
    stamp(k, 4)
    stamp_out(k, 5, 64)
    return k, 160, (256, 256, 65536)

KERNELS["gemm2"] = gemm2

def ssm():
    k = K("ssm_kernel"); e = k.e
    UT = 1024; UTP = 4640; KT = 10304; KLIN = 22592; KC = 26816; KCP = 4288; LDS = 61120
    P = 2063
    e("s_cmp_ge_u32 s2, 256"); e(f"s_cbranch_scc1 {k.name}_end")
    if PROF: e("s_memrealtime s[88:89]")
    stamp(k, 0)
    e("s_load_dwordx4 s[56:59], s[0:1], 0")
    e("s_load_dwordx4 s[60:63], s[0:1], 16")
    e("s_load_dwordx4 s[64:67], s[0:1], 32")
    e("s_load_dwordx2 s[68:69], s[0:1], 48")
    e("s_load_dwordx2 s[70:71], s[0:1], 80")
    e("v_mov_b32 v1, v0")
    e("v_lshrrev_b32 v2, 6, v0")
    e("v_and_b32 v0, 63, v0")
    e("s_nop 0")
    e("v_readfirstlane_b32 s3, v2")
    e("s_and_b32 s24, s2, 7"); e("s_lshl_b32 s24, s24, 5"); e("s_lshr_b32 s25, s2, 3"); e("s_add_u32 s24, s24, s25")
    e("s_lshl_b32 s24, s24, 1")
    e("s_lshl_b32 s25, s24, 1")
    e("s_waitcnt lgkmcnt(0)")
    k.srd(12, 56, 2*MB); k.srd(16, 58, 131072); k.srd(20, 60, 131072); k.srd(40, 62, 131072); k.srd(44, 64, 131072); k.srd(48, 70, 4*MB)
    e("s_add_u32 s66, s66, s25"); e("s_addc_u32 s67, s67, 0")
    e("s_add_u32 s68, s68, s25"); e("s_addc_u32 s69, s69, 0")
    e("s_load_dword s52, s[66:67], 0"); e("s_load_dword s54, s[68:69], 0")
    e("s_lshr_b32 s26, s3, 1")
    e("s_and_b32 s27, s3, 1")
    e("s_add_u32 s28, s24, s26"); e("s_lshl_b32 s28, s28, 8"); e("s_lshl_b32 s29, s27, 7"); e("s_add_u32 s28, s28, s29")
    e("v_lshrrev_b32 v5, 4, v0"); e("v_lshlrev_b32 v5, 5, v5"); e("v_add_u32 v5, s28, v5")
    for base, srd in ((64, 16), (72, 20), (80, 40), (88, 44)):
        e(f"buffer_load_dwordx4 {vr(base,4)}, v5, s[{srd}:{srd+3}], 0 offen")
        e(f"buffer_load_dwordx4 {vr(base+4,4)}, v5, s[{srd}:{srd+3}], 0 offen offset:16")
    e("v_lshlrev_b32 v3, 13, v1"); e("v_add_u32 v3, s25, v3"); e("v_add_u32 v4, 4096, v3")
    for j in range(8):
        e(f"buffer_load_dword v{200+j}, v{3 if j<4 else 4}, s[12:15], 0 offen offset:{(j%4)*1024}")
    e("v_and_b32 v10, 15, v0")
    e("v_lshlrev_b32 v6, 3, v10"); e("v_cvt_f32_u32 v6, v6")
    def zhi(dst, z):
        e(f"v_lshrrev_b32 v12, 3, v{z}"); e("v_lshlrev_b32 v12, 7, v12"); e(f"v_and_b32 v13, 7, v{z}"); e("v_add_u32 v12, v12, v13")
        e(f"v_cvt_f32_u32 v{dst}, v12")
    zhi(7, 10)
    e("v_lshlrev_b32 v11, 1, v10"); e("v_add_u32 v11, 16, v11"); e("v_lshlrev_b32 v14, 2, v10")
    e("v_cmp_gt_u32 vcc, 8, v10"); e("s_nop 1"); e("v_cndmask_b32 v11, v14, v11, vcc")
    zhi(8, 11)
    e("v_lshlrev_b32 v11, 3, v10"); e("v_add_u32 v11, 64, v11")
    zhi(9, 11)
    for i in range(4): e(f"v_mov_b32 v{16+i}, 0")
    e("v_lshlrev_b32 v12, 4, v1")
    e("v_cmp_gt_u32 vcc, 32, v1"); e("s_and_saveexec_b64 s[30:31], vcc")
    e(f"ds_write_b128 v12, v[16:19] offset:{UT}"); e(f"ds_write_b128 v12, v[16:19] offset:{UT+UTP}")
    e("s_mov_b64 exec, s[30:31]")
    e("v_cmp_gt_u32 vcc, 2, v1"); e("s_and_saveexec_b64 s[30:31], vcc")
    e(f"ds_write_b128 v12, v[16:19] offset:{KLIN}")
    e(f"ds_write_b128 v12, v[16:19] offset:{UT+4608}"); e(f"ds_write_b128 v12, v[16:19] offset:{UT+UTP+4608}")
    e("s_mov_b64 exec, s[30:31]")
    e("v_cmp_gt_u32 vcc, 6, v1"); e("s_and_saveexec_b64 s[30:31], vcc")
    e(f"ds_write_b128 v12, v[16:19] offset:{KLIN+258*16}")
    e("s_mov_b64 exec, s[30:31]")
    e("s_waitcnt lgkmcnt(0)")
    e("s_lshl_b32 s53, s52, 16"); e("s_and_b32 s55, s52, 0xffff0000"); e("s_cmp_eq_u32 s26, 0"); e("s_cselect_b32 s53, s53, s55")
    e("v_mov_b32 v15, s53"); e(f"v_mul_f32 v15, {hex(f32bits(LOG2E))}, v15"); e("v_exp_f32 v15, v15"); e("s_nop 0")
    e("v_cvt_pk_bf16_f32 v15, v15, v15"); e("v_lshlrev_b32 v15, 16, v15")
    e("s_waitcnt vmcnt(8)")
    stamp(k, 1)
    AR2, AI2, C2R, C2I = 96, 112, 128, 144
    e(f"s_mov_b32 s34, {hex(f32bits(LOG2E))}"); e(f"s_mov_b32 s35, {hex(f32bits(-LOG2E))}"); e(f"s_mov_b32 s36, {hex(f32bits(1/(2*3.141592653589793)))}")
    e("v_add_f32 v16, v15, v15")
    for t in range(16):
        def unp(dst, src):
            if t & 1: e(f"v_and_b32 v{dst}, 0xffff0000, v{src + t//2}")
            else: e(f"v_lshlrev_b32 v{dst}, 16, v{src + t//2}")
        unp(AR2+t, 64); unp(AI2+t, 72); unp(C2R+t, 80); unp(C2I+t, 88)
        e(f"v_mul_f32 v{AR2+t}, s34, v{AR2+t}")
        e(f"v_mul_f32 v{AI2+t}, v{AI2+t}, v15")
        e(f"v_exp_f32 v{AR2+t}, v{AR2+t}")
        e(f"v_mul_f32 v{C2R+t}, v{C2R+t}, v16")
        e(f"v_mul_f32 v{C2I+t}, v{C2I+t}, v16")
        e(f"v_cvt_pk_bf16_f32 v{AR2+t}, v{AR2+t}, v{AR2+t}")
        e(f"v_mul_f32 v{AI2+t}, s36, v{AI2+t}")
        e(f"v_lshlrev_b32 v{AR2+t}, 16, v{AR2+t}")
        e(f"v_mul_f32 v{AR2+t}, v{AR2+t}, v15")
        e(f"v_mul_f32 v{AR2+t}, s35, v{AR2+t}")
    stamp(k, 2)
    ACC = 160
    for i in range(12): e(f"v_mov_b32 v{ACC+i}, 0")
    RB = [48, 56]
    def mf(p, j):
        mb = j % 3; part = j // 3
        e(f"v_mfma_f32_16x16x4_f32 {vr(ACC+4*mb,4)}, v{RB[p]+3*part+mb}, v{RB[p]+6+part}, {vr(ACC+4*mb,4)}")
    for t in range(16):
        p = t & 1; prev = (t > 0)
        for c in range(4):
            e(f"v_mul_f32 v{20+c}, v{AR2+t}, v{6+c}")
            e(f"v_mul_f32 v{24+c}, v{AI2+t}, v{6+c}")
        if prev: mf(1-p, 0)
        for c in range(4):
            e(f"v_exp_f32 v{20+c}, v{20+c}")
            e(f"v_fract_f32 v{24+c}, v{24+c}")
        if prev: mf(1-p, 1)
        for c in range(2):
            e(f"v_sin_f32 v{28+c}, v{24+c}")
            e(f"v_cos_f32 v{32+c}, v{24+c}")
        if prev: mf(1-p, 2)
        for c in range(2, 4):
            e(f"v_sin_f32 v{28+c}, v{24+c}")
            e(f"v_cos_f32 v{32+c}, v{24+c}")
        if prev: mf(1-p, 3)
        else: e("s_nop 0")
        e(f"v_mul_f32 v36, v20, v32"); e(f"v_mul_f32 v40, v20, v28")
        for c in range(1, 4):
            e(f"v_mul_f32 v{RB[p]+c-1}, v{20+c}, v{32+c}")
        if prev: mf(1-p, 4)
        for c in range(1, 4):
            e(f"v_mul_f32 v{RB[p]+3+c-1}, v{20+c}, v{28+c}")
        e(f"v_mul_f32 v44, v{C2I+t}, v40")
        e(f"v_mul_f32 v45, v{C2I+t}, v36")
        if prev: mf(1-p, 5)
        e(f"v_fma_f32 v{RB[p]+6}, v{C2R+t}, v36, -v44")
        e(f"v_fma_f32 v{RB[p]+7}, -v{C2R+t}, v40, -v45")
    e("s_nop 1")
    for j in range(6): mf(1, j)
    stamp(k, 4)
    e("s_mov_b32 s32, 0x05040100"); e("s_mov_b32 s33, 0x07060302")
    e("v_lshlrev_b32 v12, 4, v1")
    e("s_waitcnt vmcnt(0)")
    for q in range(4):
        e(f"v_perm_b32 v{208+q}, v{201+2*q}, v{200+2*q}, s32")
        e(f"v_perm_b32 v{212+q}, v{201+2*q}, v{200+2*q}, s33")
    e(f"ds_write_b128 v12, v[208:211] offset:{UT+512}"); e(f"ds_write_b128 v12, v[212:215] offset:{UT+UTP+512}")
    k.nop(16)
    e("v_lshrrev_b32 v12, 4, v0"); e("v_lshlrev_b32 v12, 8, v12"); e("v_lshlrev_b32 v13, 2, v10"); e("v_add_u32 v12, v12, v13")
    e("s_mul_i32 s37, s3, 3072"); e(f"s_add_u32 s37, s37, {KT}"); e("v_add_u32 v12, s37, v12")
    for mb in range(3):
        for r in range(4):
            e(f"ds_write_b32 v12, v{ACC+4*mb+r} offset:{mb*1024+r*64}")
    stamp(k, 5)
    IDX = 176
    e("v_lshlrev_b32 v12, 3, v1"); e("v_sub_u32 v12, 2047, v12")
    for m in range(8):
        e(f"v_subrev_u32 v13, {m}, v12")
        e("v_cvt_f32_u32 v13, v13")
        e("v_cvt_pk_bf16_f32 v13, v13, v13"); e("v_lshlrev_b32 v13, 16, v13"); e("v_cvt_u32_f32 v13, v13")
        e("v_lshrrev_b32 v14, 7, v13"); e("v_lshlrev_b32 v14, 3, v14"); e("v_and_b32 v16, 7, v13"); e("v_or_b32 v14, v14, v16")
        e("v_or_b32 v16, 8, v14"); e("v_ffbh_u32 v16, v16"); e("v_sub_u32 v16, 28, v16")
        e("v_lshrrev_b32 v14, v16, v14"); e("v_lshlrev_b32 v16, 3, v16"); e("v_add_u32 v14, v14, v16")
        e("v_lshrrev_b32 v16, 3, v13"); e("v_and_b32 v16, 15, v16")
        e("v_lshlrev_b32 v14, 4, v14"); e("v_add_u32 v14, v14, v16"); e(f"v_lshlrev_b32 v{IDX+m}, 2, v14")
    e("s_waitcnt lgkmcnt(0)"); e("s_barrier")
    stamp(k, 3)
    e("v_and_b32 v10, 15, v0"); e("v_lshrrev_b32 v11, 4, v0")
    e("v_lshlrev_b32 v12, 3, v11"); e("v_sub_u32 v12, v12, v10"); e(f"v_add_u32 v12, {P}, v12")
    e("v_and_b32 v13, 7, v12"); e("v_sub_u32 v12, v12, v13")
    e(f"s_movk_i32 s38, {KCP}"); e("v_mul_lo_u32 v13, v13, s38"); e("v_lshlrev_b32 v12, 1, v12"); e("v_add_u32 v12, v12, v13")
    e(f"v_add_u32 v184, {KC - 960}, v12")
    e("v_lshlrev_b32 v12, 5, v10"); e("v_lshlrev_b32 v13, 4, v11"); e("v_add_u32 v12, v12, v13")
    e(f"v_add_u32 v185, {UT + 512 - 960}, v12")
    e("v_lshlrev_b32 v186, 4, v1")
    RES = 188
    for ch in range(2):
        for m in range(8):
            e(f"ds_read_b32 v{16+m}, v{IDX+m} offset:{KT + (2*ch)*3072}")
            e(f"ds_read_b32 v{24+m}, v{IDX+m} offset:{KT + (2*ch+1)*3072}")
        e("s_waitcnt lgkmcnt(0)")
        for m in range(8): e(f"v_add_f32 v{16+m}, v{16+m}, v{24+m}")
        for q in range(4): e(f"v_cvt_pk_bf16_f32 v{32+q}, v{16+2*q}, v{17+2*q}")
        e(f"ds_write_b128 v186, v[32:35] offset:{KLIN+32}")
        e("s_waitcnt lgkmcnt(0)"); e("s_barrier")
        def copies(addr):
            e(f"ds_read_b128 v[16:19], v{addr} offset:{KLIN}"); e(f"ds_read_b128 v[20:23], v{addr} offset:{KLIN+16}")
            e("s_waitcnt lgkmcnt(0)")
            for q in range(1, 7): e(f"v_mov_b32 v{25+q}, v{16+q}")
            for q in range(7):
                e(f"v_alignbit_b32 v{32+q}, v{17+q}, v{16+q}, 16")
            for q in range(1, 7): e(f"v_mov_b32 v{41+q}, v{32+q}")
            for s in range(8):
                h = s // 2
                if s % 2 == 0: src = (16+h) if h % 2 == 0 else (25+h)
                else: src = (32+h) if h % 2 == 0 else (41+h)
                e(f"ds_write_b128 v{addr}, {vr(src,4)} offset:{KC + s*KCP}")
        copies(186)
        e("v_cmp_gt_u32 vcc, 6, v1"); e("s_and_saveexec_b64 s[30:31], vcc")
        e("v_add_u32 v187, 4096, v186")
        copies(187)
        e("s_mov_b64 exec, s[30:31]")
        e("s_waitcnt lgkmcnt(0)"); e("s_barrier")
        if ch == 1: stamp(k, 6)
        for blk in range(2):
            if blk == 0: e("s_sub_u32 s39, 7, s3")
            else: e("s_mov_b32 s39, s3")
            acc = RES + 8*ch + 4*blk
            for i in range(4): e(f"v_mov_b32 v{acc+i}, 0")
            e("v_mov_b32 v48, v184")
            e("s_lshl_b32 s40, s39, 9"); e(f"s_add_u32 s40, s40, {ch*UTP}"); e("v_add_u32 v49, s40, v185")
            FB = 64; GB = 80
            def rd(slot, stepoff):
                off = 960 - 64*stepoff
                e(f"ds_read_b128 {vr(FB+4*slot,4)}, v48 offset:{off}")
                e(f"ds_read_b128 {vr(GB+4*slot,4)}, v49 offset:{off}")
            for q in range(4): rd(q, q)
            e("s_mov_b32 s41, 0")
            lc = k.new("CV")
            k.lab(lc)
            for q in range(8):
                e("s_waitcnt lgkmcnt(6)")
                e(f"v_mfma_f32_16x16x32_bf16 {vr(acc,4)}, {vr(FB+4*(q%4),4)}, {vr(GB+4*(q%4),4)}, {vr(acc,4)}")
                rd(q % 4, q + 4)
            e("v_subrev_u32 v48, 512, v48"); e("v_subrev_u32 v49, 512, v49")
            e("s_add_u32 s41, s41, 1"); e("s_cmp_le_u32 s41, s39"); e(f"s_cbranch_scc1 {lc}")
            e("s_waitcnt lgkmcnt(6)")
            e(f"v_mfma_f32_16x16x32_bf16 {vr(acc,4)}, {vr(FB,4)}, {vr(GB,4)}, {vr(acc,4)}")
            e("s_waitcnt lgkmcnt(0)")
        if ch == 0: e("s_barrier")
    stamp(k, 7)
    k.nop(16)
    e("s_lshl_b32 s42, s54, 16"); e("s_and_b32 s43, s54, 0xffff0000")
    e("s_movk_i32 s44, 4096")
    for blk in range(2):
        if blk == 0: e("s_sub_u32 s39, 7, s3")
        else: e("s_mov_b32 s39, s3")
        e("v_lshlrev_b32 v12, 4, v10"); e("v_lshlrev_b32 v13, 2, v11"); e("v_add_u32 v12, v12, v13")
        e("s_lshl_b32 s40, s39, 8"); e("v_add_u32 v12, s40, v12")
        e("v_lshlrev_b32 v13, 1, v12")
        e(f"ds_read_b64 v[16:17], v13 offset:{UT+512}"); e(f"ds_read_b64 v[18:19], v13 offset:{UT+UTP+512}")
        e("v_lshlrev_b32 v14, 11, v12"); e("v_add_u32 v14, s25, v14")
        e("s_waitcnt lgkmcnt(0)")
        for r in range(4):
            for ch in range(2):
                src = 16 + 2*ch + r//2
                if r & 1: e(f"v_and_b32 v{20+ch}, 0xffff0000, v{src}")
                else: e(f"v_lshlrev_b32 v{20+ch}, 16, v{src}")
                e(f"v_mul_f32 v{20+ch}, s{42+ch}, v{20+ch}")
            e(f"v_cvt_pk_bf16_f32 v22, v20, v21")
            e(f"v_cvt_pk_bf16_f32 v23, v{RES+4*blk+r}, v{RES+8+4*blk+r}")
            e("v_lshlrev_b32 v24, 16, v22"); e("v_and_b32 v25, 0xffff0000, v22")
            e("v_lshlrev_b32 v26, 16, v23"); e("v_and_b32 v27, 0xffff0000, v23")
            e("v_add_f32 v24, v24, v26"); e("v_add_f32 v25, v25, v27")
            e(f"v_cvt_pk_bf16_f32 v{28+r}, v24, v25")
            so = "0" if r < 2 else "s44"
            e(f"buffer_store_dword v{28+r}, v14, s[48:51], {so} offen offset:{(r%2)*2048}")
    if PROF: e("s_waitcnt vmcnt(0)")
    stamp_out(k, 8)
    return k, 216, (256, 256, LDS)

KERNELS["ssm"] = ssm
```

```python
from gen import K, vr, f32bits, MB, LOG2E, WS_UT, WS_KL, WS_SIZE
import gen_more as GM

PREP_LDS = 12288 + 12288 + 9216
def prep_body(k):
    e = k.e; stamp = GM.stamp; PROF = GM.PROF
    KT = 0; TT = 12288
    e("s_load_dwordx4 s[56:59], s[0:1], 0")
    e("s_load_dwordx4 s[60:63], s[0:1], 16")
    e("s_load_dwordx4 s[64:67], s[0:1], 32")
    e("s_load_dwordx2 s[70:71], s[0:1], 96")
    e("v_mov_b32 v1, v0")
    e("v_lshrrev_b32 v2, 6, v0")
    e("v_and_b32 v0, 63, v0")
    e("s_nop 0")
    e("v_readfirstlane_b32 s3, v2")
    e("s_and_b32 s24, s2, 7"); e("s_lshl_b32 s24, s24, 5"); e("s_lshr_b32 s25, s2, 3"); e("s_add_u32 s24, s24, s25")
    e("s_lshl_b32 s24, s24, 1")
    e("s_lshl_b32 s25, s24, 1")
    e("s_waitcnt lgkmcnt(0)")
    k.srd(12, 56, 2*MB); k.srd(16, 58, 131072); k.srd(20, 60, 131072); k.srd(40, 62, 131072); k.srd(44, 64, 131072); k.srd(48, 70, WS_SIZE)
    e("s_add_u32 s66, s66, s25"); e("s_addc_u32 s67, s67, 0")
    e("s_load_dword s52, s[66:67], 0")
    e("s_lshr_b32 s26, s3, 1"); e("s_and_b32 s27, s3, 1")
    e("s_add_u32 s28, s24, s26"); e("s_lshl_b32 s28, s28, 8"); e("s_lshl_b32 s29, s27, 7"); e("s_add_u32 s28, s28, s29")
    e("v_lshrrev_b32 v5, 4, v0"); e("v_lshlrev_b32 v5, 5, v5"); e("v_add_u32 v5, s28, v5")
    for base, srd in ((64, 16), (72, 20), (80, 40), (88, 44)):
        e(f"buffer_load_dwordx4 {vr(base,4)}, v5, s[{srd}:{srd+3}], 0 offen")
        e(f"buffer_load_dwordx4 {vr(base+4,4)}, v5, s[{srd}:{srd+3}], 0 offen offset:16")
    e("s_lshr_b32 s30, s2, 3"); e("s_and_b32 s31, s2, 7")
    e("v_lshrrev_b32 v3, 2, v1"); e("s_lshl_b32 s32, s30, 6"); e("v_add_u32 v4, s32, v3"); e("v_lshlrev_b32 v4, 10, v4")
    e("v_and_b32 v16, 3, v1"); e("v_lshlrev_b32 v16, 5, v16"); e("v_add_u32 v4, v4, v16")
    e("s_lshl_b32 s32, s31, 7")
    e("buffer_load_dwordx4 v[200:203], v4, s[12:15], s32 offen")
    e("buffer_load_dwordx4 v[204:207], v4, s[12:15], s32 offen offset:16")
    e("v_mul_u32_u24 v3, 192, v3"); e("v_add_u32 v3, v3, v16")
    e("v_and_b32 v14, 15, v0")
    e("v_lshlrev_b32 v6, 3, v14"); e("v_cvt_f32_u32 v6, v6"); e("v_mov_b32 v7, v6")
    def zhi(dst, z):
        e(f"v_lshrrev_b32 v16, 3, v{z}"); e("v_lshlrev_b32 v16, 7, v16"); e(f"v_and_b32 v17, 7, v{z}"); e("v_add_u32 v16, v16, v17")
        e(f"v_cvt_f32_u32 v{dst}, v16"); e(f"v_mov_b32 v{dst+1}, v{dst}")
    zhi(8, 14)
    e("v_lshlrev_b32 v15, 1, v14"); e("v_add_u32 v15, 16, v15"); e("v_lshlrev_b32 v18, 2, v14")
    e("v_cmp_gt_u32 vcc, 8, v14"); e("s_nop 1"); e("v_cndmask_b32 v15, v18, v15, vcc")
    zhi(10, 15)
    e("v_lshlrev_b32 v15, 3, v14"); e("v_add_u32 v15, 64, v15")
    zhi(12, 15)
    e("v_lshlrev_b32 v186, 4, v1")
    IDX = 176
    e("v_lshlrev_b32 v20, 3, v1"); e("v_sub_u32 v20, 2047, v20")
    e("s_mov_b32 s37, 0")
    li = k.new("IX"); k.lab(li)
    e("v_cvt_f32_u32 v21, v20")
    e("v_cvt_pk_bf16_f32 v21, v21, v21"); e("v_lshlrev_b32 v21, 16, v21"); e("v_cvt_u32_f32 v21, v21")
    e("v_lshrrev_b32 v22, 7, v21"); e("v_lshlrev_b32 v22, 3, v22"); e("v_and_b32 v23, 7, v21"); e("v_or_b32 v22, v22, v23")
    e("v_or_b32 v23, 8, v22"); e("v_ffbh_u32 v23, v23"); e("v_sub_u32 v23, 28, v23")
    e("v_lshrrev_b32 v22, v23, v22"); e("v_lshlrev_b32 v23, 3, v23"); e("v_add_u32 v22, v22, v23")
    e("v_lshrrev_b32 v23, 3, v21"); e("v_and_b32 v23, 15, v23")
    e("v_lshlrev_b32 v22, 4, v22"); e("v_add_u32 v22, v22, v23"); e("v_lshlrev_b32 v22, 2, v22")
    e("s_set_gpr_idx_on s37, gpr_idx(DST)")
    e("s_nop 0")
    e(f"v_mov_b32 v{IDX}, v22")
    e("s_set_gpr_idx_off")
    e("v_subrev_u32 v20, 1, v20")
    e("s_add_u32 s37, s37, 1"); e("s_cmp_lt_u32 s37, 8"); e(f"s_cbranch_scc1 {li}")
    e("s_waitcnt lgkmcnt(0)")
    e("s_lshl_b32 s53, s52, 16"); e("s_and_b32 s55, s52, 0xffff0000"); e("s_cmp_eq_u32 s26, 0"); e("s_cselect_b32 s53, s53, s55")
    e("v_mov_b32 v15, s53"); e(f"v_mul_f32 v15, {hex(f32bits(LOG2E))}, v15"); e("v_exp_f32 v15, v15"); e("s_nop 0")
    e("v_cvt_pk_bf16_f32 v15, v15, v15"); e("v_lshlrev_b32 v15, 16, v15")
    e(f"s_mov_b32 s34, {hex(f32bits(LOG2E))}"); e(f"s_mov_b32 s35, {hex(f32bits(-LOG2E))}"); e(f"s_mov_b32 s36, {hex(f32bits(1/(2*3.141592653589793)))}")
    e("v_add_f32 v16, v15, v15")
    e("s_waitcnt vmcnt(0)")
    e(f"ds_write_b128 v3, v[200:203] offset:{TT}"); e(f"ds_write_b128 v3, v[204:207] offset:{TT+16}")
    stamp(k, 1)
    e("s_waitcnt lgkmcnt(0)"); e("s_barrier")
    stamp(k, 2)
    e("v_lshrrev_b32 v20, 2, v14"); e("s_lshl_b32 s37, s3, 4"); e("v_add_u32 v20, s37, v20"); e("v_mul_u32_u24 v20, 192, v20")
    e("v_lshrrev_b32 v21, 4, v0"); e("v_lshlrev_b32 v21, 5, v21"); e("v_add_u32 v20, v20, v21")
    e("v_and_b32 v21, 3, v0"); e("v_lshlrev_b32 v21, 3, v21"); e("v_add_u32 v20, v20, v21")
    for rho in range(2):
        for hs in range(2):
            e(f"ds_read_b64_tr_b16 v[{200+4*rho+2*hs}:{201+4*rho+2*hs}], v20 offset:{TT + (8*rho+4*hs)*192}")
    T2 = TT + 12288
    e("v_mul_u32_u24 v21, 144, v0"); e("s_lshl_b32 s38, s3, 5"); e("v_add_u32 v21, s38, v21")
    e("s_waitcnt lgkmcnt(0)")
    e(f"ds_write_b128 v21, v[200:203] offset:{T2}"); e(f"ds_write_b128 v21, v[204:207] offset:{T2+16}")
    e("s_waitcnt lgkmcnt(0)"); e("s_barrier")
    e("v_lshrrev_b32 v20, 2, v1"); e("v_mul_u32_u24 v21, 144, v20"); e("v_and_b32 v22, 3, v1"); e("v_lshlrev_b32 v22, 5, v22"); e("v_add_u32 v21, v21, v22")
    e(f"ds_read_b128 v[200:203], v21 offset:{T2}"); e(f"ds_read_b128 v[204:207], v21 offset:{T2+16}")
    e("v_lshlrev_b32 v20, 12, v20"); e("v_add_u32 v21, v20, v22")
    e("s_lshl_b32 s37, s31, 18"); e("s_lshl_b32 s38, s30, 7"); e("s_add_u32 s37, s37, s38")
    e(f"s_add_u32 s37, s37, {WS_UT}")
    e("s_waitcnt lgkmcnt(0)")
    e("buffer_store_dwordx4 v[200:203], v21, s[48:51], s37 offen")
    e("buffer_store_dwordx4 v[204:207], v21, s[48:51], s37 offen offset:16")
    ACC = 160
    for i in range(12): e(f"v_mov_b32 v{ACC+i}, 0")
    fr = 40; AP, CP = 96, 98; RW = 100
    e("s_mov_b32 s37, 0")
    lk = k.new("KG"); k.lab(lk)
    e("s_set_gpr_idx_on s37, gpr_idx(SRC0)"); e("s_nop 0")
    for ai, src in enumerate((64, 72, 80, 88)):
        e(f"v_mov_b32 v{RW+2*ai}, v{src}"); e(f"v_mov_b32 v{RW+2*ai+1}, v{src+1}")
    e("s_set_gpr_idx_off")
    for j in range(4):
        def unp(dst, ai):
            r = RW + 2*ai + j//2
            if j & 1: e(f"v_and_b32 v{dst}, 0xffff0000, v{r}")
            else: e(f"v_lshlrev_b32 v{dst}, 16, v{r}")
        a, b, c, d = AP, AP+1, CP, CP+1
        unp(a, 0); unp(b, 1); unp(c, 2); unp(d, 3)
        e(f"v_mul_f32 v{a}, s34, v{a}"); e(f"v_mul_f32 v{b}, v{b}, v15"); e(f"v_exp_f32 v{a}, v{a}")
        e(f"v_mul_f32 v{c}, v{c}, v16"); e(f"v_mul_f32 v{d}, v{d}, v16")
        e(f"v_cvt_pk_bf16_f32 v{a}, v{a}, v{a}"); e(f"v_mul_f32 v{b}, s36, v{b}")
        e(f"v_lshlrev_b32 v{a}, 16, v{a}"); e(f"v_mul_f32 v{a}, v{a}, v15"); e(f"v_mul_f32 v{a}, s35, v{a}")
        for c_ in range(4):
            e(f"v_pk_mul_f32 v[{20+2*c_}:{21+2*c_}], v[{AP}:{AP+1}], v[{6+2*c_}:{7+2*c_}]")
        for c_ in range(4):
            e(f"v_exp_f32 v{20+2*c_}, v{20+2*c_}")
            e(f"v_fract_f32 v{21+2*c_}, v{21+2*c_}")
        for c_ in range(4):
            e(f"v_cos_f32 v{28+2*c_}, v{21+2*c_}")
            e(f"v_sin_f32 v{29+2*c_}, v{21+2*c_}")
        e("s_nop 0")
        for c_ in range(4):
            e(f"v_pk_mul_f32 v[{28+2*c_}:{29+2*c_}], v[{28+2*c_}:{29+2*c_}], v[{20+2*c_}:{21+2*c_}] op_sel_hi:[1,0]")
        for mb in range(3):
            e(f"v_cvt_pk_bf16_f32 v{fr+4+4*mb+j}, v{30+2*mb}, v{31+2*mb}")
        e(f"v_mul_f32 v36, v{CP+1}, v29")
        e(f"v_mul_f32 v37, v{CP+1}, v28")
        e(f"v_fma_f32 v36, v{CP}, v28, -v36")
        e(f"v_fma_f32 v37, -v{CP}, v29, -v37")
        e(f"v_cvt_pk_bf16_f32 v{fr+j}, v36, v37")
    e("s_add_u32 s37, s37, 2"); e("s_cmp_lt_u32 s37, 8")
    for mb in range(3):
        e(f"v_mfma_f32_16x16x32_bf16 {vr(ACC+4*mb,4)}, {vr(fr+4+4*mb,4)}, {vr(fr,4)}, {vr(ACC+4*mb,4)}")
    e(f"s_cbranch_scc1 {lk}")
    stamp(k, 3)
    k.nop(8)
    e("v_lshrrev_b32 v20, 4, v0"); e("v_lshlrev_b32 v20, 8, v20"); e("v_lshlrev_b32 v21, 2, v14"); e("v_add_u32 v20, v20, v21")
    e("s_mul_i32 s37, s3, 3072"); e("v_add_u32 v20, s37, v20")
    for mb in range(3):
        for r in range(4):
            e(f"ds_write_b32 v20, v{ACC+4*mb+r} offset:{KT+mb*1024+r*64}")
    e("s_waitcnt lgkmcnt(0)")
    stamp(k, 5)
    e("s_barrier")
    stamp(k, 6)
    for ch in range(2):
        for m in range(8):
            e(f"ds_read_b32 v{16+8*ch+m}, v{IDX+m} offset:{KT+2*ch*3072}")
            e(f"ds_read_b32 v{64+8*ch+m}, v{IDX+m} offset:{KT+(2*ch+1)*3072}")
    e("s_lshl_b32 s37, s24, 12"); e(f"s_add_u32 s37, s37, {WS_KL}")
    e("s_waitcnt lgkmcnt(0)")
    for i in range(16): e(f"v_add_f32 v{16+i}, v{16+i}, v{64+i}")
    for ch in range(2):
        for q in range(4): e(f"v_cvt_pk_bf16_f32 v{32+4*ch+q}, v{16+8*ch+2*q}, v{17+8*ch+2*q}")
    e("buffer_store_dwordx4 v[32:35], v186, s[48:51], s37 offen")
    e("s_add_u32 s37, s37, 4096")
    e("buffer_store_dwordx4 v[36:39], v186, s[48:51], s37 offen")
    stamp(k, 7)
    if PROF: e("s_waitcnt vmcnt(0)")
    stamp(k, 4)

CONV_LDS = 1024 + 2*4640 + 2*34304
def conv_body(k):
    e = k.e; stamp = GM.stamp; PROF = GM.PROF
    UT = 1024; UTP = 4640; KC = UT + 2*UTP; KCP = 4288; KCC = 34304
    P = 2063
    e("s_load_dwordx2 s[68:69], s[0:1], 48")
    e("s_load_dwordx2 s[70:71], s[0:1], 80")
    e("s_load_dwordx2 s[56:57], s[0:1], 96")
    e("v_mov_b32 v1, v0")
    e("v_lshrrev_b32 v2, 6, v0")
    e("v_and_b32 v0, 63, v0")
    e("s_nop 0")
    e("v_readfirstlane_b32 s3, v2")
    e("s_and_b32 s24, s2, 7"); e("s_lshl_b32 s24, s24, 5"); e("s_lshr_b32 s25, s2, 3"); e("s_add_u32 s24, s24, s25")
    e("s_lshl_b32 s24, s24, 1"); e("s_lshl_b32 s25, s24, 1")
    e("s_waitcnt lgkmcnt(0)")
    k.srd(48, 70, 4*MB); k.srd(12, 56, WS_SIZE)
    e("s_add_u32 s68, s68, s25"); e("s_addc_u32 s69, s69, 0"); e("s_load_dword s54, s[68:69], 0")
    e("s_lshl_b32 s26, s24, 12"); e(f"s_add_u32 s26, s26, {WS_KL}")
    for ch in range(2):
        b = 16 + 4*ch
        e(f"s_add_u32 s{b}, s56, s26"); e(f"s_addc_u32 s{b+1}, s57, 0"); e(f"s_and_b32 s{b+1}, s{b+1}, 0xffff")
        e(f"s_mov_b32 s{b+2}, 4096"); e(f"s_mov_b32 s{b+3}, 0x00020000")
        if ch == 0: e("s_add_u32 s26, s26, 4096")
    e("v_lshlrev_b32 v186, 4, v1")
    e("v_subrev_u32 v3, 32, v186")
    e("v_add_u32 v4, 4096, v3")
    for ch in range(2):
        e(f"buffer_load_dwordx4 {vr(64+8*ch,4)}, v3, s[{16+4*ch}:{19+4*ch}], 0 offen")
        e(f"buffer_load_dwordx4 {vr(68+8*ch,4)}, v3, s[{16+4*ch}:{19+4*ch}], 0 offen offset:16")
    e("s_lshl_b32 s27, s24, 12"); e(f"s_add_u32 s27, s27, {WS_UT}")
    e("buffer_load_dwordx4 v[200:203], v186, s[12:15], s27 offen")
    e("s_add_u32 s27, s27, 4096")
    e("buffer_load_dwordx4 v[204:207], v186, s[12:15], s27 offen")
    for ch in range(2):
        e(f"buffer_load_dwordx4 {vr(80+8*ch,4)}, v4, s[{16+4*ch}:{19+4*ch}], 0 offen")
        e(f"buffer_load_dwordx4 {vr(84+8*ch,4)}, v4, s[{16+4*ch}:{19+4*ch}], 0 offen offset:16")
    for i in range(4): e(f"v_mov_b32 v{16+i}, 0")
    e("v_cmp_gt_u32 vcc, 32, v1"); e("s_and_saveexec_b64 s[30:31], vcc")
    e(f"ds_write_b128 v186, v[16:19] offset:{UT}"); e(f"ds_write_b128 v186, v[16:19] offset:{UT+UTP}")
    e("s_mov_b64 exec, s[30:31]")
    e("v_cmp_gt_u32 vcc, 2, v1"); e("s_and_saveexec_b64 s[30:31], vcc")
    e(f"ds_write_b128 v186, v[16:19] offset:{UT+4608}"); e(f"ds_write_b128 v186, v[16:19] offset:{UT+UTP+4608}")
    e("s_mov_b64 exec, s[30:31]")
    e("v_and_b32 v14, 15, v0"); e("v_lshrrev_b32 v11, 4, v0")
    e("v_lshlrev_b32 v12, 3, v11"); e("v_sub_u32 v12, v12, v14"); e(f"v_add_u32 v12, {P}, v12")
    e("v_and_b32 v13, 7, v12"); e("v_sub_u32 v12, v12, v13")
    e(f"s_movk_i32 s38, {KCP}"); e("v_mul_lo_u32 v13, v13, s38"); e("v_lshlrev_b32 v12, 1, v12"); e("v_add_u32 v12, v12, v13")
    e(f"v_add_u32 v184, {KC - 960}, v12")
    e("v_lshlrev_b32 v12, 5, v14"); e("v_lshlrev_b32 v13, 4, v11"); e("v_add_u32 v12, v12, v13")
    e(f"v_add_u32 v185, {UT + 512 - 960}, v12")
    e("v_add_u32 v187, 4096, v186")
    def copies(addr, src, ch):
        if ch: e(f"v_add_u32 v50, {KCC}, v{addr}"); addr = 50
        for q in range(1, 7): e(f"v_mov_b32 v{25+q}, v{src+q}")
        for q in range(7): e(f"v_alignbit_b32 v{32+q}, v{src+1+q}, v{src+q}, 16")
        for q in range(1, 7): e(f"v_mov_b32 v{41+q}, v{32+q}")
        for s in range(8):
            h = s // 2
            if s % 2 == 0: r = (src+h) if h % 2 == 0 else (25+h)
            else: r = (32+h) if h % 2 == 0 else (41+h)
            e(f"ds_write_b128 v{addr}, {vr(r,4)} offset:{KC + s*KCP}")
    e("s_waitcnt vmcnt(6)")
    stamp(k, 1)
    copies(186, 64, 0); copies(186, 72, 1)
    e("s_waitcnt vmcnt(4)")
    e(f"ds_write_b128 v186, v[200:203] offset:{UT+512}"); e(f"ds_write_b128 v186, v[204:207] offset:{UT+UTP+512}")
    e("s_waitcnt vmcnt(0)")
    e("v_cmp_gt_u32 vcc, 6, v1"); e("s_and_saveexec_b64 s[30:31], vcc")
    copies(187, 80, 0); copies(187, 88, 1)
    e("s_mov_b64 exec, s[30:31]")
    e("s_waitcnt lgkmcnt(0)"); e("s_barrier")
    stamp(k, 2)
    RES = 188
    e("s_lshl_b32 s42, s54, 16"); e("s_and_b32 s43, s54, 0xffff0000")
    e("s_movk_i32 s44, 4096")
    for blk in range(2):
        if blk == 0: e("s_sub_u32 s39, 7, s3")
        else: e("s_mov_b32 s39, s3")
        for ch in range(2):
            acc = RES + 8*ch + 4*blk
            for i in range(4): e(f"v_mov_b32 v{acc+i}, 0")
            e(f"v_add_u32 v48, {ch*KCC}, v184")
            e("s_lshl_b32 s40, s39, 9"); e(f"s_add_u32 s40, s40, {ch*UTP}"); e("v_add_u32 v49, s40, v185")
            FB = 64; GB = 80
            def rd(slot, stepoff):
                off = 960 - 64*stepoff
                e(f"ds_read_b128 {vr(FB+4*slot,4)}, v48 offset:{off}")
                e(f"ds_read_b128 {vr(GB+4*slot,4)}, v49 offset:{off}")
            for q in range(4): rd(q, q)
            e("s_mov_b32 s41, 0")
            lc = k.new("CV"); k.lab(lc)
            for q in range(8):
                e("s_waitcnt lgkmcnt(6)")
                e(f"v_mfma_f32_16x16x32_bf16 {vr(acc,4)}, {vr(FB+4*(q%4),4)}, {vr(GB+4*(q%4),4)}, {vr(acc,4)}")
                rd(q % 4, q + 4)
            e("v_subrev_u32 v48, 512, v48"); e("v_subrev_u32 v49, 512, v49")
            e("s_add_u32 s41, s41, 1"); e("s_cmp_le_u32 s41, s39"); e(f"s_cbranch_scc1 {lc}")
            e("s_waitcnt lgkmcnt(6)")
            e(f"v_mfma_f32_16x16x32_bf16 {vr(acc,4)}, {vr(FB,4)}, {vr(GB,4)}, {vr(acc,4)}")
            e("s_waitcnt lgkmcnt(0)")
        e("v_lshlrev_b32 v12, 4, v14"); e("v_lshlrev_b32 v13, 2, v11"); e("v_add_u32 v12, v12, v13")
        e("s_lshl_b32 s40, s39, 8"); e("v_add_u32 v12, s40, v12")
        e("v_lshlrev_b32 v13, 1, v12")
        e(f"ds_read_b64 v[16:17], v13 offset:{UT+512}"); e(f"ds_read_b64 v[18:19], v13 offset:{UT+UTP+512}")
        e("v_lshlrev_b32 v15, 11, v12"); e("v_add_u32 v15, s25, v15")
        k.nop(6)
        e("s_waitcnt lgkmcnt(0)")
        for r in range(4):
            for ch in range(2):
                src = 16 + 2*ch + r//2
                if r & 1: e(f"v_and_b32 v{20+ch}, 0xffff0000, v{src}")
                else: e(f"v_lshlrev_b32 v{20+ch}, 16, v{src}")
                e(f"v_mul_f32 v{20+ch}, s{42+ch}, v{20+ch}")
            e("v_cvt_pk_bf16_f32 v22, v20, v21")
            e(f"v_cvt_pk_bf16_f32 v23, v{RES+4*blk+r}, v{RES+8+4*blk+r}")
            e("v_lshlrev_b32 v24, 16, v22"); e("v_and_b32 v25, 0xffff0000, v22")
            e("v_lshlrev_b32 v26, 16, v23"); e("v_and_b32 v27, 0xffff0000, v23")
            e("v_add_f32 v24, v24, v26"); e("v_add_f32 v25, v25, v27")
            e(f"v_cvt_pk_bf16_f32 v{28+4*blk+r}, v24, v25")
            so = "0" if r < 2 else "s44"
            e(f"buffer_store_dword v{28+4*blk+r}, v15, s[48:51], {so} offen offset:{(r%2)*2048}")
        if blk == 0: stamp(k, 3)
    if PROF: e("s_waitcnt vmcnt(0)")
    stamp(k, 4)

def mk(name, body, lds):
    def f():
        k = K(name); e = k.e
        e("s_cmp_ge_u32 s2, 256"); e(f"s_cbranch_scc1 {k.name}_end")
        if GM.PROF: e("s_memrealtime s[88:89]")
        GM.stamp(k, 0)
        body(k)
        GM.stamp_out(k, 8)
        return k, 224, (256, 256, lds)
    return f
KERNELS = {"prep": mk("prep_kernel", prep_body, PREP_LDS), "conv": mk("conv_kernel", conv_body, CONV_LDS)}

def merged(name, first, second, lds, vg):
    def f():
        import gen
        k = K(name); e = k.e
        l2 = k.new("SECOND")
        e("s_cmp_ge_u32 s2, 512"); e(f"s_cbranch_scc1 {k.name}_end")
        import os
        if os.environ.get("ROLE", "0") == "1":
            e("s_and_b32 s4, s2, 8")
            e("s_lshr_b32 s5, s2, 4"); e("s_lshl_b32 s5, s5, 3"); e("s_and_b32 s2, s2, 7"); e("s_or_b32 s2, s2, s5")
            e("s_cmp_lg_u32 s4, 0"); e(f"s_cbranch_scc1 {l2}")
            first(k)
            e("s_endpgm")
            k.lab(l2)
        else:
            e("s_cmp_lt_u32 s2, 256"); e(f"s_cbranch_scc1 {l2}")
            e("s_sub_u32 s2, s2, 256")
            if name == "l1_kernel": e("s_setprio 3")
            first(k)
            e("s_endpgm")
            k.lab(l2)
        if GM.PROF: e("s_memrealtime s[88:89]")
        GM.stamp(k, 0)
        second(k)
        if os.environ.get('G1BASE','64') == '64': GM.stamp_out(k, 8)
        return k, vg, (512, 256, lds)
    return f
import gen
KERNELS["l1"] = merged("l1_kernel", gen.gemm1, prep_body, max(57344, PREP_LDS), 224)
KERNELS["l3"] = merged("l3_kernel", GM.gemm2, conv_body, max(65536, CONV_LDS), 224)
```

```python
import os
from gen import K, vr, f32bits, MB, WS_Q, WS_K, WS_V, WS_O, WS_KM, WS_UT, WS_KL, WS_SIZE, LOG2E
import gen_more as GM

def attn2_body(k):
    e = k.e; stamp = GM.stamp
    e("s_load_dwordx2 s[8:9], s[0:1], 96")
    e("v_lshrrev_b32 v1, 6, v0")
    e("v_and_b32 v0, 63, v0")
    e("s_nop 0")
    e("v_readfirstlane_b32 s3, v1")
    e("s_and_b32 s24, s2, 7"); e("s_lshl_b32 s24, s24, 2")
    e("s_lshr_b32 s25, s2, 3"); e("s_and_b32 s25, s25, 3"); e("s_add_u32 s24, s24, s25")
    e("s_lshr_b32 s25, s2, 5")
    e("s_waitcnt lgkmcnt(0)")
    k.srd(20, 8, WS_SIZE)
    e("v_lshlrev_b32 v2, 4, v0")
    e("s_lshl_b32 s26, s25, 3"); e("s_add_u32 s26, s26, s3")
    e("s_lshl_b32 s27, s24, 6"); e("s_add_u32 s27, s27, s26"); e("s_lshl_b32 s27, s27, 10")
    QF = 4
    e(f"buffer_load_dwordx4 {vr(QF,4)}, v2, s[20:23], s27 offen")
    e("v_lshlrev_b32 v8, 2, v0")
    e("s_lshl_b32 s28, s24, 8"); e(f"s_add_u32 s28, s28, {WS_KM}")
    e("buffer_load_dword v11, v8, s[20:23], s28 offen")
    e("s_lshl_b32 s28, s24, 16")
    e("s_lshl_b32 s29, s3, 11")
    e("s_add_u32 s31, s29, s28"); e(f"s_add_u32 s31, s31, {WS_K}")
    e("s_mov_b32 s30, s29")
    e("s_mov_b32 s38, 0")
    ld = k.new("DMA"); k.lab(ld)
    for j in range(2):
        e(f"s_add_u32 s39, s30, {j*1024}"); e("s_mov_b32 m0, s39"); e(f"s_add_u32 s40, s31, {j*1024}")
        e("buffer_load_dwordx4 v2, s[20:23], s40 offen lds")
    e("s_add_u32 s30, s30, 16384"); e("s_add_u32 s31, s31, 16384")
    e("s_add_u32 s38, s38, 1"); e("s_cmp_lt_u32 s38, 4"); e(f"s_cbranch_scc1 {ld}")
    S = [16, 32]; CM = 48; O = 64; KB = [80, 84]; P = 88; VB = [96, 104, 112, 120]; MX = 15
    e("v_and_b32 v3, 15, v0"); e("v_lshlrev_b32 v3, 4, v3")
    e("v_lshrrev_b32 v8, 5, v0"); e("v_lshlrev_b32 v8, 8, v8"); e("v_add_u32 v3, v3, v8")
    e("v_and_b32 v8, 31, v0")
    e("v_cmp_eq_u32 s[32:33], 16, v8"); e("v_cmp_eq_u32 s[34:35], 20, v8")
    e("s_or_b64 s[32:33], s[32:33], s[34:35]")
    e("v_mov_b32 v9, 0x3f803f80")
    e("s_nop 0")
    e("v_cndmask_b32 v9, 0, v9, s[32:33]")
    for i in range(32): e(f"v_mov_b32 v{96+i}, v9")
    e("s_mov_b32 s36, 0x0000ffff"); e("s_mov_b32 s37, 0x0000ffff")
    e(f"s_add_u32 s44, s28, {WS_V}")
    def vload(slot):
        e("s_mov_b64 exec, s[36:37]")
        e(f"buffer_load_dwordx4 {vr(VB[slot],4)}, v3, s[20:23], s43 offen")
        e(f"buffer_load_dwordx4 {vr(VB[slot]+4,4)}, v3, s[20:23], s43 offen offset:512")
        e("s_mov_b64 exec, -1")
        e("s_add_u32 s43, s43, 1024")
    e("s_mov_b32 s43, s44")
    for i in range(3): vload(i)
    e("s_waitcnt vmcnt(14)")
    e("v_mov_b32 v12, 0")
    for i in range(4): e(f"v_dot2c_f32_bf16 v12, v{QF+i}, v{QF+i}")
    for mod in ("quad_perm:[1,0,3,2]", "quad_perm:[2,3,0,1]", "row_half_mirror", "row_mirror"):
        k.nop(2)
        e(f"v_max_f32_dpp v11, v11, v11 {mod} row_mask:0xf bank_mask:0xf")
    e("v_mov_b32 v13, v11"); e("v_mov_b32 v14, v12")
    k.nop(2)
    e("v_permlane16_swap_b32 v11, v13"); e("v_permlane32_swap_b32 v12, v14")
    k.nop(2)
    e("v_max_f32 v11, v11, v13"); e("v_add_f32 v12, v12, v14")
    e("v_mov_b32 v13, v11")
    k.nop(2)
    e("v_permlane32_swap_b32 v11, v13")
    k.nop(2)
    e("v_max_f32 v11, v11, v13")
    e("v_mul_f32 v12, v12, v11"); e("v_sqrt_f32 v12, v12"); e("s_nop 0")
    e(f"v_mul_f32 v{MX}, {hex(f32bits(-1.01))}, v12")
    for i in range(16): e(f"v_mov_b32 v{CM+i}, v{MX}")
    lstart = k.new("P2S"); lep = k.new("EPI")
    e("s_mov_b32 s41, 63")
    e("s_waitcnt vmcnt(12)"); e("s_barrier")
    stamp(k, 1)
    k.lab(lstart)
    for i in range(16): e(f"v_mov_b32 v{O+i}, 0")
    e("v_mov_b32 v10, v2")
    e(f"ds_read_b128 {vr(KB[0],4)}, v10")
    e("s_waitcnt lgkmcnt(0)")
    e(f"v_mfma_f32_32x32x16_bf16 {vr(S[0],16)}, {vr(KB[0],4)}, {vr(QF,4)}, {vr(CM,16)}")
    e(f"ds_read_b128 {vr(KB[1],4)}, v10 offset:1024")
    k.nop(10)
    e("s_mov_b32 s38, 0")
    l2 = k.new("P2"); k.lab(l2)
    lnb = k.new("NB"); lbb = k.new("BB")
    e("s_and_b32 s39, s38, s41"); e("s_cmp_eq_u32 s39, 4"); e(f"s_cbranch_scc1 {lbb}")
    k.lab(lnb)
    for t in range(4):
        p = t & 1
        e("s_waitcnt lgkmcnt(0)")
        e(f"v_mfma_f32_32x32x16_bf16 {vr(S[1-p],16)}, {vr(KB[1-p],4)}, {vr(QF,4)}, {vr(CM,16)}")
        e(f"ds_read_b128 {vr(KB[p],4)}, v10 offset:{2048 + t*1024}")
        vload((t+3) & 3)
        for i in range(12): e(f"v_exp_f32 v{S[p]+i}, v{S[p]+i}")
        for i in range(4): e(f"v_cvt_pk_bf16_f32 v{P+i}, v{S[p]+2*i}, v{S[p]+2*i+1}")
        for i in range(12, 16): e(f"v_exp_f32 v{S[p]+i}, v{S[p]+i}")
        e("s_waitcnt vmcnt(6)")
        e(f"v_mfma_f32_32x32x16_bf16 {vr(O,16)}, {vr(VB[t],4)}, {vr(P,4)}, {vr(O,16)}")
        for i in range(4, 8): e(f"v_cvt_pk_bf16_f32 v{P+i}, v{S[p]+2*i}, v{S[p]+2*i+1}")
        k.nop(2)
        e(f"v_mfma_f32_32x32x16_bf16 {vr(O,16)}, {vr(VB[t]+4,4)}, {vr(P+4,4)}, {vr(O,16)}")
    e("v_add_u32 v10, 4096, v10")
    e("s_add_u32 s38, s38, 4"); e("s_cmp_lt_u32 s38, 64"); e(f"s_cbranch_scc1 {l2}")
    stamp(k, 2)
    k.nop(16)
    e(f"v_cmp_gt_f32 vcc, {hex(f32bits(2.0**-60))}, v{O+8}")
    e("s_waitcnt vmcnt(0) lgkmcnt(0)")
    e("s_cmp_eq_u32 s41, 0"); e(f"s_cbranch_scc1 {lep}")
    e(f"s_cbranch_vccz {lep}")
    lfb = k.new("FB"); e(f"s_branch {lfb}")
    k.lab(lbb); e("s_barrier"); e(f"s_branch {lnb}")
    k.lab(lfb)
    e("s_mov_b32 s41, 0")
    e("s_mov_b32 s43, s44")
    for i in range(3): vload(i)
    e(f"v_mov_b32 v{MX}, 0xff800000")
    e("v_mov_b32 v10, v2")
    e(f"ds_read_b128 {vr(KB[0],4)}, v10")
    e(f"ds_read_b128 {vr(KB[1],4)}, v10 offset:1024")
    e("s_waitcnt lgkmcnt(1)")
    e(f"v_mfma_f32_32x32x16_bf16 {vr(S[0],16)}, {vr(KB[0],4)}, {vr(QF,4)}, 0")
    e(f"ds_read_b128 {vr(KB[0],4)}, v10 offset:2048")
    e("s_mov_b32 s38, 0")
    l1 = k.new("P1"); k.lab(l1)
    e("s_waitcnt lgkmcnt(1)")
    e(f"v_mfma_f32_32x32x16_bf16 {vr(S[1],16)}, {vr(KB[1],4)}, {vr(QF,4)}, 0")
    e(f"ds_read_b128 {vr(KB[1],4)}, v10 offset:3072")
    k.nop(10)
    for i in range(8): e(f"v_max3_f32 v{MX}, v{S[0]+2*i}, v{S[0]+2*i+1}, v{MX}")
    e("s_waitcnt lgkmcnt(1)")
    e(f"v_mfma_f32_32x32x16_bf16 {vr(S[0],16)}, {vr(KB[0],4)}, {vr(QF,4)}, 0")
    e(f"ds_read_b128 {vr(KB[0],4)}, v10 offset:4096")
    e("v_add_u32 v10, 2048, v10")
    k.nop(9)
    for i in range(8): e(f"v_max3_f32 v{MX}, v{S[1]+2*i}, v{S[1]+2*i+1}, v{MX}")
    e("s_add_u32 s38, s38, 2"); e("s_cmp_lt_u32 s38, 64"); e(f"s_cbranch_scc1 {l1}")
    e("v_mov_b32 v14, v15")
    k.nop(2)
    e("v_permlane32_swap_b32 v15, v14")
    k.nop(2)
    e("v_max_f32 v15, v15, v14")
    e("v_sub_f32 v15, 0, v15")
    for i in range(16): e(f"v_mov_b32 v{CM+i}, v15")
    e("s_waitcnt lgkmcnt(0)")
    k.nop(4)
    e(f"s_branch {lstart}")
    k.lab(lep)
    e(f"v_rcp_f32 v8, v{O+8}")
    k.nop(1)
    for i in range(8): e(f"v_mul_f32 v{O+i}, v{O+i}, v8")
    for i in range(4): e(f"v_cvt_pk_bf16_f32 v{P+i}, v{O+2*i}, v{O+2*i+1}")
    e(f"s_add_u32 s27, s27, {WS_O}")
    e(f"buffer_store_dwordx4 {vr(P,4)}, v2, s[20:23], s27 offen")
    stamp(k, 3)

CONV8_LDS = 1024 + 2*4640 + 2*34304
def conv8_body(k):
    e = k.e; stamp = GM.stamp; PROF = GM.PROF
    UT = 1024; UTP = 4640; KC = UT + 2*UTP; KCP = 4288; KCC = 34304
    P = 2063
    e("s_load_dwordx2 s[68:69], s[0:1], 48")
    e("s_load_dwordx2 s[70:71], s[0:1], 80")
    e("s_load_dwordx2 s[56:57], s[0:1], 96")
    e("v_mov_b32 v1, v0")
    e("v_lshrrev_b32 v2, 6, v0")
    e("v_and_b32 v0, 63, v0")
    e("s_nop 0")
    e("v_readfirstlane_b32 s3, v2")
    e("s_lshr_b32 s4, s3, 2"); e("s_and_b32 s5, s3, 3")
    e("s_and_b32 s24, s2, 7"); e("s_lshl_b32 s24, s24, 5"); e("s_lshr_b32 s25, s2, 3"); e("s_add_u32 s24, s24, s25")
    e("s_lshl_b32 s24, s24, 1"); e("s_lshl_b32 s25, s24, 1")
    e("s_waitcnt lgkmcnt(0)")
    k.srd(48, 70, 4*MB); k.srd(12, 56, WS_SIZE)
    e("s_add_u32 s68, s68, s25"); e("s_addc_u32 s69, s69, 0"); e("s_load_dword s54, s[68:69], 0")
    e("s_add_u32 s26, s24, s4"); e("s_lshl_b32 s26, s26, 12")
    e(f"s_add_u32 s27, s26, {WS_KL}")
    e("s_add_u32 s16, s56, s27"); e("s_addc_u32 s17, s57, 0"); e("s_and_b32 s17, s17, 0xffff")
    e("s_mov_b32 s18, 4096"); e("s_mov_b32 s19, 0x00020000")
    e("v_and_b32 v56, 255, v1")
    e("v_lshlrev_b32 v57, 4, v56")
    e("v_subrev_u32 v3, 32, v57"); e("v_add_u32 v4, 4096, v3")
    e("buffer_load_dwordx4 v[64:67], v3, s[16:19], 0 offen")
    e("buffer_load_dwordx4 v[68:71], v3, s[16:19], 0 offen offset:16")
    e(f"s_add_u32 s27, s26, {WS_UT}")
    e("buffer_load_dwordx4 v[80:83], v57, s[12:15], s27 offen")
    e("buffer_load_dwordx4 v[72:75], v4, s[16:19], 0 offen")
    e("buffer_load_dwordx4 v[76:79], v4, s[16:19], 0 offen offset:16")
    e(f"s_mul_i32 s28, s4, {UTP}"); e(f"s_mul_i32 s29, s4, {KCC}")
    e("v_add_u32 v58, s28, v57")
    e("v_add_u32 v59, s29, v57")
    e("v_add_u32 v60, 4096, v59")
    for i in range(4): e(f"v_mov_b32 v{16+i}, 0")
    e("v_cmp_gt_u32 vcc, 32, v56"); e("s_and_saveexec_b64 s[30:31], vcc")
    e(f"ds_write_b128 v58, v[16:19] offset:{UT}")
    e("s_mov_b64 exec, s[30:31]")
    e("v_cmp_gt_u32 vcc, 2, v56"); e("s_and_saveexec_b64 s[30:31], vcc")
    e(f"ds_write_b128 v58, v[16:19] offset:{UT+4608}")
    e("s_mov_b64 exec, s[30:31]")
    e("v_and_b32 v14, 15, v0"); e("v_lshrrev_b32 v11, 4, v0")
    e("v_lshlrev_b32 v12, 3, v11"); e("v_sub_u32 v12, v12, v14"); e(f"v_add_u32 v12, {P}, v12")
    e("v_and_b32 v13, 7, v12"); e("v_sub_u32 v12, v12, v13")
    e(f"s_movk_i32 s38, {KCP}"); e("v_mul_lo_u32 v13, v13, s38"); e("v_lshlrev_b32 v12, 1, v12"); e("v_add_u32 v12, v12, v13")
    e(f"v_add_u32 v61, {KC - 960}, v12"); e("v_add_u32 v61, s29, v61")
    e("v_lshlrev_b32 v12, 5, v14"); e("v_lshlrev_b32 v13, 4, v11"); e("v_add_u32 v12, v12, v13")
    e(f"v_add_u32 v62, {UT + 512 - 960}, v12"); e("v_add_u32 v62, s28, v62")
    def copies(addr, src):
        for q in range(1, 7): e(f"v_mov_b32 v{25+q}, v{src+q}")
        for q in range(7): e(f"v_alignbit_b32 v{32+q}, v{src+1+q}, v{src+q}, 16")
        for q in range(1, 7): e(f"v_mov_b32 v{41+q}, v{32+q}")
        for s in range(8):
            h = s // 2
            if s % 2 == 0: r = (src+h) if h % 2 == 0 else (25+h)
            else: r = (32+h) if h % 2 == 0 else (41+h)
            e(f"ds_write_b128 v{addr}, {vr(r,4)} offset:{KC + s*KCP}")
    e("s_waitcnt vmcnt(3)")
    stamp(k, 1)
    copies(59, 64)
    e("s_waitcnt vmcnt(2)")
    e(f"ds_write_b128 v58, v[80:83] offset:{UT+512}")
    e("s_waitcnt vmcnt(0)")
    e("v_cmp_gt_u32 vcc, 6, v56"); e("s_and_saveexec_b64 s[30:31], vcc")
    copies(60, 72)
    e("s_mov_b64 exec, s[30:31]")
    e("s_waitcnt lgkmcnt(0)"); e("s_barrier")
    stamp(k, 2)
    RES = 48; FB = 96; GB = 112
    for blk in range(2):
        if blk == 0: e("s_sub_u32 s39, 7, s5")
        else: e("s_mov_b32 s39, s5")
        acc = RES + 4*blk
        for i in range(4): e(f"v_mov_b32 v{acc+i}, 0")
        e("v_mov_b32 v8, v61")
        e("s_lshl_b32 s40, s39, 9"); e("v_add_u32 v9, s40, v62")
        def rd(slot, stepoff):
            off = 960 - 64*stepoff
            e(f"ds_read_b128 {vr(FB+4*slot,4)}, v8 offset:{off}")
            e(f"ds_read_b128 {vr(GB+4*slot,4)}, v9 offset:{off}")
        for q in range(4): rd(q, q)
        e("s_mov_b32 s41, 0")
        lc = k.new("CV"); k.lab(lc)
        for q in range(8):
            e("s_waitcnt lgkmcnt(6)")
            e(f"v_mfma_f32_16x16x32_bf16 {vr(acc,4)}, {vr(FB+4*(q%4),4)}, {vr(GB+4*(q%4),4)}, {vr(acc,4)}")
            rd(q % 4, q + 4)
        e("v_subrev_u32 v8, 512, v8"); e("v_subrev_u32 v9, 512, v9")
        e("s_add_u32 s41, s41, 1"); e("s_cmp_le_u32 s41, s39"); e(f"s_cbranch_scc1 {lc}")
        e("s_waitcnt lgkmcnt(6)")
        e(f"v_mfma_f32_16x16x32_bf16 {vr(acc,4)}, {vr(FB,4)}, {vr(GB,4)}, {vr(acc,4)}")
        e("s_waitcnt lgkmcnt(0)")
    stamp(k, 3)
    e("s_lshl_b32 s42, s54, 16"); e("s_and_b32 s43, s54, 0xffff0000"); e("s_cmp_eq_u32 s4, 0"); e("s_cselect_b32 s42, s42, s43")
    e("s_lshl_b32 s44, s4, 1")
    for blk in range(2):
        if blk == 0: e("s_sub_u32 s39, 7, s5")
        else: e("s_mov_b32 s39, s5")
        e("v_lshlrev_b32 v12, 4, v14"); e("v_lshlrev_b32 v13, 2, v11"); e("v_add_u32 v12, v12, v13")
        e("s_lshl_b32 s40, s39, 8"); e("v_add_u32 v12, s40, v12")
        e("v_lshlrev_b32 v13, 1, v12"); e("v_add_u32 v13, s28, v13")
        e(f"ds_read_b64 v[16:17], v13 offset:{UT+512}")
        e(f"v_lshlrev_b32 v{36+blk}, 2, v12"); e(f"v_add_u32 v{36+blk}, s44, v{36+blk}")
        k.nop(4)
        e("s_waitcnt lgkmcnt(0)")
        for r2 in range(2):
            e(f"v_lshlrev_b32 v20, 16, v{16+r2}"); e(f"v_and_b32 v21, 0xffff0000, v{16+r2}")
            e("v_mul_f32 v20, s42, v20"); e("v_mul_f32 v21, s42, v21")
            e("v_cvt_pk_bf16_f32 v22, v20, v21")
            e(f"v_cvt_pk_bf16_f32 v23, v{RES+4*blk+2*r2}, v{RES+4*blk+2*r2+1}")
            e("v_lshlrev_b32 v24, 16, v22"); e("v_and_b32 v25, 0xffff0000, v22")
            e("v_lshlrev_b32 v26, 16, v23"); e("v_and_b32 v27, 0xffff0000, v23")
            e("v_add_f32 v24, v24, v26"); e("v_add_f32 v25, v25, v27")
            e(f"v_cvt_pk_bf16_f32 v{32+2*blk+r2}, v24, v25")
    e("s_barrier")
    for blk in range(2):
        for r2 in range(2):
            e(f"ds_write_b16 v{36+blk}, v{32+2*blk+r2} offset:{KC + 8*r2}")
            e(f"ds_write_b16_d16_hi v{36+blk}, v{32+2*blk+r2} offset:{KC + 8*r2 + 4}")
    e("s_waitcnt lgkmcnt(0)"); e("s_barrier")
    e("v_lshlrev_b32 v12, 4, v1")
    e(f"ds_read_b128 v[16:19], v12 offset:{KC}")
    e("v_lshlrev_b32 v13, 13, v1"); e("v_add_u32 v13, s25, v13")
    e("s_movk_i32 s44, 4096")
    e("s_waitcnt lgkmcnt(0)")
    for r in range(4):
        so = "0" if r < 2 else "s44"
        e(f"buffer_store_dword v{16+r}, v13, s[48:51], {so} offen offset:{(r%2)*2048}")
    if PROF: e("s_waitcnt vmcnt(0)")
    stamp(k, 4)

def l2():
    k = K("l2_kernel"); e = k.e
    lc = k.new("CONV")
    e("s_cmp_ge_u32 s2, 512"); e(f"s_cbranch_scc1 {k.name}_end")
    order = os.environ.get("L2ORD", "0")
    if order == "0":
        e("s_cmp_ge_u32 s2, 256"); e(f"s_cbranch_scc1 {lc}")
    else:
        e("s_cmp_lt_u32 s2, 256"); e(f"s_cbranch_scc1 {lc}")
        e("s_sub_u32 s2, s2, 256")
    if os.environ.get("L2PRIO", "0") == "1": e("s_setprio 2")
    if GM.PROF: e("s_memrealtime s[88:89]")
    GM.stamp(k, 0)
    attn2_body(k)
    GM.stamp_out(k, 4)
    e("s_endpgm")
    k.lab(lc)
    if order == "0": e("s_sub_u32 s2, s2, 256")
    if GM.PROF: e("s_memrealtime s[88:89]")
    GM.stamp(k, 0)
    conv8_body(k)
    GM.stamp_out(k, 5, 32)
    return k, 128, (512, 512, CONV8_LDS)
KERNELS = {"l2": l2}

def attn2():
    k = K("attn2_kernel"); e = k.e
    e("s_cmp_ge_u32 s2, 256"); e(f"s_cbranch_scc1 {k.name}_end")
    if GM.PROF: e("s_memrealtime s[88:89]")
    GM.stamp(k, 0)
    attn2_body(k)
    GM.stamp_out(k, 4)
    return k, 128, (256, 512, 65536)
KERNELS["attn2"] = attn2
```

```python
from gen import K, vr, f32bits, MB, WS_Q, WS_K, WS_V, WS_O, WS_KM, WS_SIZE, LOG2E

import os
PROF = os.environ.get("PROF", "0") == "1"
def stamp(k, idx):
    if PROF:
        k.e(f"s_memtime s[{72+2*idx}:{73+2*idx}]")
        k.e("s_waitcnt lgkmcnt(0)")
def stamp_out(k, n, base=0):
    if not PROF: return
    e = k.e
    l = k.new("NOPROF")
    e("s_memrealtime s[90:91]"); e("s_waitcnt lgkmcnt(0)")
    e("s_cmp_lg_u32 s2, 5"); e(f"s_cbranch_scc1 {l}")
    e("s_and_b32 s70, s3, 3"); e("s_cmp_lg_u32 s70, 0"); e(f"s_cbranch_scc1 {l}")
    e("s_load_dwordx2 s[92:93], s[0:1], 88"); e("s_waitcnt lgkmcnt(0)")
    e("s_mov_b32 s94, 256"); e("s_mov_b32 s95, 0x00020000")
    e("s_lshl_b32 s70, s3, 4"); e(f"s_add_u32 s70, s70, {base}"); e("v_mov_b32 v1, s70")
    for i in range(n):
        e(f"s_sub_u32 s70, s{72+2*i}, s72"); e("v_mov_b32 v2, s70")
        e(f"buffer_store_dword v2, v1, s[92:95], 0 offen offset:{4*i}")
    e("s_sub_u32 s70, s90, s88"); e("v_mov_b32 v2, s70")
    e(f"buffer_store_dword v2, v1, s[92:95], 0 offen offset:{4*n}")
    k.lab(l)
def attn():
    k = K("attn_kernel"); e = k.e
    e("s_cmp_ge_u32 s2, 256"); e(f"s_cbranch_scc1 {k.name}_end")
    if PROF: e("s_memrealtime s[88:89]")
    stamp(k, 0)
    e("s_load_dwordx2 s[8:9], s[0:1], 96")
    e("v_lshrrev_b32 v1, 6, v0")
    e("v_and_b32 v0, 63, v0")
    e("s_nop 0")
    e("v_readfirstlane_b32 s3, v1")
    e("s_and_b32 s24, s2, 7"); e("s_lshl_b32 s24, s24, 2")
    e("s_lshr_b32 s25, s2, 3"); e("s_and_b32 s25, s25, 3"); e("s_add_u32 s24, s24, s25")
    e("s_lshr_b32 s25, s2, 5")
    e("s_waitcnt lgkmcnt(0)")
    k.srd(20, 8, WS_SIZE)
    e("v_lshlrev_b32 v2, 4, v0")
    e("s_lshl_b32 s26, s25, 3"); e("s_add_u32 s26, s26, s3")
    e("s_lshl_b32 s27, s24, 6"); e("s_add_u32 s27, s27, s26"); e("s_lshl_b32 s27, s27, 10")
    QF = 4
    e(f"buffer_load_dwordx4 {vr(QF,4)}, v2, s[20:23], s27 offen")
    e("v_lshlrev_b32 v8, 2, v0")
    e("s_lshl_b32 s28, s24, 8"); e(f"s_add_u32 s28, s28, {WS_KM}")
    e("buffer_load_dword v11, v8, s[20:23], s28 offen")
    e("s_lshl_b32 s28, s24, 16")
    e("s_lshl_b32 s29, s3, 11")
    e("s_add_u32 s31, s29, s28")
    e("s_mov_b32 s30, s29")
    def dma_chunk():
        for sec, base in ((0, WS_K), (1, WS_V)):
            for j in range(2):
                e(f"s_add_u32 s39, s30, {j*1024 + sec*65536}")
                e("s_mov_b32 m0, s39")
                e(f"s_add_u32 s40, s31, {j*1024 + base}")
                e(f"buffer_load_dwordx4 v2, s[20:23], s40 offen lds")
        e("s_add_u32 s30, s30, 16384"); e("s_add_u32 s31, s31, 16384")
    dma_chunk()
    S = [16, 32]; CM = 48; O = 64; KB = [80, 84]; VB = [88, 96]; P = 104; MX = 112
    e("v_and_b32 v3, 15, v0"); e("v_lshlrev_b32 v3, 4, v3")
    e("v_lshrrev_b32 v8, 5, v0"); e("v_lshlrev_b32 v8, 8, v8"); e("v_add_u32 v3, v3, v8"); e("v_add_u32 v3, 65536, v3")
    e("v_mov_b32 v114, v3")
    e("v_and_b32 v8, 31, v0")
    e("v_cmp_eq_u32 s[32:33], 16, v8"); e("v_cmp_eq_u32 s[34:35], 20, v8")
    e("s_or_b64 s[32:33], s[32:33], s[34:35]")
    e("v_mov_b32 v9, 0x3f803f80")
    e("s_nop 0")
    e("v_cndmask_b32 v9, 0, v9, s[32:33]")
    for b in VB:
        for i in range(8): e(f"v_mov_b32 v{b+i}, v9")
    e("s_mov_b32 s36, 0x0000ffff"); e("s_mov_b32 s37, 0x0000ffff")
    e("s_waitcnt vmcnt(4)")
    e("v_mov_b32 v12, 0")
    for i in range(4): e(f"v_dot2c_f32_bf16 v12, v{QF+i}, v{QF+i}")
    for mod in ("quad_perm:[1,0,3,2]", "quad_perm:[2,3,0,1]", "row_half_mirror", "row_mirror"):
        k.nop(2)
        e(f"v_max_f32_dpp v11, v11, v11 {mod} row_mask:0xf bank_mask:0xf")
    e("v_mov_b32 v13, v11"); e("v_mov_b32 v14, v12")
    k.nop(2)
    e("v_permlane16_swap_b32 v11, v13"); e("v_permlane32_swap_b32 v12, v14")
    k.nop(2)
    e("v_max_f32 v11, v11, v13"); e("v_add_f32 v12, v12, v14")
    e("v_mov_b32 v13, v11")
    k.nop(2)
    e("v_permlane32_swap_b32 v11, v13")
    k.nop(2)
    e("v_max_f32 v11, v11, v13")
    e("v_mul_f32 v12, v12, v11"); e("v_sqrt_f32 v12, v12"); e("s_nop 0")
    e(f"v_mul_f32 v{MX}, {hex(f32bits(-1.01))}, v12")
    for i in range(16): e(f"v_mov_b32 v{CM+i}, v{MX}")
    def vread(buf, off):
        e("s_mov_b64 exec, s[36:37]")
        e(f"ds_read_b128 {vr(VB[buf],4)}, v3 offset:{off}")
        e(f"ds_read_b128 {vr(VB[buf]+4,4)}, v3 offset:{off+512}")
        e("s_mov_b64 exec, -1")
    def p2_start():
        for i in range(16): e(f"v_mov_b32 v{O+i}, 0")
        e("v_mov_b32 v10, v2"); e("v_mov_b32 v3, v114")
        e(f"ds_read_b128 {vr(KB[0],4)}, v10")
        e("s_waitcnt lgkmcnt(0)")
        e(f"v_mfma_f32_32x32x16_bf16 {vr(S[0],16)}, {vr(KB[0],4)}, {vr(QF,4)}, {vr(CM,16)}")
        e(f"ds_read_b128 {vr(KB[1],4)}, v10 offset:1024")
        vread(0, 0)
        k.nop(8)
    e("s_mov_b32 s42, 0x07060302")
    def pack(d, a):
        if os.environ.get("PERM", "0") == "1": e(f"v_perm_b32 v{d}, v{a+1}, v{a}, s42")
        else: e(f"v_cvt_pk_bf16_f32 v{d}, v{a}, v{a+1}")
    lstart = k.new("P2S"); lep = k.new("EPI")
    e("s_mov_b32 s41, 15")
    e("s_waitcnt vmcnt(0)"); e("s_barrier")
    stamp(k, 1)
    e("s_mov_b32 s38, 0")
    ld = k.new("DMA"); k.lab(ld)
    dma_chunk()
    e("s_add_u32 s38, s38, 1"); e("s_cmp_lt_u32 s38, 3"); e(f"s_cbranch_scc1 {ld}")
    k.lab(lstart)
    p2_start()
    e("s_mov_b32 s38, 0")
    al = os.environ.get("ALIGN", "")
    if al != "":
        k.L.append(".p2align 6")
        for i in range(int(al)): e("s_nop 0")
    l2 = k.new("P2"); k.lab(l2)
    lnb = k.new("NB"); lbb = k.new("BB"); lb1 = k.new("B1"); lb2 = k.new("B2"); lbar = k.new("BAR")
    e("s_and_b32 s39, s38, s41"); e("s_cmp_eq_u32 s39, 14"); e(f"s_cbranch_scc1 {lbb}")
    k.lab(lnb)
    for p in range(2):
        e("s_waitcnt lgkmcnt(2)")
        e(f"v_mfma_f32_32x32x16_bf16 {vr(S[1-p],16)}, {vr(KB[1-p],4)}, {vr(QF,4)}, {vr(CM,16)}")
        e(f"ds_read_b128 {vr(KB[p],4)}, v10 offset:{2048 + p*1024}")
        vread(1-p, 1024 + p*1024)
        for i in range(12): e(f"v_exp_f32 v{S[p]+i}, v{S[p]+i}")
        for i in range(4): pack(P+i, S[p]+2*i)
        for i in range(12, 16): e(f"v_exp_f32 v{S[p]+i}, v{S[p]+i}")
        e("s_waitcnt lgkmcnt(3)")
        e(f"v_mfma_f32_32x32x16_bf16 {vr(O,16)}, {vr(VB[p],4)}, {vr(P,4)}, {vr(O,16)}")
        for i in range(4, 8): pack(P+i, S[p]+2*i)
        k.nop(2)
        e(f"v_mfma_f32_32x32x16_bf16 {vr(O,16)}, {vr(VB[p]+4,4)}, {vr(P+4,4)}, {vr(O,16)}")
    e("v_add_u32 v10, 2048, v10"); e("v_add_u32 v3, 2048, v3")
    e("s_add_u32 s38, s38, 2"); e("s_cmp_lt_u32 s38, 64"); e(f"s_cbranch_scc1 {l2}")
    stamp(k, 2)
    k.nop(16)
    e(f"v_cmp_gt_f32 vcc, {hex(f32bits(2.0**-60))}, v{O+8}")
    e("s_waitcnt lgkmcnt(0)")
    e("s_cmp_eq_u32 s41, 0"); e(f"s_cbranch_scc1 {lep}")
    e(f"s_cbranch_vccz {lep}")
    lfb = k.new("FB"); e(f"s_branch {lfb}")
    k.lab(lbb)
    e("s_cmp_eq_u32 s38, 62"); e(f"s_cbranch_scc1 {lnb}")
    e("s_cmp_eq_u32 s38, 14"); e(f"s_cbranch_scc0 {lb1}"); e("s_waitcnt vmcnt(8)"); e(f"s_branch {lbar}")
    k.lab(lb1); e("s_cmp_eq_u32 s38, 30"); e(f"s_cbranch_scc0 {lb2}"); e("s_waitcnt vmcnt(4)"); e(f"s_branch {lbar}")
    k.lab(lb2); e("s_waitcnt vmcnt(0)")
    k.lab(lbar); e("s_barrier"); e(f"s_branch {lnb}")
    k.lab(lfb)
    e("s_mov_b32 s41, 0")
    e(f"v_mov_b32 v{MX}, 0xff800000")
    e("v_mov_b32 v10, v2")
    e(f"ds_read_b128 {vr(KB[0],4)}, v10")
    e(f"ds_read_b128 {vr(KB[1],4)}, v10 offset:1024")
    e("s_waitcnt lgkmcnt(1)")
    e(f"v_mfma_f32_32x32x16_bf16 {vr(S[0],16)}, {vr(KB[0],4)}, {vr(QF,4)}, 0")
    e(f"ds_read_b128 {vr(KB[0],4)}, v10 offset:2048")
    e("s_mov_b32 s38, 0")
    l1 = k.new("P1"); k.lab(l1)
    e("s_waitcnt lgkmcnt(1)")
    e(f"v_mfma_f32_32x32x16_bf16 {vr(S[1],16)}, {vr(KB[1],4)}, {vr(QF,4)}, 0")
    e(f"ds_read_b128 {vr(KB[1],4)}, v10 offset:3072")
    k.nop(10)
    for i in range(8): e(f"v_max3_f32 v{MX}, v{S[0]+2*i}, v{S[0]+2*i+1}, v{MX}")
    e("s_waitcnt lgkmcnt(1)")
    e(f"v_mfma_f32_32x32x16_bf16 {vr(S[0],16)}, {vr(KB[0],4)}, {vr(QF,4)}, 0")
    e(f"ds_read_b128 {vr(KB[0],4)}, v10 offset:4096")
    e("v_add_u32 v10, 2048, v10")
    k.nop(9)
    for i in range(8): e(f"v_max3_f32 v{MX}, v{S[1]+2*i}, v{S[1]+2*i+1}, v{MX}")
    e("s_add_u32 s38, s38, 2"); e("s_cmp_lt_u32 s38, 64"); e(f"s_cbranch_scc1 {l1}")
    e(f"v_mov_b32 v{MX+1}, v{MX}")
    k.nop(2)
    e(f"v_permlane32_swap_b32 v{MX}, v{MX+1}")
    k.nop(2)
    e(f"v_max_f32 v{MX}, v{MX}, v{MX+1}")
    e(f"v_sub_f32 v{MX}, 0, v{MX}")
    for i in range(16): e(f"v_mov_b32 v{CM+i}, v{MX}")
    e("s_waitcnt lgkmcnt(0)")
    k.nop(4)
    e(f"s_branch {lstart}")
    k.lab(lep)
    e(f"v_rcp_f32 v8, v{O+8}")
    k.nop(1)
    for i in range(8): e(f"v_mul_f32 v{O+i}, v{O+i}, v8")
    for i in range(4): e(f"v_cvt_pk_bf16_f32 v{P+i}, v{O+2*i}, v{O+2*i+1}")
    e(f"s_add_u32 s27, s27, {WS_O}")
    e(f"buffer_store_dwordx4 {vr(P,4)}, v2, s[20:23], s27 offen")
    e("s_waitcnt lgkmcnt(0)")
    stamp(k, 3)
    stamp_out(k, 4)
    return k, 128, (256, 512, 131072)

KERNELS = {"attn": attn}

def gemm2(k=None):
    if k is None:
        k = K("gemm2_kernel")
        k.e("s_cmp_ge_u32 s2, 256"); k.e(f"s_cbranch_scc1 {k.name}_end")
    e = k.e
    if PROF: e("s_memrealtime s[88:89]")
    stamp(k, 0)
    e("s_load_dwordx2 s[6:7], s[0:1], 72")
    e("s_load_dwordx2 s[8:9], s[0:1], 96")
    e("s_load_dwordx2 s[10:11], s[0:1], 80")
    e("v_lshrrev_b32 v1, 6, v0")
    e("v_and_b32 v0, 63, v0")
    e("s_nop 0")
    e("v_readfirstlane_b32 s3, v1")
    e("s_and_b32 s26, s2, 7"); e("s_lshr_b32 s27, s2, 3")
    e("s_lshr_b32 s24, s26, 1"); e("s_lshl_b32 s24, s24, 3"); e("s_and_b32 s28, s27, 7"); e("s_add_u32 s24, s24, s28")
    e("s_and_b32 s25, s26, 1"); e("s_lshl_b32 s25, s25, 2"); e("s_lshr_b32 s28, s27, 3"); e("s_add_u32 s25, s25, s28")
    e("s_and_b32 s26, s3, 1")
    e("s_lshr_b32 s27, s3, 1")
    e("s_waitcnt lgkmcnt(0)")
    k.srd(12, 10, 2048*1024*2); k.srd(16, 6, 512*512*2); k.srd(20, 8, WS_SIZE)
    e("v_lshrrev_b32 v3, 3, v0")
    e("v_and_b32 v4, 2, v3"); e("v_lshlrev_b32 v4, 1, v4")
    e("v_and_b32 v5, 7, v0"); e("v_xor_b32 v5, v5, v4"); e("v_lshlrev_b32 v5, 4, v5")
    e("v_and_b32 v6, 3, v3")
    e("v_and_b32 v7, 4, v3"); e("v_lshlrev_b32 v7, 1, v7"); e("v_add_u32 v6, v6, v7")
    e("v_lshlrev_b32 v6, 10, v6"); e("v_add_u32 v4, v6, v5")
    e("s_lshl_b32 s28, s25, 7")
    OF = 128
    e("v_lshlrev_b32 v2, 4, v0")
    e("s_lshl_b32 s29, s24, 1"); e("s_add_u32 s29, s29, s26"); e("s_lshl_b32 s29, s29, 10"); e(f"s_add_u32 s29, s29, {WS_O}")
    e("s_lshl_b32 s30, s3, 4"); e("s_add_u32 s34, s30, 16")
    ld = k.new("DMA"); k.lab(ld)
    e("s_lshl_b32 s31, s30, 10"); e("s_mov_b32 m0, s31")
    e("s_lshr_b32 s32, s30, 1"); e("s_lshl_b32 s32, s32, 14")
    e("s_and_b32 s33, s30, 1"); e("s_lshl_b32 s33, s33, 12"); e("s_add_u32 s32, s32, s33"); e("s_add_u32 s32, s32, s28")
    e("buffer_load_dwordx4 v4, s[16:19], s32 offen lds")
    e("s_add_u32 s30, s30, 1"); e("s_cmp_lt_u32 s30, s34"); e(f"s_cbranch_scc1 {ld}")
    for s_ in range(8):
        e(f"buffer_load_dwordx4 {vr(OF+4*s_,4)}, v2, s[20:23], s29 offen")
        e("s_add_u32 s29, s29, 65536")
    e("v_lshrrev_b32 v7, 5, v0"); e("v_lshlrev_b32 v7, 3, v7")
    e("v_and_b32 v8, 15, v0"); e("v_lshrrev_b32 v8, 2, v8"); e("v_add_u32 v7, v7, v8"); e("v_lshlrev_b32 v7, 7, v7")
    e("v_lshrrev_b32 v8, 1, v8"); e("v_xor_b32 v8, s27, v8"); e("v_lshlrev_b32 v8, 6, v8"); e("v_add_u32 v7, v7, v8")
    e("v_and_b32 v8, 1, v0"); e("v_lshlrev_b32 v8, 5, v8"); e("v_add_u32 v7, v7, v8")
    e("v_lshrrev_b32 v8, 4, v0"); e("v_and_b32 v8, 1, v8"); e("v_lshlrev_b32 v8, 4, v8"); e("v_add_u32 v7, v7, v8")
    e("v_lshrrev_b32 v8, 1, v0"); e("v_and_b32 v8, 1, v8"); e("v_lshlrev_b32 v8, 3, v8"); e("v_add_u32 v7, v7, v8")
    ACC = 16; WF = 32
    for i in range(16): e(f"v_mov_b32 v{ACC+i}, 0")
    stamp(k, 1)
    e("s_waitcnt vmcnt(8)"); e("s_barrier")
    stamp(k, 2)
    def wread(s, pb):
        for hs in range(2):
            e(f"ds_read_b64_tr_b16 {vr(WF+4*pb+2*hs,2)}, v7 offset:{s*2048+hs*512}")
    NB = 4
    for s_ in range(NB-1): wread(s_, s_ % NB)
    e("s_mov_b32 s30, 0")
    lm = k.new("MM"); k.lab(lm)
    for s_ in range(8):
        wread(s_+NB-1, (s_+NB-1) % NB); e(f"s_waitcnt lgkmcnt({2*(NB-1)})")
        e("s_waitcnt vmcnt(7)")
        e(f"v_mfma_f32_32x32x16_bf16 {vr(ACC,16)}, {vr(WF+4*(s_%NB),4)}, {vr(OF+4*s_,4)}, {vr(ACC,16)}")
        e(f"buffer_load_dwordx4 {vr(OF+4*s_,4)}, v2, s[20:23], s29 offen")
        e("s_add_u32 s29, s29, 65536")
    e("v_add_u32 v7, 16384, v7")
    e("s_add_u32 s30, s30, 1"); e("s_cmp_lt_u32 s30, 4"); e(f"s_cbranch_scc1 {lm}")
    e("s_waitcnt vmcnt(0) lgkmcnt(0)")
    k.nop(16)
    for i in range(8): e(f"v_cvt_pk_bf16_f32 v{48+i}, v{ACC+2*i}, v{ACC+2*i+1}")
    e("s_lshl_b32 s30, s24, 6"); e("s_lshl_b32 s31, s26, 5"); e("s_add_u32 s30, s30, s31")
    e("v_and_b32 v3, 31, v0"); e("v_add_u32 v3, s30, v3"); e("v_lshlrev_b32 v3, 11, v3")
    e("v_lshrrev_b32 v5, 5, v0"); e("v_lshlrev_b32 v5, 5, v5"); e("v_add_u32 v3, v3, v5")
    e("s_lshl_b32 s31, s27, 6"); e("s_add_u32 s31, s31, s28"); e("s_add_u32 s31, s31, 1024")
    e("buffer_store_dwordx4 v[48:51], v3, s[12:15], s31 offen")
    e("buffer_store_dwordx4 v[52:55], v3, s[12:15], s31 offen offset:16")
    stamp(k, 3)
    if PROF: e("s_waitcnt vmcnt(0)")
    stamp(k, 4)
    stamp_out(k, 5, 64)
    return k, 160, (256, 256, 65536)

KERNELS["gemm2"] = gemm2

def ssm():
    k = K("ssm_kernel"); e = k.e
    UT = 1024; UTP = 4640; KT = 10304; KLIN = 22592; KC = 26816; KCP = 4288; LDS = 61120
    P = 2063
    e("s_cmp_ge_u32 s2, 256"); e(f"s_cbranch_scc1 {k.name}_end")
    if PROF: e("s_memrealtime s[88:89]")
    stamp(k, 0)
    e("s_load_dwordx4 s[56:59], s[0:1], 0")
    e("s_load_dwordx4 s[60:63], s[0:1], 16")
    e("s_load_dwordx4 s[64:67], s[0:1], 32")
    e("s_load_dwordx2 s[68:69], s[0:1], 48")
    e("s_load_dwordx2 s[70:71], s[0:1], 80")
    e("v_mov_b32 v1, v0")
    e("v_lshrrev_b32 v2, 6, v0")
    e("v_and_b32 v0, 63, v0")
    e("s_nop 0")
    e("v_readfirstlane_b32 s3, v2")
    e("s_and_b32 s24, s2, 7"); e("s_lshl_b32 s24, s24, 5"); e("s_lshr_b32 s25, s2, 3"); e("s_add_u32 s24, s24, s25")
    e("s_lshl_b32 s24, s24, 1")
    e("s_lshl_b32 s25, s24, 1")
    e("s_waitcnt lgkmcnt(0)")
    k.srd(12, 56, 2*MB); k.srd(16, 58, 131072); k.srd(20, 60, 131072); k.srd(40, 62, 131072); k.srd(44, 64, 131072); k.srd(48, 70, 4*MB)
    e("s_add_u32 s66, s66, s25"); e("s_addc_u32 s67, s67, 0")
    e("s_add_u32 s68, s68, s25"); e("s_addc_u32 s69, s69, 0")
    e("s_load_dword s52, s[66:67], 0"); e("s_load_dword s54, s[68:69], 0")
    e("s_lshr_b32 s26, s3, 1")
    e("s_and_b32 s27, s3, 1")
    e("s_add_u32 s28, s24, s26"); e("s_lshl_b32 s28, s28, 8"); e("s_lshl_b32 s29, s27, 7"); e("s_add_u32 s28, s28, s29")
    e("v_lshrrev_b32 v5, 4, v0"); e("v_lshlrev_b32 v5, 5, v5"); e("v_add_u32 v5, s28, v5")
    for base, srd in ((64, 16), (72, 20), (80, 40), (88, 44)):
        e(f"buffer_load_dwordx4 {vr(base,4)}, v5, s[{srd}:{srd+3}], 0 offen")
        e(f"buffer_load_dwordx4 {vr(base+4,4)}, v5, s[{srd}:{srd+3}], 0 offen offset:16")
    e("v_lshlrev_b32 v3, 13, v1"); e("v_add_u32 v3, s25, v3"); e("v_add_u32 v4, 4096, v3")
    for j in range(8):
        e(f"buffer_load_dword v{200+j}, v{3 if j<4 else 4}, s[12:15], 0 offen offset:{(j%4)*1024}")
    e("v_and_b32 v10, 15, v0")
    e("v_lshlrev_b32 v6, 3, v10"); e("v_cvt_f32_u32 v6, v6")
    def zhi(dst, z):
        e(f"v_lshrrev_b32 v12, 3, v{z}"); e("v_lshlrev_b32 v12, 7, v12"); e(f"v_and_b32 v13, 7, v{z}"); e("v_add_u32 v12, v12, v13")
        e(f"v_cvt_f32_u32 v{dst}, v12")
    zhi(7, 10)
    e("v_lshlrev_b32 v11, 1, v10"); e("v_add_u32 v11, 16, v11"); e("v_lshlrev_b32 v14, 2, v10")
    e("v_cmp_gt_u32 vcc, 8, v10"); e("s_nop 1"); e("v_cndmask_b32 v11, v14, v11, vcc")
    zhi(8, 11)
    e("v_lshlrev_b32 v11, 3, v10"); e("v_add_u32 v11, 64, v11")
    zhi(9, 11)
    for i in range(4): e(f"v_mov_b32 v{16+i}, 0")
    e("v_lshlrev_b32 v12, 4, v1")
    e("v_cmp_gt_u32 vcc, 32, v1"); e("s_and_saveexec_b64 s[30:31], vcc")
    e(f"ds_write_b128 v12, v[16:19] offset:{UT}"); e(f"ds_write_b128 v12, v[16:19] offset:{UT+UTP}")
    e("s_mov_b64 exec, s[30:31]")
    e("v_cmp_gt_u32 vcc, 2, v1"); e("s_and_saveexec_b64 s[30:31], vcc")
    e(f"ds_write_b128 v12, v[16:19] offset:{KLIN}")
    e(f"ds_write_b128 v12, v[16:19] offset:{UT+4608}"); e(f"ds_write_b128 v12, v[16:19] offset:{UT+UTP+4608}")
    e("s_mov_b64 exec, s[30:31]")
    e("v_cmp_gt_u32 vcc, 6, v1"); e("s_and_saveexec_b64 s[30:31], vcc")
    e(f"ds_write_b128 v12, v[16:19] offset:{KLIN+258*16}")
    e("s_mov_b64 exec, s[30:31]")
    e("s_waitcnt lgkmcnt(0)")
    e("s_lshl_b32 s53, s52, 16"); e("s_and_b32 s55, s52, 0xffff0000"); e("s_cmp_eq_u32 s26, 0"); e("s_cselect_b32 s53, s53, s55")
    e("v_mov_b32 v15, s53"); e(f"v_mul_f32 v15, {hex(f32bits(LOG2E))}, v15"); e("v_exp_f32 v15, v15"); e("s_nop 0")
    e("v_cvt_pk_bf16_f32 v15, v15, v15"); e("v_lshlrev_b32 v15, 16, v15")
    e("s_waitcnt vmcnt(8)")
    stamp(k, 1)
    AR2, AI2, C2R, C2I = 96, 112, 128, 144
    e(f"s_mov_b32 s34, {hex(f32bits(LOG2E))}"); e(f"s_mov_b32 s35, {hex(f32bits(-LOG2E))}"); e(f"s_mov_b32 s36, {hex(f32bits(1/(2*3.141592653589793)))}")
    e("v_add_f32 v16, v15, v15")
    for t in range(16):
        def unp(dst, src):
            if t & 1: e(f"v_and_b32 v{dst}, 0xffff0000, v{src + t//2}")
            else: e(f"v_lshlrev_b32 v{dst}, 16, v{src + t//2}")
        unp(AR2+t, 64); unp(AI2+t, 72); unp(C2R+t, 80); unp(C2I+t, 88)
        e(f"v_mul_f32 v{AR2+t}, s34, v{AR2+t}")
        e(f"v_mul_f32 v{AI2+t}, v{AI2+t}, v15")
        e(f"v_exp_f32 v{AR2+t}, v{AR2+t}")
        e(f"v_mul_f32 v{C2R+t}, v{C2R+t}, v16")
        e(f"v_mul_f32 v{C2I+t}, v{C2I+t}, v16")
        e(f"v_cvt_pk_bf16_f32 v{AR2+t}, v{AR2+t}, v{AR2+t}")
        e(f"v_mul_f32 v{AI2+t}, s36, v{AI2+t}")
        e(f"v_lshlrev_b32 v{AR2+t}, 16, v{AR2+t}")
        e(f"v_mul_f32 v{AR2+t}, v{AR2+t}, v15")
        e(f"v_mul_f32 v{AR2+t}, s35, v{AR2+t}")
    stamp(k, 2)
    ACC = 160
    for i in range(12): e(f"v_mov_b32 v{ACC+i}, 0")
    RB = [48, 56]
    def mf(p, j):
        mb = j % 3; part = j // 3
        e(f"v_mfma_f32_16x16x4_f32 {vr(ACC+4*mb,4)}, v{RB[p]+3*part+mb}, v{RB[p]+6+part}, {vr(ACC+4*mb,4)}")
    for t in range(16):
        p = t & 1; prev = (t > 0)
        for c in range(4):
            e(f"v_mul_f32 v{20+c}, v{AR2+t}, v{6+c}")
            e(f"v_mul_f32 v{24+c}, v{AI2+t}, v{6+c}")
        if prev: mf(1-p, 0)
        for c in range(4):
            e(f"v_exp_f32 v{20+c}, v{20+c}")
            e(f"v_fract_f32 v{24+c}, v{24+c}")
        if prev: mf(1-p, 1)
        for c in range(2):
            e(f"v_sin_f32 v{28+c}, v{24+c}")
            e(f"v_cos_f32 v{32+c}, v{24+c}")
        if prev: mf(1-p, 2)
        for c in range(2, 4):
            e(f"v_sin_f32 v{28+c}, v{24+c}")
            e(f"v_cos_f32 v{32+c}, v{24+c}")
        if prev: mf(1-p, 3)
        else: e("s_nop 0")
        e(f"v_mul_f32 v36, v20, v32"); e(f"v_mul_f32 v40, v20, v28")
        for c in range(1, 4):
            e(f"v_mul_f32 v{RB[p]+c-1}, v{20+c}, v{32+c}")
        if prev: mf(1-p, 4)
        for c in range(1, 4):
            e(f"v_mul_f32 v{RB[p]+3+c-1}, v{20+c}, v{28+c}")
        e(f"v_mul_f32 v44, v{C2I+t}, v40")
        e(f"v_mul_f32 v45, v{C2I+t}, v36")
        if prev: mf(1-p, 5)
        e(f"v_fma_f32 v{RB[p]+6}, v{C2R+t}, v36, -v44")
        e(f"v_fma_f32 v{RB[p]+7}, -v{C2R+t}, v40, -v45")
    e("s_nop 1")
    for j in range(6): mf(1, j)
    stamp(k, 4)
    e("s_mov_b32 s32, 0x05040100"); e("s_mov_b32 s33, 0x07060302")
    e("v_lshlrev_b32 v12, 4, v1")
    e("s_waitcnt vmcnt(0)")
    for q in range(4):
        e(f"v_perm_b32 v{208+q}, v{201+2*q}, v{200+2*q}, s32")
        e(f"v_perm_b32 v{212+q}, v{201+2*q}, v{200+2*q}, s33")
    e(f"ds_write_b128 v12, v[208:211] offset:{UT+512}"); e(f"ds_write_b128 v12, v[212:215] offset:{UT+UTP+512}")
    k.nop(16)
    e("v_lshrrev_b32 v12, 4, v0"); e("v_lshlrev_b32 v12, 8, v12"); e("v_lshlrev_b32 v13, 2, v10"); e("v_add_u32 v12, v12, v13")
    e("s_mul_i32 s37, s3, 3072"); e(f"s_add_u32 s37, s37, {KT}"); e("v_add_u32 v12, s37, v12")
    for mb in range(3):
        for r in range(4):
            e(f"ds_write_b32 v12, v{ACC+4*mb+r} offset:{mb*1024+r*64}")
    stamp(k, 5)
    IDX = 176
    e("v_lshlrev_b32 v12, 3, v1"); e("v_sub_u32 v12, 2047, v12")
    for m in range(8):
        e(f"v_subrev_u32 v13, {m}, v12")
        e("v_cvt_f32_u32 v13, v13")
        e("v_cvt_pk_bf16_f32 v13, v13, v13"); e("v_lshlrev_b32 v13, 16, v13"); e("v_cvt_u32_f32 v13, v13")
        e("v_lshrrev_b32 v14, 7, v13"); e("v_lshlrev_b32 v14, 3, v14"); e("v_and_b32 v16, 7, v13"); e("v_or_b32 v14, v14, v16")
        e("v_or_b32 v16, 8, v14"); e("v_ffbh_u32 v16, v16"); e("v_sub_u32 v16, 28, v16")
        e("v_lshrrev_b32 v14, v16, v14"); e("v_lshlrev_b32 v16, 3, v16"); e("v_add_u32 v14, v14, v16")
        e("v_lshrrev_b32 v16, 3, v13"); e("v_and_b32 v16, 15, v16")
        e("v_lshlrev_b32 v14, 4, v14"); e("v_add_u32 v14, v14, v16"); e(f"v_lshlrev_b32 v{IDX+m}, 2, v14")
    e("s_waitcnt lgkmcnt(0)"); e("s_barrier")
    stamp(k, 3)
    e("v_and_b32 v10, 15, v0"); e("v_lshrrev_b32 v11, 4, v0")
    e("v_lshlrev_b32 v12, 3, v11"); e("v_sub_u32 v12, v12, v10"); e(f"v_add_u32 v12, {P}, v12")
    e("v_and_b32 v13, 7, v12"); e("v_sub_u32 v12, v12, v13")
    e(f"s_movk_i32 s38, {KCP}"); e("v_mul_lo_u32 v13, v13, s38"); e("v_lshlrev_b32 v12, 1, v12"); e("v_add_u32 v12, v12, v13")
    e(f"v_add_u32 v184, {KC - 960}, v12")
    e("v_lshlrev_b32 v12, 5, v10"); e("v_lshlrev_b32 v13, 4, v11"); e("v_add_u32 v12, v12, v13")
    e(f"v_add_u32 v185, {UT + 512 - 960}, v12")
    e("v_lshlrev_b32 v186, 4, v1")
    RES = 188
    for ch in range(2):
        for m in range(8):
            e(f"ds_read_b32 v{16+m}, v{IDX+m} offset:{KT + (2*ch)*3072}")
            e(f"ds_read_b32 v{24+m}, v{IDX+m} offset:{KT + (2*ch+1)*3072}")
        e("s_waitcnt lgkmcnt(0)")
        for m in range(8): e(f"v_add_f32 v{16+m}, v{16+m}, v{24+m}")
        for q in range(4): e(f"v_cvt_pk_bf16_f32 v{32+q}, v{16+2*q}, v{17+2*q}")
        e(f"ds_write_b128 v186, v[32:35] offset:{KLIN+32}")
        e("s_waitcnt lgkmcnt(0)"); e("s_barrier")
        def copies(addr):
            e(f"ds_read_b128 v[16:19], v{addr} offset:{KLIN}"); e(f"ds_read_b128 v[20:23], v{addr} offset:{KLIN+16}")
            e("s_waitcnt lgkmcnt(0)")
            for q in range(1, 7): e(f"v_mov_b32 v{25+q}, v{16+q}")
            for q in range(7):
                e(f"v_alignbit_b32 v{32+q}, v{17+q}, v{16+q}, 16")
            for q in range(1, 7): e(f"v_mov_b32 v{41+q}, v{32+q}")
            for s in range(8):
                h = s // 2
                if s % 2 == 0: src = (16+h) if h % 2 == 0 else (25+h)
                else: src = (32+h) if h % 2 == 0 else (41+h)
                e(f"ds_write_b128 v{addr}, {vr(src,4)} offset:{KC + s*KCP}")
        copies(186)
        e("v_cmp_gt_u32 vcc, 6, v1"); e("s_and_saveexec_b64 s[30:31], vcc")
        e("v_add_u32 v187, 4096, v186")
        copies(187)
        e("s_mov_b64 exec, s[30:31]")
        e("s_waitcnt lgkmcnt(0)"); e("s_barrier")
        if ch == 1: stamp(k, 6)
        for blk in range(2):
            if blk == 0: e("s_sub_u32 s39, 7, s3")
            else: e("s_mov_b32 s39, s3")
            acc = RES + 8*ch + 4*blk
            for i in range(4): e(f"v_mov_b32 v{acc+i}, 0")
            e("v_mov_b32 v48, v184")
            e("s_lshl_b32 s40, s39, 9"); e(f"s_add_u32 s40, s40, {ch*UTP}"); e("v_add_u32 v49, s40, v185")
            FB = 64; GB = 80
            def rd(slot, stepoff):
                off = 960 - 64*stepoff
                e(f"ds_read_b128 {vr(FB+4*slot,4)}, v48 offset:{off}")
                e(f"ds_read_b128 {vr(GB+4*slot,4)}, v49 offset:{off}")
            for q in range(4): rd(q, q)
            e("s_mov_b32 s41, 0")
            lc = k.new("CV")
            k.lab(lc)
            for q in range(8):
                e("s_waitcnt lgkmcnt(6)")
                e(f"v_mfma_f32_16x16x32_bf16 {vr(acc,4)}, {vr(FB+4*(q%4),4)}, {vr(GB+4*(q%4),4)}, {vr(acc,4)}")
                rd(q % 4, q + 4)
            e("v_subrev_u32 v48, 512, v48"); e("v_subrev_u32 v49, 512, v49")
            e("s_add_u32 s41, s41, 1"); e("s_cmp_le_u32 s41, s39"); e(f"s_cbranch_scc1 {lc}")
            e("s_waitcnt lgkmcnt(6)")
            e(f"v_mfma_f32_16x16x32_bf16 {vr(acc,4)}, {vr(FB,4)}, {vr(GB,4)}, {vr(acc,4)}")
            e("s_waitcnt lgkmcnt(0)")
        if ch == 0: e("s_barrier")
    stamp(k, 7)
    k.nop(16)
    e("s_lshl_b32 s42, s54, 16"); e("s_and_b32 s43, s54, 0xffff0000")
    e("s_movk_i32 s44, 4096")
    for blk in range(2):
        if blk == 0: e("s_sub_u32 s39, 7, s3")
        else: e("s_mov_b32 s39, s3")
        e("v_lshlrev_b32 v12, 4, v10"); e("v_lshlrev_b32 v13, 2, v11"); e("v_add_u32 v12, v12, v13")
        e("s_lshl_b32 s40, s39, 8"); e("v_add_u32 v12, s40, v12")
        e("v_lshlrev_b32 v13, 1, v12")
        e(f"ds_read_b64 v[16:17], v13 offset:{UT+512}"); e(f"ds_read_b64 v[18:19], v13 offset:{UT+UTP+512}")
        e("v_lshlrev_b32 v14, 11, v12"); e("v_add_u32 v14, s25, v14")
        e("s_waitcnt lgkmcnt(0)")
        for r in range(4):
            for ch in range(2):
                src = 16 + 2*ch + r//2
                if r & 1: e(f"v_and_b32 v{20+ch}, 0xffff0000, v{src}")
                else: e(f"v_lshlrev_b32 v{20+ch}, 16, v{src}")
                e(f"v_mul_f32 v{20+ch}, s{42+ch}, v{20+ch}")
            e(f"v_cvt_pk_bf16_f32 v22, v20, v21")
            e(f"v_cvt_pk_bf16_f32 v23, v{RES+4*blk+r}, v{RES+8+4*blk+r}")
            e("v_lshlrev_b32 v24, 16, v22"); e("v_and_b32 v25, 0xffff0000, v22")
            e("v_lshlrev_b32 v26, 16, v23"); e("v_and_b32 v27, 0xffff0000, v23")
            e("v_add_f32 v24, v24, v26"); e("v_add_f32 v25, v25, v27")
            e(f"v_cvt_pk_bf16_f32 v{28+r}, v24, v25")
            so = "0" if r < 2 else "s44"
            e(f"buffer_store_dword v{28+r}, v14, s[48:51], {so} offen offset:{(r%2)*2048}")
    if PROF: e("s_waitcnt vmcnt(0)")
    stamp_out(k, 8)
    return k, 216, (256, 256, LDS)

KERNELS["ssm"] = ssm
```

```python
import os
from gen import K, vr, f32bits, MB, WS_Q, WS_K, WS_V, WS_O, WS_KM, WS_UT, WS_KL, WS_SIZE, LOG2E
import gen_more as GM

def attn2_body(k):
    e = k.e; stamp = GM.stamp
    e("s_load_dwordx2 s[8:9], s[0:1], 96")
    e("v_lshrrev_b32 v1, 6, v0")
    e("v_and_b32 v0, 63, v0")
    e("s_nop 0")
    e("v_readfirstlane_b32 s3, v1")
    e("s_and_b32 s24, s2, 7"); e("s_lshl_b32 s24, s24, 2")
    e("s_lshr_b32 s25, s2, 3"); e("s_and_b32 s25, s25, 3"); e("s_add_u32 s24, s24, s25")
    e("s_lshr_b32 s25, s2, 5")
    e("s_waitcnt lgkmcnt(0)")
    k.srd(20, 8, WS_SIZE)
    e("v_lshlrev_b32 v2, 4, v0")
    e("s_lshl_b32 s26, s25, 3"); e("s_add_u32 s26, s26, s3")
    e("s_lshl_b32 s27, s24, 6"); e("s_add_u32 s27, s27, s26"); e("s_lshl_b32 s27, s27, 10")
    QF = 4
    e(f"buffer_load_dwordx4 {vr(QF,4)}, v2, s[20:23], s27 offen")
    e("v_lshlrev_b32 v8, 2, v0")
    e("s_lshl_b32 s28, s24, 8"); e(f"s_add_u32 s28, s28, {WS_KM}")
    e("buffer_load_dword v11, v8, s[20:23], s28 offen")
    e("s_lshl_b32 s28, s24, 16")
    e("s_lshl_b32 s29, s3, 11")
    e("s_add_u32 s31, s29, s28"); e(f"s_add_u32 s31, s31, {WS_K}")
    e("s_mov_b32 s30, s29")
    e("s_mov_b32 s38, 0")
    ld = k.new("DMA"); k.lab(ld)
    for j in range(2):
        e(f"s_add_u32 s39, s30, {j*1024}"); e("s_mov_b32 m0, s39"); e(f"s_add_u32 s40, s31, {j*1024}")
        e("buffer_load_dwordx4 v2, s[20:23], s40 offen lds")
    e("s_add_u32 s30, s30, 16384"); e("s_add_u32 s31, s31, 16384")
    e("s_add_u32 s38, s38, 1"); e("s_cmp_lt_u32 s38, 4"); e(f"s_cbranch_scc1 {ld}")
    S = [16, 32]; CM = 48; O = 64; KB = [80, 84]; P = 88; VB = [96, 104, 112, 120]; MX = 15
    e("v_and_b32 v3, 15, v0"); e("v_lshlrev_b32 v3, 4, v3")
    e("v_lshrrev_b32 v8, 5, v0"); e("v_lshlrev_b32 v8, 8, v8"); e("v_add_u32 v3, v3, v8")
    e("v_and_b32 v8, 31, v0")
    e("v_cmp_eq_u32 s[32:33], 16, v8"); e("v_cmp_eq_u32 s[34:35], 20, v8")
    e("s_or_b64 s[32:33], s[32:33], s[34:35]")
    e("v_mov_b32 v9, 0x3f803f80")
    e("s_nop 0")
    e("v_cndmask_b32 v9, 0, v9, s[32:33]")
    for i in range(32): e(f"v_mov_b32 v{96+i}, v9")
    e("s_mov_b32 s36, 0x0000ffff"); e("s_mov_b32 s37, 0x0000ffff")
    e(f"s_add_u32 s44, s28, {WS_V}")
    def vload(slot):
        e("s_mov_b64 exec, s[36:37]")
        e(f"buffer_load_dwordx4 {vr(VB[slot],4)}, v3, s[20:23], s43 offen")
        e(f"buffer_load_dwordx4 {vr(VB[slot]+4,4)}, v3, s[20:23], s43 offen offset:512")
        e("s_mov_b64 exec, -1")
        e("s_add_u32 s43, s43, 1024")
    e("s_mov_b32 s43, s44")
    for i in range(3): vload(i)
    e("s_waitcnt vmcnt(14)")
    e("v_mov_b32 v12, 0")
    for i in range(4): e(f"v_dot2c_f32_bf16 v12, v{QF+i}, v{QF+i}")
    for mod in ("quad_perm:[1,0,3,2]", "quad_perm:[2,3,0,1]", "row_half_mirror", "row_mirror"):
        k.nop(2)
        e(f"v_max_f32_dpp v11, v11, v11 {mod} row_mask:0xf bank_mask:0xf")
    e("v_mov_b32 v13, v11"); e("v_mov_b32 v14, v12")
    k.nop(2)
    e("v_permlane16_swap_b32 v11, v13"); e("v_permlane32_swap_b32 v12, v14")
    k.nop(2)
    e("v_max_f32 v11, v11, v13"); e("v_add_f32 v12, v12, v14")
    e("v_mov_b32 v13, v11")
    k.nop(2)
    e("v_permlane32_swap_b32 v11, v13")
    k.nop(2)
    e("v_max_f32 v11, v11, v13")
    e("v_mul_f32 v12, v12, v11"); e("v_sqrt_f32 v12, v12"); e("s_nop 0")
    e(f"v_mul_f32 v{MX}, {hex(f32bits(-1.01))}, v12")
    for i in range(16): e(f"v_mov_b32 v{CM+i}, v{MX}")
    lstart = k.new("P2S"); lep = k.new("EPI")
    e("s_mov_b32 s41, 63")
    e("s_waitcnt vmcnt(12)"); e("s_barrier")
    stamp(k, 1)
    k.lab(lstart)
    for i in range(16): e(f"v_mov_b32 v{O+i}, 0")
    e("v_mov_b32 v10, v2")
    e(f"ds_read_b128 {vr(KB[0],4)}, v10")
    e("s_waitcnt lgkmcnt(0)")
    e(f"v_mfma_f32_32x32x16_bf16 {vr(S[0],16)}, {vr(KB[0],4)}, {vr(QF,4)}, {vr(CM,16)}")
    e(f"ds_read_b128 {vr(KB[1],4)}, v10 offset:1024")
    k.nop(10)
    e("s_mov_b32 s38, 0")
    l2 = k.new("P2"); k.lab(l2)
    lnb = k.new("NB"); lbb = k.new("BB")
    e("s_and_b32 s39, s38, s41"); e("s_cmp_eq_u32 s39, 4"); e(f"s_cbranch_scc1 {lbb}")
    k.lab(lnb)
    for t in range(4):
        p = t & 1
        e("s_waitcnt lgkmcnt(0)")
        e(f"v_mfma_f32_32x32x16_bf16 {vr(S[1-p],16)}, {vr(KB[1-p],4)}, {vr(QF,4)}, {vr(CM,16)}")
        e(f"ds_read_b128 {vr(KB[p],4)}, v10 offset:{2048 + t*1024}")
        vload((t+3) & 3)
        for i in range(12): e(f"v_exp_f32 v{S[p]+i}, v{S[p]+i}")
        for i in range(4): e(f"v_cvt_pk_bf16_f32 v{P+i}, v{S[p]+2*i}, v{S[p]+2*i+1}")
        for i in range(12, 16): e(f"v_exp_f32 v{S[p]+i}, v{S[p]+i}")
        e("s_waitcnt vmcnt(6)")
        e(f"v_mfma_f32_32x32x16_bf16 {vr(O,16)}, {vr(VB[t],4)}, {vr(P,4)}, {vr(O,16)}")
        for i in range(4, 8): e(f"v_cvt_pk_bf16_f32 v{P+i}, v{S[p]+2*i}, v{S[p]+2*i+1}")
        k.nop(2)
        e(f"v_mfma_f32_32x32x16_bf16 {vr(O,16)}, {vr(VB[t]+4,4)}, {vr(P+4,4)}, {vr(O,16)}")
    e("v_add_u32 v10, 4096, v10")
    e("s_add_u32 s38, s38, 4"); e("s_cmp_lt_u32 s38, 64"); e(f"s_cbranch_scc1 {l2}")
    stamp(k, 2)
    k.nop(16)
    e(f"v_cmp_gt_f32 vcc, {hex(f32bits(2.0**-60))}, v{O+8}")
    e("s_waitcnt vmcnt(0) lgkmcnt(0)")
    e("s_cmp_eq_u32 s41, 0"); e(f"s_cbranch_scc1 {lep}")
    e(f"s_cbranch_vccz {lep}")
    lfb = k.new("FB"); e(f"s_branch {lfb}")
    k.lab(lbb); e("s_barrier"); e(f"s_branch {lnb}")
    k.lab(lfb)
    e("s_mov_b32 s41, 0")
    e("s_mov_b32 s43, s44")
    for i in range(3): vload(i)
    e(f"v_mov_b32 v{MX}, 0xff800000")
    e("v_mov_b32 v10, v2")
    e(f"ds_read_b128 {vr(KB[0],4)}, v10")
    e(f"ds_read_b128 {vr(KB[1],4)}, v10 offset:1024")
    e("s_waitcnt lgkmcnt(1)")
    e(f"v_mfma_f32_32x32x16_bf16 {vr(S[0],16)}, {vr(KB[0],4)}, {vr(QF,4)}, 0")
    e(f"ds_read_b128 {vr(KB[0],4)}, v10 offset:2048")
    e("s_mov_b32 s38, 0")
    l1 = k.new("P1"); k.lab(l1)
    e("s_waitcnt lgkmcnt(1)")
    e(f"v_mfma_f32_32x32x16_bf16 {vr(S[1],16)}, {vr(KB[1],4)}, {vr(QF,4)}, 0")
    e(f"ds_read_b128 {vr(KB[1],4)}, v10 offset:3072")
    k.nop(10)
    for i in range(8): e(f"v_max3_f32 v{MX}, v{S[0]+2*i}, v{S[0]+2*i+1}, v{MX}")
    e("s_waitcnt lgkmcnt(1)")
    e(f"v_mfma_f32_32x32x16_bf16 {vr(S[0],16)}, {vr(KB[0],4)}, {vr(QF,4)}, 0")
    e(f"ds_read_b128 {vr(KB[0],4)}, v10 offset:4096")
    e("v_add_u32 v10, 2048, v10")
    k.nop(9)
    for i in range(8): e(f"v_max3_f32 v{MX}, v{S[1]+2*i}, v{S[1]+2*i+1}, v{MX}")
    e("s_add_u32 s38, s38, 2"); e("s_cmp_lt_u32 s38, 64"); e(f"s_cbranch_scc1 {l1}")
    e("v_mov_b32 v14, v15")
    k.nop(2)
    e("v_permlane32_swap_b32 v15, v14")
    k.nop(2)
    e("v_max_f32 v15, v15, v14")
    e("v_sub_f32 v15, 0, v15")
    for i in range(16): e(f"v_mov_b32 v{CM+i}, v15")
    e("s_waitcnt lgkmcnt(0)")
    k.nop(4)
    e(f"s_branch {lstart}")
    k.lab(lep)
    e(f"v_rcp_f32 v8, v{O+8}")
    k.nop(1)
    for i in range(8): e(f"v_mul_f32 v{O+i}, v{O+i}, v8")
    for i in range(4): e(f"v_cvt_pk_bf16_f32 v{P+i}, v{O+2*i}, v{O+2*i+1}")
    e(f"s_add_u32 s27, s27, {WS_O}")
    e(f"buffer_store_dwordx4 {vr(P,4)}, v2, s[20:23], s27 offen")
    stamp(k, 3)

CONV8_LDS = 1024 + 2*4640 + 2*34304
def conv8_body(k):
    e = k.e; stamp = GM.stamp; PROF = GM.PROF
    UT = 1024; UTP = 4640; KC = UT + 2*UTP; KCP = 4288; KCC = 34304
    P = 2063
    e("s_load_dwordx2 s[68:69], s[0:1], 48")
    e("s_load_dwordx2 s[70:71], s[0:1], 80")
    e("s_load_dwordx2 s[56:57], s[0:1], 96")
    e("v_mov_b32 v1, v0")
    e("v_lshrrev_b32 v2, 6, v0")
    e("v_and_b32 v0, 63, v0")
    e("s_nop 0")
    e("v_readfirstlane_b32 s3, v2")
    e("s_lshr_b32 s4, s3, 2"); e("s_and_b32 s5, s3, 3")
    e("s_and_b32 s24, s2, 7"); e("s_lshl_b32 s24, s24, 5"); e("s_lshr_b32 s25, s2, 3"); e("s_add_u32 s24, s24, s25")
    e("s_lshl_b32 s24, s24, 1"); e("s_lshl_b32 s25, s24, 1")
    e("s_waitcnt lgkmcnt(0)")
    k.srd(48, 70, 4*MB); k.srd(12, 56, WS_SIZE)
    e("s_add_u32 s68, s68, s25"); e("s_addc_u32 s69, s69, 0"); e("s_load_dword s54, s[68:69], 0")
    e("s_add_u32 s26, s24, s4"); e("s_lshl_b32 s26, s26, 12")
    e(f"s_add_u32 s27, s26, {WS_KL}")
    e("s_add_u32 s16, s56, s27"); e("s_addc_u32 s17, s57, 0"); e("s_and_b32 s17, s17, 0xffff")
    e("s_mov_b32 s18, 4096"); e("s_mov_b32 s19, 0x00020000")
    e("v_and_b32 v56, 255, v1")
    e("v_lshlrev_b32 v57, 4, v56")
    e("v_subrev_u32 v3, 32, v57"); e("v_add_u32 v4, 4096, v3")
    e("buffer_load_dwordx4 v[64:67], v3, s[16:19], 0 offen")
    e("buffer_load_dwordx4 v[68:71], v3, s[16:19], 0 offen offset:16")
    e(f"s_add_u32 s27, s26, {WS_UT}")
    e("buffer_load_dwordx4 v[80:83], v57, s[12:15], s27 offen")
    e("buffer_load_dwordx4 v[72:75], v4, s[16:19], 0 offen")
    e("buffer_load_dwordx4 v[76:79], v4, s[16:19], 0 offen offset:16")
    e(f"s_mul_i32 s28, s4, {UTP}"); e(f"s_mul_i32 s29, s4, {KCC}")
    e("v_add_u32 v58, s28, v57")
    e("v_add_u32 v59, s29, v57")
    e("v_add_u32 v60, 4096, v59")
    for i in range(4): e(f"v_mov_b32 v{16+i}, 0")
    e("v_cmp_gt_u32 vcc, 32, v56"); e("s_and_saveexec_b64 s[30:31], vcc")
    e(f"ds_write_b128 v58, v[16:19] offset:{UT}")
    e("s_mov_b64 exec, s[30:31]")
    e("v_cmp_gt_u32 vcc, 2, v56"); e("s_and_saveexec_b64 s[30:31], vcc")
    e(f"ds_write_b128 v58, v[16:19] offset:{UT+4608}")
    e("s_mov_b64 exec, s[30:31]")
    e("v_and_b32 v14, 15, v0"); e("v_lshrrev_b32 v11, 4, v0")
    e("v_lshlrev_b32 v12, 3, v11"); e("v_sub_u32 v12, v12, v14"); e(f"v_add_u32 v12, {P}, v12")
    e("v_and_b32 v13, 7, v12"); e("v_sub_u32 v12, v12, v13")
    e(f"s_movk_i32 s38, {KCP}"); e("v_mul_lo_u32 v13, v13, s38"); e("v_lshlrev_b32 v12, 1, v12"); e("v_add_u32 v12, v12, v13")
    e(f"v_add_u32 v61, {KC - 960}, v12"); e("v_add_u32 v61, s29, v61")
    e("v_lshlrev_b32 v12, 5, v14"); e("v_lshlrev_b32 v13, 4, v11"); e("v_add_u32 v12, v12, v13")
    e(f"v_add_u32 v62, {UT + 512 - 960}, v12"); e("v_add_u32 v62, s28, v62")
    def copies(addr, src):
        for q in range(1, 7): e(f"v_mov_b32 v{25+q}, v{src+q}")
        for q in range(7): e(f"v_alignbit_b32 v{32+q}, v{src+1+q}, v{src+q}, 16")
        for q in range(1, 7): e(f"v_mov_b32 v{41+q}, v{32+q}")
        for s in range(8):
            h = s // 2
            if s % 2 == 0: r = (src+h) if h % 2 == 0 else (25+h)
            else: r = (32+h) if h % 2 == 0 else (41+h)
            e(f"ds_write_b128 v{addr}, {vr(r,4)} offset:{KC + s*KCP}")
    e("s_waitcnt vmcnt(3)")
    stamp(k, 1)
    copies(59, 64)
    e("s_waitcnt vmcnt(2)")
    e(f"ds_write_b128 v58, v[80:83] offset:{UT+512}")
    e("s_waitcnt vmcnt(0)")
    e("v_cmp_gt_u32 vcc, 6, v56"); e("s_and_saveexec_b64 s[30:31], vcc")
    copies(60, 72)
    e("s_mov_b64 exec, s[30:31]")
    e("s_waitcnt lgkmcnt(0)"); e("s_barrier")
    stamp(k, 2)
    RES = 48; FB = 96; GB = 112
    for blk in range(2):
        if blk == 0: e("s_sub_u32 s39, 7, s5")
        else: e("s_mov_b32 s39, s5")
        acc = RES + 4*blk
        for i in range(4): e(f"v_mov_b32 v{acc+i}, 0")
        e("v_mov_b32 v8, v61")
        e("s_lshl_b32 s40, s39, 9"); e("v_add_u32 v9, s40, v62")
        def rd(slot, stepoff):
            off = 960 - 64*stepoff
            e(f"ds_read_b128 {vr(FB+4*slot,4)}, v8 offset:{off}")
            e(f"ds_read_b128 {vr(GB+4*slot,4)}, v9 offset:{off}")
        for q in range(4): rd(q, q)
        e("s_mov_b32 s41, 0")
        lc = k.new("CV"); k.lab(lc)
        for q in range(8):
            e("s_waitcnt lgkmcnt(6)")
            e(f"v_mfma_f32_16x16x32_bf16 {vr(acc,4)}, {vr(FB+4*(q%4),4)}, {vr(GB+4*(q%4),4)}, {vr(acc,4)}")
            rd(q % 4, q + 4)
        e("v_subrev_u32 v8, 512, v8"); e("v_subrev_u32 v9, 512, v9")
        e("s_add_u32 s41, s41, 1"); e("s_cmp_le_u32 s41, s39"); e(f"s_cbranch_scc1 {lc}")
        e("s_waitcnt lgkmcnt(6)")
        e(f"v_mfma_f32_16x16x32_bf16 {vr(acc,4)}, {vr(FB,4)}, {vr(GB,4)}, {vr(acc,4)}")
        e("s_waitcnt lgkmcnt(0)")
    stamp(k, 3)
    e("s_lshl_b32 s42, s54, 16"); e("s_and_b32 s43, s54, 0xffff0000"); e("s_cmp_eq_u32 s4, 0"); e("s_cselect_b32 s42, s42, s43")
    e("s_lshl_b32 s44, s4, 1")
    for blk in range(2):
        if blk == 0: e("s_sub_u32 s39, 7, s5")
        else: e("s_mov_b32 s39, s5")
        e("v_lshlrev_b32 v12, 4, v14"); e("v_lshlrev_b32 v13, 2, v11"); e("v_add_u32 v12, v12, v13")
        e("s_lshl_b32 s40, s39, 8"); e("v_add_u32 v12, s40, v12")
        e("v_lshlrev_b32 v13, 1, v12"); e("v_add_u32 v13, s28, v13")
        e(f"ds_read_b64 v[16:17], v13 offset:{UT+512}")
        e(f"v_lshlrev_b32 v{36+blk}, 2, v12"); e(f"v_add_u32 v{36+blk}, s44, v{36+blk}")
        k.nop(4)
        e("s_waitcnt lgkmcnt(0)")
        for r2 in range(2):
            e(f"v_lshlrev_b32 v20, 16, v{16+r2}"); e(f"v_and_b32 v21, 0xffff0000, v{16+r2}")
            e("v_mul_f32 v20, s42, v20"); e("v_mul_f32 v21, s42, v21")
            e("v_cvt_pk_bf16_f32 v22, v20, v21")
            e(f"v_cvt_pk_bf16_f32 v23, v{RES+4*blk+2*r2}, v{RES+4*blk+2*r2+1}")
            e("v_lshlrev_b32 v24, 16, v22"); e("v_and_b32 v25, 0xffff0000, v22")
            e("v_lshlrev_b32 v26, 16, v23"); e("v_and_b32 v27, 0xffff0000, v23")
            e("v_add_f32 v24, v24, v26"); e("v_add_f32 v25, v25, v27")
            e(f"v_cvt_pk_bf16_f32 v{32+2*blk+r2}, v24, v25")
    e("s_barrier")
    for blk in range(2):
        for r2 in range(2):
            e(f"ds_write_b16 v{36+blk}, v{32+2*blk+r2} offset:{KC + 8*r2}")
            e(f"ds_write_b16_d16_hi v{36+blk}, v{32+2*blk+r2} offset:{KC + 8*r2 + 4}")
    e("s_waitcnt lgkmcnt(0)"); e("s_barrier")
    e("v_lshlrev_b32 v12, 4, v1")
    e(f"ds_read_b128 v[16:19], v12 offset:{KC}")
    e("v_lshlrev_b32 v13, 13, v1"); e("v_add_u32 v13, s25, v13")
    e("s_movk_i32 s44, 4096")
    e("s_waitcnt lgkmcnt(0)")
    for r in range(4):
        so = "0" if r < 2 else "s44"
        e(f"buffer_store_dword v{16+r}, v13, s[48:51], {so} offen offset:{(r%2)*2048}")
    if PROF: e("s_waitcnt vmcnt(0)")
    stamp(k, 4)

def l2():
    k = K("l2_kernel"); e = k.e
    lc = k.new("CONV")
    e("s_cmp_ge_u32 s2, 512"); e(f"s_cbranch_scc1 {k.name}_end")
    order = os.environ.get("L2ORD", "0")
    if order == "0":
        e("s_cmp_ge_u32 s2, 256"); e(f"s_cbranch_scc1 {lc}")
    else:
        e("s_cmp_lt_u32 s2, 256"); e(f"s_cbranch_scc1 {lc}")
        e("s_sub_u32 s2, s2, 256")
    if os.environ.get("L2PRIO", "0") == "1": e("s_setprio 2")
    if GM.PROF: e("s_memrealtime s[88:89]")
    GM.stamp(k, 0)
    attn2_body(k)
    GM.stamp_out(k, 4)
    e("s_endpgm")
    k.lab(lc)
    if order == "0": e("s_sub_u32 s2, s2, 256")
    if GM.PROF: e("s_memrealtime s[88:89]")
    GM.stamp(k, 0)
    conv8_body(k)
    GM.stamp_out(k, 5, 32)
    return k, 128, (512, 512, CONV8_LDS)
KERNELS = {"l2": l2}

def attn2():
    k = K("attn2_kernel"); e = k.e
    e("s_cmp_ge_u32 s2, 256"); e(f"s_cbranch_scc1 {k.name}_end")
    if GM.PROF: e("s_memrealtime s[88:89]")
    GM.stamp(k, 0)
    attn2_body(k)
    GM.stamp_out(k, 4)
    return k, 128, (256, 512, 65536)
KERNELS["attn2"] = attn2

def pref():
    k = K("pref_kernel"); e = k.e
    e("s_cmp_ge_u32 s2, 256"); e(f"s_cbranch_scc1 {k.name}_end")
    if os.environ.get("EMPTY", "0") == "1":
        return k, 64, (256, 256, 0)
    e("s_load_dwordx16 s[16:31], s[0:1], 0")
    e("s_load_dwordx4 s[32:35], s[0:1], 64")
    e("s_lshl_b32 s3, s2, 8"); e("v_add_u32 v1, s3, v0"); e("v_lshlrev_b32 v1, 4, v1")
    e("s_waitcnt lgkmcnt(0)")
    r = 8
    for base, size in ((16, 2*MB), (30, 2*MB), (32, 1536*1024), (34, 512*1024), (18, 131072), (20, 131072), (22, 131072), (24, 131072)):
        k.srd(40, base, size)
        for off in range(0, size, MB):
            e(f"s_mov_b32 s44, {off}")
            e(f"buffer_load_dwordx4 {vr(r,4)}, v1, s[40:43], s44 offen"); r += 4
        e("s_nop 4")
    e("s_waitcnt vmcnt(0)")
    return k, 64, (256, 256, 0)
KERNELS["pref"] = pref
```

```python
import os
from gen import K, vr, f32bits, MB, WS_Q, WS_K, WS_V, WS_O, WS_KM, WS_UT, WS_KL, WS_SIZE, LOG2E
import gen_more as GM

def attn2_body(k):
    e = k.e; stamp = GM.stamp
    e("s_load_dwordx2 s[8:9], s[0:1], 96")
    e("v_lshrrev_b32 v1, 6, v0")
    e("v_and_b32 v0, 63, v0")
    e("s_nop 0")
    e("v_readfirstlane_b32 s3, v1")
    if os.environ.get("YPRIO", "0") == "1":
        lp_ = k.new("PR"); e("s_nop 3"); e("s_cmp_ge_u32 s3, 4"); e(f"s_cbranch_scc0 {lp_}"); e("s_setprio 1"); k.lab(lp_)
    e("s_and_b32 s24, s2, 7"); e("s_lshl_b32 s24, s24, 2")
    e("s_lshr_b32 s25, s2, 3"); e("s_and_b32 s25, s25, 3"); e("s_add_u32 s24, s24, s25")
    e("s_lshr_b32 s25, s2, 5")
    e("s_waitcnt lgkmcnt(0)")
    k.srd(20, 8, WS_SIZE)
    e("v_lshlrev_b32 v2, 4, v0")
    e("s_lshl_b32 s26, s25, 3"); e("s_add_u32 s26, s26, s3")
    e("s_lshl_b32 s27, s24, 6"); e("s_add_u32 s27, s27, s26"); e("s_lshl_b32 s27, s27, 10")
    QF = 4
    e(f"buffer_load_dwordx4 {vr(QF,4)}, v2, s[20:23], s27 offen")
    e("v_lshlrev_b32 v8, 2, v0")
    e("s_lshl_b32 s28, s24, 8"); e(f"s_add_u32 s28, s28, {WS_KM}")
    e("buffer_load_dword v11, v8, s[20:23], s28 offen")
    e("s_lshl_b32 s28, s24, 16")
    e("s_lshl_b32 s29, s3, 11")
    e("s_add_u32 s31, s29, s28"); e(f"s_add_u32 s31, s31, {WS_K}")
    e("s_mov_b32 s30, s29")
    e("s_mov_b32 s38, 0")
    ld = k.new("DMA"); k.lab(ld)
    for j in range(2):
        e(f"s_add_u32 s39, s30, {j*1024}"); e("s_mov_b32 m0, s39"); e(f"s_add_u32 s40, s31, {j*1024}")
        e("buffer_load_dwordx4 v2, s[20:23], s40 offen lds")
    e("s_add_u32 s30, s30, 16384"); e("s_add_u32 s31, s31, 16384")
    e("s_add_u32 s38, s38, 1"); e("s_cmp_lt_u32 s38, 4"); e(f"s_cbranch_scc1 {ld}")
    S = [16, 32]; CM = 48; O = 64; KB = [80, 84]; P = 88; VB = [96, 104, 112, 120]; MX = 15
    e("v_and_b32 v3, 15, v0"); e("v_lshlrev_b32 v3, 4, v3")
    e("v_lshrrev_b32 v8, 5, v0"); e("v_lshlrev_b32 v8, 8, v8"); e("v_add_u32 v3, v3, v8")
    e("v_and_b32 v8, 31, v0")
    e("v_cmp_eq_u32 s[32:33], 16, v8"); e("v_cmp_eq_u32 s[34:35], 20, v8")
    e("s_or_b64 s[32:33], s[32:33], s[34:35]")
    e("v_mov_b32 v9, 0x3f803f80")
    e("s_nop 0")
    e("v_cndmask_b32 v9, 0, v9, s[32:33]")
    for i in range(32): e(f"v_mov_b32 v{96+i}, v9")
    e("s_mov_b32 s36, 0x0000ffff"); e("s_mov_b32 s37, 0x0000ffff")
    e(f"s_add_u32 s44, s28, {WS_V}")
    def vload(slot):
        e("s_mov_b64 exec, s[36:37]")
        e(f"buffer_load_dwordx4 {vr(VB[slot],4)}, v3, s[20:23], s43 offen")
        e(f"buffer_load_dwordx4 {vr(VB[slot]+4,4)}, v3, s[20:23], s43 offen offset:512")
        e("s_mov_b64 exec, -1")
        e("s_add_u32 s43, s43, 1024")
    e("s_mov_b32 s43, s44")
    for i in range(3): vload(i)
    e("s_waitcnt vmcnt(14)")
    e("v_mov_b32 v12, 0")
    for i in range(4): e(f"v_dot2c_f32_bf16 v12, v{QF+i}, v{QF+i}")
    for mod in ("quad_perm:[1,0,3,2]", "quad_perm:[2,3,0,1]", "row_half_mirror", "row_mirror"):
        k.nop(2)
        e(f"v_max_f32_dpp v11, v11, v11 {mod} row_mask:0xf bank_mask:0xf")
    e("v_mov_b32 v13, v11"); e("v_mov_b32 v14, v12")
    k.nop(2)
    e("v_permlane16_swap_b32 v11, v13"); e("v_permlane32_swap_b32 v12, v14")
    k.nop(2)
    e("v_max_f32 v11, v11, v13"); e("v_add_f32 v12, v12, v14")
    e("v_mov_b32 v13, v11")
    k.nop(2)
    e("v_permlane32_swap_b32 v11, v13")
    k.nop(2)
    e("v_max_f32 v11, v11, v13")
    e("v_mul_f32 v12, v12, v11"); e("v_sqrt_f32 v12, v12"); e("s_nop 0")
    e(f"v_mul_f32 v{MX}, {hex(f32bits(-1.01))}, v12")
    for i in range(16): e(f"v_mov_b32 v{CM+i}, v{MX}")
    lstart = k.new("P2S"); lep = k.new("EPI")
    e("s_mov_b32 s41, 63")
    e("s_waitcnt vmcnt(12)"); e("s_barrier")
    stamp(k, 1)
    k.lab(lstart)
    for i in range(16): e(f"v_mov_b32 v{O+i}, 0")
    e("v_mov_b32 v10, v2")
    e(f"ds_read_b128 {vr(KB[0],4)}, v10")
    e("s_waitcnt lgkmcnt(0)")
    e(f"v_mfma_f32_32x32x16_bf16 {vr(S[0],16)}, {vr(KB[0],4)}, {vr(QF,4)}, {vr(CM,16)}")
    e(f"ds_read_b128 {vr(KB[1],4)}, v10 offset:1024")
    k.nop(10)
    e("s_mov_b32 s38, 0")
    l2 = k.new("P2"); k.lab(l2)
    lnb = k.new("NB"); lbb = k.new("BB")
    e("s_and_b32 s39, s38, s41"); e("s_cmp_eq_u32 s39, 4"); e(f"s_cbranch_scc1 {lbb}")
    k.lab(lnb)
    for t in range(4):
        p = t & 1
        e("s_waitcnt lgkmcnt(0)")
        e(f"v_mfma_f32_32x32x16_bf16 {vr(S[1-p],16)}, {vr(KB[1-p],4)}, {vr(QF,4)}, {vr(CM,16)}")
        e(f"ds_read_b128 {vr(KB[p],4)}, v10 offset:{2048 + t*1024}")
        vload((t+3) & 3)
        for i in range(12): e(f"v_exp_f32 v{S[p]+i}, v{S[p]+i}")
        for i in range(4): e(f"v_cvt_pk_bf16_f32 v{P+i}, v{S[p]+2*i}, v{S[p]+2*i+1}")
        for i in range(12, 16): e(f"v_exp_f32 v{S[p]+i}, v{S[p]+i}")
        e("s_waitcnt vmcnt(6)")
        e(f"v_mfma_f32_32x32x16_bf16 {vr(O,16)}, {vr(VB[t],4)}, {vr(P,4)}, {vr(O,16)}")
        for i in range(4, 8): e(f"v_cvt_pk_bf16_f32 v{P+i}, v{S[p]+2*i}, v{S[p]+2*i+1}")
        k.nop(2)
        e(f"v_mfma_f32_32x32x16_bf16 {vr(O,16)}, {vr(VB[t]+4,4)}, {vr(P+4,4)}, {vr(O,16)}")
    e("v_add_u32 v10, 4096, v10")
    e("s_add_u32 s38, s38, 4"); e("s_cmp_lt_u32 s38, 64"); e(f"s_cbranch_scc1 {l2}")
    stamp(k, 2)
    k.nop(16)
    e(f"v_cmp_gt_f32 vcc, {hex(f32bits(2.0**-60))}, v{O+8}")
    e("s_waitcnt vmcnt(0) lgkmcnt(0)")
    e("s_cmp_eq_u32 s41, 0"); e(f"s_cbranch_scc1 {lep}")
    e(f"s_cbranch_vccz {lep}")
    lfb = k.new("FB"); e(f"s_branch {lfb}")
    k.lab(lbb); e("s_barrier"); e(f"s_branch {lnb}")
    k.lab(lfb)
    e("s_mov_b32 s41, 0")
    e("s_mov_b32 s43, s44")
    for i in range(3): vload(i)
    e(f"v_mov_b32 v{MX}, 0xff800000")
    e("v_mov_b32 v10, v2")
    e(f"ds_read_b128 {vr(KB[0],4)}, v10")
    e(f"ds_read_b128 {vr(KB[1],4)}, v10 offset:1024")
    e("s_waitcnt lgkmcnt(1)")
    e(f"v_mfma_f32_32x32x16_bf16 {vr(S[0],16)}, {vr(KB[0],4)}, {vr(QF,4)}, 0")
    e(f"ds_read_b128 {vr(KB[0],4)}, v10 offset:2048")
    e("s_mov_b32 s38, 0")
    l1 = k.new("P1"); k.lab(l1)
    e("s_waitcnt lgkmcnt(1)")
    e(f"v_mfma_f32_32x32x16_bf16 {vr(S[1],16)}, {vr(KB[1],4)}, {vr(QF,4)}, 0")
    e(f"ds_read_b128 {vr(KB[1],4)}, v10 offset:3072")
    k.nop(10)
    for i in range(8): e(f"v_max3_f32 v{MX}, v{S[0]+2*i}, v{S[0]+2*i+1}, v{MX}")
    e("s_waitcnt lgkmcnt(1)")
    e(f"v_mfma_f32_32x32x16_bf16 {vr(S[0],16)}, {vr(KB[0],4)}, {vr(QF,4)}, 0")
    e(f"ds_read_b128 {vr(KB[0],4)}, v10 offset:4096")
    e("v_add_u32 v10, 2048, v10")
    k.nop(9)
    for i in range(8): e(f"v_max3_f32 v{MX}, v{S[1]+2*i}, v{S[1]+2*i+1}, v{MX}")
    e("s_add_u32 s38, s38, 2"); e("s_cmp_lt_u32 s38, 64"); e(f"s_cbranch_scc1 {l1}")
    e("v_mov_b32 v14, v15")
    k.nop(2)
    e("v_permlane32_swap_b32 v15, v14")
    k.nop(2)
    e("v_max_f32 v15, v15, v14")
    e("v_sub_f32 v15, 0, v15")
    for i in range(16): e(f"v_mov_b32 v{CM+i}, v15")
    e("s_waitcnt lgkmcnt(0)")
    k.nop(4)
    e(f"s_branch {lstart}")
    k.lab(lep)
    e(f"v_rcp_f32 v8, v{O+8}")
    k.nop(1)
    for i in range(8): e(f"v_mul_f32 v{O+i}, v{O+i}, v8")
    for i in range(4): e(f"v_cvt_pk_bf16_f32 v{P+i}, v{O+2*i}, v{O+2*i+1}")
    e(f"s_add_u32 s27, s27, {WS_O}")
    e(f"buffer_store_dwordx4 {vr(P,4)}, v2, s[20:23], s27 offen")
    stamp(k, 3)

CONV8_LDS = 1024 + 2*4640 + 2*34304
def conv8_body(k):
    e = k.e; stamp = GM.stamp; PROF = GM.PROF
    UT = 1024; UTP = 4640; KC = UT + 2*UTP; KCP = 4288; KCC = 34304
    P = 2063
    e("s_load_dwordx2 s[68:69], s[0:1], 48")
    e("s_load_dwordx2 s[70:71], s[0:1], 80")
    e("s_load_dwordx2 s[56:57], s[0:1], 96")
    e("v_mov_b32 v1, v0")
    e("v_lshrrev_b32 v2, 6, v0")
    e("v_and_b32 v0, 63, v0")
    e("s_nop 0")
    e("v_readfirstlane_b32 s3, v2")
    e("s_lshr_b32 s4, s3, 2"); e("s_and_b32 s5, s3, 3")
    e("s_and_b32 s24, s2, 7"); e("s_lshl_b32 s24, s24, 5"); e("s_lshr_b32 s25, s2, 3"); e("s_add_u32 s24, s24, s25")
    e("s_lshl_b32 s24, s24, 1"); e("s_lshl_b32 s25, s24, 1")
    e("s_waitcnt lgkmcnt(0)")
    k.srd(48, 70, 4*MB); k.srd(12, 56, WS_SIZE)
    e("s_add_u32 s68, s68, s25"); e("s_addc_u32 s69, s69, 0"); e("s_load_dword s54, s[68:69], 0")
    e("s_add_u32 s26, s24, s4"); e("s_lshl_b32 s26, s26, 12")
    e(f"s_add_u32 s27, s26, {WS_KL}")
    e("s_add_u32 s16, s56, s27"); e("s_addc_u32 s17, s57, 0"); e("s_and_b32 s17, s17, 0xffff")
    e("s_mov_b32 s18, 4096"); e("s_mov_b32 s19, 0x00020000")
    e("v_and_b32 v56, 255, v1")
    e("v_lshlrev_b32 v57, 4, v56")
    e("v_subrev_u32 v3, 32, v57"); e("v_add_u32 v4, 4096, v3")
    e("buffer_load_dwordx4 v[64:67], v3, s[16:19], 0 offen")
    e("buffer_load_dwordx4 v[68:71], v3, s[16:19], 0 offen offset:16")
    e(f"s_add_u32 s27, s26, {WS_UT}")
    e("buffer_load_dwordx4 v[80:83], v57, s[12:15], s27 offen")
    e("buffer_load_dwordx4 v[72:75], v4, s[16:19], 0 offen")
    e("buffer_load_dwordx4 v[76:79], v4, s[16:19], 0 offen offset:16")
    e(f"s_mul_i32 s28, s4, {UTP}"); e(f"s_mul_i32 s29, s4, {KCC}")
    e("v_add_u32 v58, s28, v57")
    e("v_add_u32 v59, s29, v57")
    e("v_add_u32 v60, 4096, v59")
    for i in range(4): e(f"v_mov_b32 v{16+i}, 0")
    e("v_cmp_gt_u32 vcc, 32, v56"); e("s_and_saveexec_b64 s[30:31], vcc")
    e(f"ds_write_b128 v58, v[16:19] offset:{UT}")
    e("s_mov_b64 exec, s[30:31]")
    e("v_cmp_gt_u32 vcc, 2, v56"); e("s_and_saveexec_b64 s[30:31], vcc")
    e(f"ds_write_b128 v58, v[16:19] offset:{UT+4608}")
    e("s_mov_b64 exec, s[30:31]")
    e("v_and_b32 v14, 15, v0"); e("v_lshrrev_b32 v11, 4, v0")
    e("v_lshlrev_b32 v12, 3, v11"); e("v_sub_u32 v12, v12, v14"); e(f"v_add_u32 v12, {P}, v12")
    e("v_and_b32 v13, 7, v12"); e("v_sub_u32 v12, v12, v13")
    e(f"s_movk_i32 s38, {KCP}"); e("v_mul_lo_u32 v13, v13, s38"); e("v_lshlrev_b32 v12, 1, v12"); e("v_add_u32 v12, v12, v13")
    e(f"v_add_u32 v61, {KC - 960}, v12"); e("v_add_u32 v61, s29, v61")
    e("v_lshlrev_b32 v12, 5, v14"); e("v_lshlrev_b32 v13, 4, v11"); e("v_add_u32 v12, v12, v13")
    e(f"v_add_u32 v62, {UT + 512 - 960}, v12"); e("v_add_u32 v62, s28, v62")
    def copies(addr, src):
        for q in range(1, 7): e(f"v_mov_b32 v{25+q}, v{src+q}")
        for q in range(7): e(f"v_alignbit_b32 v{32+q}, v{src+1+q}, v{src+q}, 16")
        for q in range(1, 7): e(f"v_mov_b32 v{41+q}, v{32+q}")
        for s in range(8):
            h = s // 2
            if s % 2 == 0: r = (src+h) if h % 2 == 0 else (25+h)
            else: r = (32+h) if h % 2 == 0 else (41+h)
            e(f"ds_write_b128 v{addr}, {vr(r,4)} offset:{KC + s*KCP}")
    e("s_waitcnt vmcnt(3)")
    stamp(k, 1)
    copies(59, 64)
    e("s_waitcnt vmcnt(2)")
    e(f"ds_write_b128 v58, v[80:83] offset:{UT+512}")
    e("s_waitcnt vmcnt(0)")
    e("v_cmp_gt_u32 vcc, 6, v56"); e("s_and_saveexec_b64 s[30:31], vcc")
    copies(60, 72)
    e("s_mov_b64 exec, s[30:31]")
    e("s_waitcnt lgkmcnt(0)"); e("s_barrier")
    stamp(k, 2)
    RES = 48; FB = 96; GB = 112
    for blk in range(2):
        if blk == 0: e("s_sub_u32 s39, 7, s5")
        else: e("s_mov_b32 s39, s5")
        acc = RES + 4*blk
        for i in range(4): e(f"v_mov_b32 v{acc+i}, 0")
        e("v_mov_b32 v8, v61")
        e("s_lshl_b32 s40, s39, 9"); e("v_add_u32 v9, s40, v62")
        def rd(slot, stepoff):
            off = 960 - 64*stepoff
            e(f"ds_read_b128 {vr(FB+4*slot,4)}, v8 offset:{off}")
            e(f"ds_read_b128 {vr(GB+4*slot,4)}, v9 offset:{off}")
        for q in range(4): rd(q, q)
        e("s_mov_b32 s41, 0")
        lc = k.new("CV"); k.lab(lc)
        for q in range(8):
            e("s_waitcnt lgkmcnt(6)")
            e(f"v_mfma_f32_16x16x32_bf16 {vr(acc,4)}, {vr(FB+4*(q%4),4)}, {vr(GB+4*(q%4),4)}, {vr(acc,4)}")
            rd(q % 4, q + 4)
        e("v_subrev_u32 v8, 512, v8"); e("v_subrev_u32 v9, 512, v9")
        e("s_add_u32 s41, s41, 1"); e("s_cmp_le_u32 s41, s39"); e(f"s_cbranch_scc1 {lc}")
        e("s_waitcnt lgkmcnt(6)")
        e(f"v_mfma_f32_16x16x32_bf16 {vr(acc,4)}, {vr(FB,4)}, {vr(GB,4)}, {vr(acc,4)}")
        e("s_waitcnt lgkmcnt(0)")
    stamp(k, 3)
    e("s_lshl_b32 s42, s54, 16"); e("s_and_b32 s43, s54, 0xffff0000"); e("s_cmp_eq_u32 s4, 0"); e("s_cselect_b32 s42, s42, s43")
    e("s_lshl_b32 s44, s4, 1")
    for blk in range(2):
        if blk == 0: e("s_sub_u32 s39, 7, s5")
        else: e("s_mov_b32 s39, s5")
        e("v_lshlrev_b32 v12, 4, v14"); e("v_lshlrev_b32 v13, 2, v11"); e("v_add_u32 v12, v12, v13")
        e("s_lshl_b32 s40, s39, 8"); e("v_add_u32 v12, s40, v12")
        e("v_lshlrev_b32 v13, 1, v12"); e("v_add_u32 v13, s28, v13")
        e(f"ds_read_b64 v[16:17], v13 offset:{UT+512}")
        e(f"v_lshlrev_b32 v{36+blk}, 2, v12"); e(f"v_add_u32 v{36+blk}, s44, v{36+blk}")
        k.nop(4)
        e("s_waitcnt lgkmcnt(0)")
        for r2 in range(2):
            e(f"v_lshlrev_b32 v20, 16, v{16+r2}"); e(f"v_and_b32 v21, 0xffff0000, v{16+r2}")
            e("v_mul_f32 v20, s42, v20"); e("v_mul_f32 v21, s42, v21")
            e("v_cvt_pk_bf16_f32 v22, v20, v21")
            e(f"v_cvt_pk_bf16_f32 v23, v{RES+4*blk+2*r2}, v{RES+4*blk+2*r2+1}")
            e("v_lshlrev_b32 v24, 16, v22"); e("v_and_b32 v25, 0xffff0000, v22")
            e("v_lshlrev_b32 v26, 16, v23"); e("v_and_b32 v27, 0xffff0000, v23")
            e("v_add_f32 v24, v24, v26"); e("v_add_f32 v25, v25, v27")
            e(f"v_cvt_pk_bf16_f32 v{32+2*blk+r2}, v24, v25")
    e("s_barrier")
    for blk in range(2):
        for r2 in range(2):
            e(f"ds_write_b16 v{36+blk}, v{32+2*blk+r2} offset:{KC + 8*r2}")
            e(f"ds_write_b16_d16_hi v{36+blk}, v{32+2*blk+r2} offset:{KC + 8*r2 + 4}")
    e("s_waitcnt lgkmcnt(0)"); e("s_barrier")
    e("v_lshlrev_b32 v12, 4, v1")
    e(f"ds_read_b128 v[16:19], v12 offset:{KC}")
    e("v_lshlrev_b32 v13, 13, v1"); e("v_add_u32 v13, s25, v13")
    e("s_movk_i32 s44, 4096")
    e("s_waitcnt lgkmcnt(0)")
    for r in range(4):
        so = "0" if r < 2 else "s44"
        e(f"buffer_store_dword v{16+r}, v13, s[48:51], {so} offen offset:{(r%2)*2048}")
    if PROF: e("s_waitcnt vmcnt(0)")
    stamp(k, 4)

def l2():
    k = K("l2_kernel"); e = k.e
    lc = k.new("CONV")
    e("s_cmp_ge_u32 s2, 512"); e(f"s_cbranch_scc1 {k.name}_end")
    order = os.environ.get("L2ORD", "0")
    if order == "0":
        e("s_cmp_ge_u32 s2, 256"); e(f"s_cbranch_scc1 {lc}")
    else:
        e("s_cmp_lt_u32 s2, 256"); e(f"s_cbranch_scc1 {lc}")
        e("s_sub_u32 s2, s2, 256")
    if os.environ.get("L2PRIO", "0") == "1": e("s_setprio 2")
    if GM.PROF: e("s_memrealtime s[88:89]")
    GM.stamp(k, 0)
    import gen_tl
    gen_tl.mark(k, 4)
    attn2_body(k)
    gen_tl.mark(k, 5)
    GM.stamp_out(k, 4)
    e("s_endpgm")
    k.lab(lc)
    if order == "0": e("s_sub_u32 s2, s2, 256")
    if GM.PROF: e("s_memrealtime s[88:89]")
    GM.stamp(k, 0)
    gen_tl.mark(k, 6)
    conv8_body(k)
    gen_tl.mark(k, 7)
    GM.stamp_out(k, 5, 32)
    return k, 128, (512, 512, CONV8_LDS)
KERNELS = {"l2": l2}

def attn2():
    k = K("attn2_kernel"); e = k.e
    e("s_cmp_ge_u32 s2, 256"); e(f"s_cbranch_scc1 {k.name}_end")
    if GM.PROF: e("s_memrealtime s[88:89]")
    GM.stamp(k, 0)
    attn2_body(k)
    GM.stamp_out(k, 4)
    return k, 128, (256, 512, 65536)
KERNELS["attn2"] = attn2

def pref():
    k = K("pref_kernel"); e = k.e
    e("s_cmp_ge_u32 s2, 256"); e(f"s_cbranch_scc1 {k.name}_end")
    if os.environ.get("EMPTY", "0") == "1":
        return k, 64, (256, 256, 0)
    e("s_load_dwordx16 s[16:31], s[0:1], 0")
    e("s_load_dwordx4 s[32:35], s[0:1], 64")
    e("s_lshl_b32 s3, s2, 8"); e("v_add_u32 v1, s3, v0"); e("v_lshlrev_b32 v1, 4, v1")
    e("s_waitcnt lgkmcnt(0)")
    r = 8
    for base, size in ((16, 2*MB), (30, 2*MB), (32, 1536*1024), (34, 512*1024), (18, 131072), (20, 131072), (22, 131072), (24, 131072)):
        k.srd(40, base, size)
        for off in range(0, size, MB):
            e(f"s_mov_b32 s44, {off}")
            e(f"buffer_load_dwordx4 {vr(r,4)}, v1, s[40:43], s44 offen"); r += 4
        e("s_nop 4")
    e("s_waitcnt vmcnt(0)")
    return k, 64, (256, 256, 0)
KERNELS["pref"] = pref
```

```python
from gen import K, vr, f32bits, MB, WS_Q, WS_K, WS_V, WS_O, WS_KM, WS_SIZE, LOG2E

import os
PROF = os.environ.get("PROF", "0") == "1"
def stamp(k, idx):
    if PROF:
        k.e(f"s_memtime s[{72+2*idx}:{73+2*idx}]")
        k.e("s_waitcnt lgkmcnt(0)")
def stamp_out(k, n, base=0):
    if not PROF: return
    e = k.e
    l = k.new("NOPROF")
    e("s_memrealtime s[90:91]"); e("s_waitcnt lgkmcnt(0)")
    e("s_cmp_lg_u32 s2, 5"); e(f"s_cbranch_scc1 {l}")
    e("s_and_b32 s70, s3, 3"); e("s_cmp_lg_u32 s70, 0"); e(f"s_cbranch_scc1 {l}")
    e("s_load_dwordx2 s[92:93], s[0:1], 88"); e("s_waitcnt lgkmcnt(0)")
    e("s_mov_b32 s94, 256"); e("s_mov_b32 s95, 0x00020000")
    e("s_lshl_b32 s70, s3, 4"); e(f"s_add_u32 s70, s70, {base}"); e("v_mov_b32 v1, s70")
    for i in range(n):
        e(f"s_sub_u32 s70, s{72+2*i}, s72"); e("v_mov_b32 v2, s70")
        e(f"buffer_store_dword v2, v1, s[92:95], 0 offen offset:{4*i}")
    e("s_sub_u32 s70, s90, s88"); e("v_mov_b32 v2, s70")
    e(f"buffer_store_dword v2, v1, s[92:95], 0 offen offset:{4*n}")
    k.lab(l)
def attn():
    k = K("attn_kernel"); e = k.e
    e("s_cmp_ge_u32 s2, 256"); e(f"s_cbranch_scc1 {k.name}_end")
    if PROF: e("s_memrealtime s[88:89]")
    stamp(k, 0)
    e("s_load_dwordx2 s[8:9], s[0:1], 96")
    e("v_lshrrev_b32 v1, 6, v0")
    e("v_and_b32 v0, 63, v0")
    e("s_nop 0")
    e("v_readfirstlane_b32 s3, v1")
    e("s_and_b32 s24, s2, 7"); e("s_lshl_b32 s24, s24, 2")
    e("s_lshr_b32 s25, s2, 3"); e("s_and_b32 s25, s25, 3"); e("s_add_u32 s24, s24, s25")
    e("s_lshr_b32 s25, s2, 5")
    e("s_waitcnt lgkmcnt(0)")
    k.srd(20, 8, WS_SIZE)
    e("v_lshlrev_b32 v2, 4, v0")
    e("s_lshl_b32 s26, s25, 3"); e("s_add_u32 s26, s26, s3")
    e("s_lshl_b32 s27, s24, 6"); e("s_add_u32 s27, s27, s26"); e("s_lshl_b32 s27, s27, 10")
    QF = 4
    e(f"buffer_load_dwordx4 {vr(QF,4)}, v2, s[20:23], s27 offen")
    e("v_lshlrev_b32 v8, 2, v0")
    e("s_lshl_b32 s28, s24, 8"); e(f"s_add_u32 s28, s28, {WS_KM}")
    e("buffer_load_dword v11, v8, s[20:23], s28 offen")
    e("s_lshl_b32 s28, s24, 16")
    e("s_lshl_b32 s29, s3, 11")
    e("s_add_u32 s31, s29, s28")
    e("s_mov_b32 s30, s29")
    def dma_chunk():
        for sec, base in ((0, WS_K), (1, WS_V)):
            for j in range(2):
                e(f"s_add_u32 s39, s30, {j*1024 + sec*65536}")
                e("s_mov_b32 m0, s39")
                e(f"s_add_u32 s40, s31, {j*1024 + base}")
                e(f"buffer_load_dwordx4 v2, s[20:23], s40 offen lds")
        e("s_add_u32 s30, s30, 16384"); e("s_add_u32 s31, s31, 16384")
    dma_chunk()
    S = [16, 32]; CM = 48; O = 64; KB = [80, 84]; VB = [88, 96]; P = 104; MX = 112
    e("v_and_b32 v3, 15, v0"); e("v_lshlrev_b32 v3, 4, v3")
    e("v_lshrrev_b32 v8, 5, v0"); e("v_lshlrev_b32 v8, 8, v8"); e("v_add_u32 v3, v3, v8"); e("v_add_u32 v3, 65536, v3")
    e("v_mov_b32 v114, v3")
    e("v_and_b32 v8, 31, v0")
    e("v_cmp_eq_u32 s[32:33], 16, v8"); e("v_cmp_eq_u32 s[34:35], 20, v8")
    e("s_or_b64 s[32:33], s[32:33], s[34:35]")
    e("v_mov_b32 v9, 0x3f803f80")
    e("s_nop 0")
    e("v_cndmask_b32 v9, 0, v9, s[32:33]")
    for b in VB:
        for i in range(8): e(f"v_mov_b32 v{b+i}, v9")
    e("s_mov_b32 s36, 0x0000ffff"); e("s_mov_b32 s37, 0x0000ffff")
    e("s_waitcnt vmcnt(4)")
    e("v_mov_b32 v12, 0")
    for i in range(4): e(f"v_dot2c_f32_bf16 v12, v{QF+i}, v{QF+i}")
    for mod in ("quad_perm:[1,0,3,2]", "quad_perm:[2,3,0,1]", "row_half_mirror", "row_mirror"):
        k.nop(2)
        e(f"v_max_f32_dpp v11, v11, v11 {mod} row_mask:0xf bank_mask:0xf")
    e("v_mov_b32 v13, v11"); e("v_mov_b32 v14, v12")
    k.nop(2)
    e("v_permlane16_swap_b32 v11, v13"); e("v_permlane32_swap_b32 v12, v14")
    k.nop(2)
    e("v_max_f32 v11, v11, v13"); e("v_add_f32 v12, v12, v14")
    e("v_mov_b32 v13, v11")
    k.nop(2)
    e("v_permlane32_swap_b32 v11, v13")
    k.nop(2)
    e("v_max_f32 v11, v11, v13")
    e("v_mul_f32 v12, v12, v11"); e("v_sqrt_f32 v12, v12"); e("s_nop 0")
    e(f"v_mul_f32 v{MX}, {hex(f32bits(-1.01))}, v12")
    for i in range(16): e(f"v_mov_b32 v{CM+i}, v{MX}")
    def vread(buf, off):
        e("s_mov_b64 exec, s[36:37]")
        e(f"ds_read_b128 {vr(VB[buf],4)}, v3 offset:{off}")
        e(f"ds_read_b128 {vr(VB[buf]+4,4)}, v3 offset:{off+512}")
        e("s_mov_b64 exec, -1")
    def p2_start():
        for i in range(16): e(f"v_mov_b32 v{O+i}, 0")
        e("v_mov_b32 v10, v2"); e("v_mov_b32 v3, v114")
        e(f"ds_read_b128 {vr(KB[0],4)}, v10")
        e("s_waitcnt lgkmcnt(0)")
        e(f"v_mfma_f32_32x32x16_bf16 {vr(S[0],16)}, {vr(KB[0],4)}, {vr(QF,4)}, {vr(CM,16)}")
        e(f"ds_read_b128 {vr(KB[1],4)}, v10 offset:1024")
        vread(0, 0)
        k.nop(8)
    e("s_mov_b32 s42, 0x07060302")
    def pack(d, a):
        if os.environ.get("PERM", "0") == "1": e(f"v_perm_b32 v{d}, v{a+1}, v{a}, s42")
        else: e(f"v_cvt_pk_bf16_f32 v{d}, v{a}, v{a+1}")
    lstart = k.new("P2S"); lep = k.new("EPI")
    e("s_mov_b32 s41, 15")
    e("s_waitcnt vmcnt(0)"); e("s_barrier")
    stamp(k, 1)
    e("s_mov_b32 s38, 0")
    ld = k.new("DMA"); k.lab(ld)
    dma_chunk()
    e("s_add_u32 s38, s38, 1"); e("s_cmp_lt_u32 s38, 3"); e(f"s_cbranch_scc1 {ld}")
    k.lab(lstart)
    p2_start()
    e("s_mov_b32 s38, 0")
    al = os.environ.get("ALIGN", "")
    if al != "":
        k.L.append(".p2align 6")
        for i in range(int(al)): e("s_nop 0")
    l2 = k.new("P2"); k.lab(l2)
    lnb = k.new("NB"); lbb = k.new("BB"); lb1 = k.new("B1"); lb2 = k.new("B2"); lbar = k.new("BAR")
    e("s_and_b32 s39, s38, s41"); e("s_cmp_eq_u32 s39, 14"); e(f"s_cbranch_scc1 {lbb}")
    k.lab(lnb)
    for p in range(2):
        e("s_waitcnt lgkmcnt(2)")
        e(f"v_mfma_f32_32x32x16_bf16 {vr(S[1-p],16)}, {vr(KB[1-p],4)}, {vr(QF,4)}, {vr(CM,16)}")
        e(f"ds_read_b128 {vr(KB[p],4)}, v10 offset:{2048 + p*1024}")
        vread(1-p, 1024 + p*1024)
        for i in range(12): e(f"v_exp_f32 v{S[p]+i}, v{S[p]+i}")
        for i in range(4): pack(P+i, S[p]+2*i)
        for i in range(12, 16): e(f"v_exp_f32 v{S[p]+i}, v{S[p]+i}")
        e("s_waitcnt lgkmcnt(3)")
        e(f"v_mfma_f32_32x32x16_bf16 {vr(O,16)}, {vr(VB[p],4)}, {vr(P,4)}, {vr(O,16)}")
        for i in range(4, 8): pack(P+i, S[p]+2*i)
        k.nop(2)
        e(f"v_mfma_f32_32x32x16_bf16 {vr(O,16)}, {vr(VB[p]+4,4)}, {vr(P+4,4)}, {vr(O,16)}")
    e("v_add_u32 v10, 2048, v10"); e("v_add_u32 v3, 2048, v3")
    e("s_add_u32 s38, s38, 2"); e("s_cmp_lt_u32 s38, 64"); e(f"s_cbranch_scc1 {l2}")
    stamp(k, 2)
    k.nop(16)
    e(f"v_cmp_gt_f32 vcc, {hex(f32bits(2.0**-60))}, v{O+8}")
    e("s_waitcnt lgkmcnt(0)")
    e("s_cmp_eq_u32 s41, 0"); e(f"s_cbranch_scc1 {lep}")
    e(f"s_cbranch_vccz {lep}")
    lfb = k.new("FB"); e(f"s_branch {lfb}")
    k.lab(lbb)
    e("s_cmp_eq_u32 s38, 62"); e(f"s_cbranch_scc1 {lnb}")
    e("s_cmp_eq_u32 s38, 14"); e(f"s_cbranch_scc0 {lb1}"); e("s_waitcnt vmcnt(8)"); e(f"s_branch {lbar}")
    k.lab(lb1); e("s_cmp_eq_u32 s38, 30"); e(f"s_cbranch_scc0 {lb2}"); e("s_waitcnt vmcnt(4)"); e(f"s_branch {lbar}")
    k.lab(lb2); e("s_waitcnt vmcnt(0)")
    k.lab(lbar); e("s_barrier"); e(f"s_branch {lnb}")
    k.lab(lfb)
    e("s_mov_b32 s41, 0")
    e(f"v_mov_b32 v{MX}, 0xff800000")
    e("v_mov_b32 v10, v2")
    e(f"ds_read_b128 {vr(KB[0],4)}, v10")
    e(f"ds_read_b128 {vr(KB[1],4)}, v10 offset:1024")
    e("s_waitcnt lgkmcnt(1)")
    e(f"v_mfma_f32_32x32x16_bf16 {vr(S[0],16)}, {vr(KB[0],4)}, {vr(QF,4)}, 0")
    e(f"ds_read_b128 {vr(KB[0],4)}, v10 offset:2048")
    e("s_mov_b32 s38, 0")
    l1 = k.new("P1"); k.lab(l1)
    e("s_waitcnt lgkmcnt(1)")
    e(f"v_mfma_f32_32x32x16_bf16 {vr(S[1],16)}, {vr(KB[1],4)}, {vr(QF,4)}, 0")
    e(f"ds_read_b128 {vr(KB[1],4)}, v10 offset:3072")
    k.nop(10)
    for i in range(8): e(f"v_max3_f32 v{MX}, v{S[0]+2*i}, v{S[0]+2*i+1}, v{MX}")
    e("s_waitcnt lgkmcnt(1)")
    e(f"v_mfma_f32_32x32x16_bf16 {vr(S[0],16)}, {vr(KB[0],4)}, {vr(QF,4)}, 0")
    e(f"ds_read_b128 {vr(KB[0],4)}, v10 offset:4096")
    e("v_add_u32 v10, 2048, v10")
    k.nop(9)
    for i in range(8): e(f"v_max3_f32 v{MX}, v{S[1]+2*i}, v{S[1]+2*i+1}, v{MX}")
    e("s_add_u32 s38, s38, 2"); e("s_cmp_lt_u32 s38, 64"); e(f"s_cbranch_scc1 {l1}")
    e(f"v_mov_b32 v{MX+1}, v{MX}")
    k.nop(2)
    e(f"v_permlane32_swap_b32 v{MX}, v{MX+1}")
    k.nop(2)
    e(f"v_max_f32 v{MX}, v{MX}, v{MX+1}")
    e(f"v_sub_f32 v{MX}, 0, v{MX}")
    for i in range(16): e(f"v_mov_b32 v{CM+i}, v{MX}")
    e("s_waitcnt lgkmcnt(0)")
    k.nop(4)
    e(f"s_branch {lstart}")
    k.lab(lep)
    e(f"v_rcp_f32 v8, v{O+8}")
    k.nop(1)
    for i in range(8): e(f"v_mul_f32 v{O+i}, v{O+i}, v8")
    for i in range(4): e(f"v_cvt_pk_bf16_f32 v{P+i}, v{O+2*i}, v{O+2*i+1}")
    e(f"s_add_u32 s27, s27, {WS_O}")
    e(f"buffer_store_dwordx4 {vr(P,4)}, v2, s[20:23], s27 offen")
    e("s_waitcnt lgkmcnt(0)")
    stamp(k, 3)
    stamp_out(k, 4)
    return k, 128, (256, 512, 131072)

KERNELS = {"attn": attn}

def gemm2(k=None):
    if k is None:
        k = K("gemm2_kernel")
        k.e("s_cmp_ge_u32 s2, 256"); k.e(f"s_cbranch_scc1 {k.name}_end")
    e = k.e
    if PROF: e("s_memrealtime s[88:89]")
    stamp(k, 0)
    import gen_tl
    gen_tl.mark(k, 8)
    e("s_load_dwordx2 s[6:7], s[0:1], 72")
    e("s_load_dwordx2 s[8:9], s[0:1], 96")
    e("s_load_dwordx2 s[10:11], s[0:1], 80")
    e("v_lshrrev_b32 v1, 6, v0")
    e("v_and_b32 v0, 63, v0")
    e("s_nop 0")
    e("v_readfirstlane_b32 s3, v1")
    e("s_and_b32 s26, s2, 7"); e("s_lshr_b32 s27, s2, 3")
    e("s_lshr_b32 s24, s26, 1"); e("s_lshl_b32 s24, s24, 3"); e("s_and_b32 s28, s27, 7"); e("s_add_u32 s24, s24, s28")
    e("s_and_b32 s25, s26, 1"); e("s_lshl_b32 s25, s25, 2"); e("s_lshr_b32 s28, s27, 3"); e("s_add_u32 s25, s25, s28")
    e("s_and_b32 s26, s3, 1")
    e("s_lshr_b32 s27, s3, 1")
    e("s_waitcnt lgkmcnt(0)")
    k.srd(12, 10, 2048*1024*2); k.srd(16, 6, 512*512*2); k.srd(20, 8, WS_SIZE)
    e("v_lshrrev_b32 v3, 3, v0")
    e("v_and_b32 v4, 2, v3"); e("v_lshlrev_b32 v4, 1, v4")
    e("v_and_b32 v5, 7, v0"); e("v_xor_b32 v5, v5, v4"); e("v_lshlrev_b32 v5, 4, v5")
    e("v_and_b32 v6, 3, v3")
    e("v_and_b32 v7, 4, v3"); e("v_lshlrev_b32 v7, 1, v7"); e("v_add_u32 v6, v6, v7")
    e("v_lshlrev_b32 v6, 10, v6"); e("v_add_u32 v4, v6, v5")
    e("s_lshl_b32 s28, s25, 7")
    OF = 128
    e("v_lshlrev_b32 v2, 4, v0")
    e("s_lshl_b32 s29, s24, 1"); e("s_add_u32 s29, s29, s26"); e("s_lshl_b32 s29, s29, 10"); e(f"s_add_u32 s29, s29, {WS_O}")
    e("s_lshl_b32 s30, s3, 4"); e("s_add_u32 s34, s30, 16")
    ld = k.new("DMA"); k.lab(ld)
    e("s_lshl_b32 s31, s30, 10"); e("s_mov_b32 m0, s31")
    e("s_lshr_b32 s32, s30, 1"); e("s_lshl_b32 s32, s32, 14")
    e("s_and_b32 s33, s30, 1"); e("s_lshl_b32 s33, s33, 12"); e("s_add_u32 s32, s32, s33"); e("s_add_u32 s32, s32, s28")
    e("buffer_load_dwordx4 v4, s[16:19], s32 offen lds")
    e("s_add_u32 s30, s30, 1"); e("s_cmp_lt_u32 s30, s34"); e(f"s_cbranch_scc1 {ld}")
    for s_ in range(8):
        e(f"buffer_load_dwordx4 {vr(OF+4*s_,4)}, v2, s[20:23], s29 offen")
        e("s_add_u32 s29, s29, 65536")
    e("v_lshrrev_b32 v7, 5, v0"); e("v_lshlrev_b32 v7, 3, v7")
    e("v_and_b32 v8, 15, v0"); e("v_lshrrev_b32 v8, 2, v8"); e("v_add_u32 v7, v7, v8"); e("v_lshlrev_b32 v7, 7, v7")
    e("v_lshrrev_b32 v8, 1, v8"); e("v_xor_b32 v8, s27, v8"); e("v_lshlrev_b32 v8, 6, v8"); e("v_add_u32 v7, v7, v8")
    e("v_and_b32 v8, 1, v0"); e("v_lshlrev_b32 v8, 5, v8"); e("v_add_u32 v7, v7, v8")
    e("v_lshrrev_b32 v8, 4, v0"); e("v_and_b32 v8, 1, v8"); e("v_lshlrev_b32 v8, 4, v8"); e("v_add_u32 v7, v7, v8")
    e("v_lshrrev_b32 v8, 1, v0"); e("v_and_b32 v8, 1, v8"); e("v_lshlrev_b32 v8, 3, v8"); e("v_add_u32 v7, v7, v8")
    ACC = 16; WF = 32
    for i in range(16): e(f"v_mov_b32 v{ACC+i}, 0")
    stamp(k, 1)
    e("s_waitcnt vmcnt(8)"); e("s_barrier")
    stamp(k, 2)
    def wread(s, pb):
        for hs in range(2):
            e(f"ds_read_b64_tr_b16 {vr(WF+4*pb+2*hs,2)}, v7 offset:{s*2048+hs*512}")
    NB = 4
    for s_ in range(NB-1): wread(s_, s_ % NB)
    e("s_mov_b32 s30, 0")
    lm = k.new("MM"); k.lab(lm)
    for s_ in range(8):
        wread(s_+NB-1, (s_+NB-1) % NB); e(f"s_waitcnt lgkmcnt({2*(NB-1)})")
        e("s_waitcnt vmcnt(7)")
        e(f"v_mfma_f32_32x32x16_bf16 {vr(ACC,16)}, {vr(WF+4*(s_%NB),4)}, {vr(OF+4*s_,4)}, {vr(ACC,16)}")
        e(f"buffer_load_dwordx4 {vr(OF+4*s_,4)}, v2, s[20:23], s29 offen")
        e("s_add_u32 s29, s29, 65536")
    e("v_add_u32 v7, 16384, v7")
    e("s_add_u32 s30, s30, 1"); e("s_cmp_lt_u32 s30, 4"); e(f"s_cbranch_scc1 {lm}")
    e("s_waitcnt vmcnt(0) lgkmcnt(0)")
    k.nop(16)
    for i in range(8): e(f"v_cvt_pk_bf16_f32 v{48+i}, v{ACC+2*i}, v{ACC+2*i+1}")
    e("s_lshl_b32 s30, s24, 6"); e("s_lshl_b32 s31, s26, 5"); e("s_add_u32 s30, s30, s31")
    e("v_and_b32 v3, 31, v0"); e("v_add_u32 v3, s30, v3"); e("v_lshlrev_b32 v3, 11, v3")
    e("v_lshrrev_b32 v5, 5, v0"); e("v_lshlrev_b32 v5, 5, v5"); e("v_add_u32 v3, v3, v5")
    e("s_lshl_b32 s31, s27, 6"); e("s_add_u32 s31, s31, s28"); e("s_add_u32 s31, s31, 1024")
    e("buffer_store_dwordx4 v[48:51], v3, s[12:15], s31 offen")
    e("buffer_store_dwordx4 v[52:55], v3, s[12:15], s31 offen offset:16")
    stamp(k, 3)
    if PROF: e("s_waitcnt vmcnt(0)")
    stamp(k, 4)
    stamp_out(k, 5, 64)
    gen_tl.mark(k, 9)
    gen_tl.dump(k)
    return k, 160, (256, 256, 65536)

KERNELS["gemm2"] = gemm2

def ssm():
    k = K("ssm_kernel"); e = k.e
    UT = 1024; UTP = 4640; KT = 10304; KLIN = 22592; KC = 26816; KCP = 4288; LDS = 61120
    P = 2063
    e("s_cmp_ge_u32 s2, 256"); e(f"s_cbranch_scc1 {k.name}_end")
    if PROF: e("s_memrealtime s[88:89]")
    stamp(k, 0)
    e("s_load_dwordx4 s[56:59], s[0:1], 0")
    e("s_load_dwordx4 s[60:63], s[0:1], 16")
    e("s_load_dwordx4 s[64:67], s[0:1], 32")
    e("s_load_dwordx2 s[68:69], s[0:1], 48")
    e("s_load_dwordx2 s[70:71], s[0:1], 80")
    e("v_mov_b32 v1, v0")
    e("v_lshrrev_b32 v2, 6, v0")
    e("v_and_b32 v0, 63, v0")
    e("s_nop 0")
    e("v_readfirstlane_b32 s3, v2")
    e("s_and_b32 s24, s2, 7"); e("s_lshl_b32 s24, s24, 5"); e("s_lshr_b32 s25, s2, 3"); e("s_add_u32 s24, s24, s25")
    e("s_lshl_b32 s24, s24, 1")
    e("s_lshl_b32 s25, s24, 1")
    e("s_waitcnt lgkmcnt(0)")
    k.srd(12, 56, 2*MB); k.srd(16, 58, 131072); k.srd(20, 60, 131072); k.srd(40, 62, 131072); k.srd(44, 64, 131072); k.srd(48, 70, 4*MB)
    e("s_add_u32 s66, s66, s25"); e("s_addc_u32 s67, s67, 0")
    e("s_add_u32 s68, s68, s25"); e("s_addc_u32 s69, s69, 0")
    e("s_load_dword s52, s[66:67], 0"); e("s_load_dword s54, s[68:69], 0")
    e("s_lshr_b32 s26, s3, 1")
    e("s_and_b32 s27, s3, 1")
    e("s_add_u32 s28, s24, s26"); e("s_lshl_b32 s28, s28, 8"); e("s_lshl_b32 s29, s27, 7"); e("s_add_u32 s28, s28, s29")
    e("v_lshrrev_b32 v5, 4, v0"); e("v_lshlrev_b32 v5, 5, v5"); e("v_add_u32 v5, s28, v5")
    for base, srd in ((64, 16), (72, 20), (80, 40), (88, 44)):
        e(f"buffer_load_dwordx4 {vr(base,4)}, v5, s[{srd}:{srd+3}], 0 offen")
        e(f"buffer_load_dwordx4 {vr(base+4,4)}, v5, s[{srd}:{srd+3}], 0 offen offset:16")
    e("v_lshlrev_b32 v3, 13, v1"); e("v_add_u32 v3, s25, v3"); e("v_add_u32 v4, 4096, v3")
    for j in range(8):
        e(f"buffer_load_dword v{200+j}, v{3 if j<4 else 4}, s[12:15], 0 offen offset:{(j%4)*1024}")
    e("v_and_b32 v10, 15, v0")
    e("v_lshlrev_b32 v6, 3, v10"); e("v_cvt_f32_u32 v6, v6")
    def zhi(dst, z):
        e(f"v_lshrrev_b32 v12, 3, v{z}"); e("v_lshlrev_b32 v12, 7, v12"); e(f"v_and_b32 v13, 7, v{z}"); e("v_add_u32 v12, v12, v13")
        e(f"v_cvt_f32_u32 v{dst}, v12")
    zhi(7, 10)
    e("v_lshlrev_b32 v11, 1, v10"); e("v_add_u32 v11, 16, v11"); e("v_lshlrev_b32 v14, 2, v10")
    e("v_cmp_gt_u32 vcc, 8, v10"); e("s_nop 1"); e("v_cndmask_b32 v11, v14, v11, vcc")
    zhi(8, 11)
    e("v_lshlrev_b32 v11, 3, v10"); e("v_add_u32 v11, 64, v11")
    zhi(9, 11)
    for i in range(4): e(f"v_mov_b32 v{16+i}, 0")
    e("v_lshlrev_b32 v12, 4, v1")
    e("v_cmp_gt_u32 vcc, 32, v1"); e("s_and_saveexec_b64 s[30:31], vcc")
    e(f"ds_write_b128 v12, v[16:19] offset:{UT}"); e(f"ds_write_b128 v12, v[16:19] offset:{UT+UTP}")
    e("s_mov_b64 exec, s[30:31]")
    e("v_cmp_gt_u32 vcc, 2, v1"); e("s_and_saveexec_b64 s[30:31], vcc")
    e(f"ds_write_b128 v12, v[16:19] offset:{KLIN}")
    e(f"ds_write_b128 v12, v[16:19] offset:{UT+4608}"); e(f"ds_write_b128 v12, v[16:19] offset:{UT+UTP+4608}")
    e("s_mov_b64 exec, s[30:31]")
    e("v_cmp_gt_u32 vcc, 6, v1"); e("s_and_saveexec_b64 s[30:31], vcc")
    e(f"ds_write_b128 v12, v[16:19] offset:{KLIN+258*16}")
    e("s_mov_b64 exec, s[30:31]")
    e("s_waitcnt lgkmcnt(0)")
    e("s_lshl_b32 s53, s52, 16"); e("s_and_b32 s55, s52, 0xffff0000"); e("s_cmp_eq_u32 s26, 0"); e("s_cselect_b32 s53, s53, s55")
    e("v_mov_b32 v15, s53"); e(f"v_mul_f32 v15, {hex(f32bits(LOG2E))}, v15"); e("v_exp_f32 v15, v15"); e("s_nop 0")
    e("v_cvt_pk_bf16_f32 v15, v15, v15"); e("v_lshlrev_b32 v15, 16, v15")
    e("s_waitcnt vmcnt(8)")
    stamp(k, 1)
    AR2, AI2, C2R, C2I = 96, 112, 128, 144
    e(f"s_mov_b32 s34, {hex(f32bits(LOG2E))}"); e(f"s_mov_b32 s35, {hex(f32bits(-LOG2E))}"); e(f"s_mov_b32 s36, {hex(f32bits(1/(2*3.141592653589793)))}")
    e("v_add_f32 v16, v15, v15")
    for t in range(16):
        def unp(dst, src):
            if t & 1: e(f"v_and_b32 v{dst}, 0xffff0000, v{src + t//2}")
            else: e(f"v_lshlrev_b32 v{dst}, 16, v{src + t//2}")
        unp(AR2+t, 64); unp(AI2+t, 72); unp(C2R+t, 80); unp(C2I+t, 88)
        e(f"v_mul_f32 v{AR2+t}, s34, v{AR2+t}")
        e(f"v_mul_f32 v{AI2+t}, v{AI2+t}, v15")
        e(f"v_exp_f32 v{AR2+t}, v{AR2+t}")
        e(f"v_mul_f32 v{C2R+t}, v{C2R+t}, v16")
        e(f"v_mul_f32 v{C2I+t}, v{C2I+t}, v16")
        e(f"v_cvt_pk_bf16_f32 v{AR2+t}, v{AR2+t}, v{AR2+t}")
        e(f"v_mul_f32 v{AI2+t}, s36, v{AI2+t}")
        e(f"v_lshlrev_b32 v{AR2+t}, 16, v{AR2+t}")
        e(f"v_mul_f32 v{AR2+t}, v{AR2+t}, v15")
        e(f"v_mul_f32 v{AR2+t}, s35, v{AR2+t}")
    stamp(k, 2)
    ACC = 160
    for i in range(12): e(f"v_mov_b32 v{ACC+i}, 0")
    RB = [48, 56]
    def mf(p, j):
        mb = j % 3; part = j // 3
        e(f"v_mfma_f32_16x16x4_f32 {vr(ACC+4*mb,4)}, v{RB[p]+3*part+mb}, v{RB[p]+6+part}, {vr(ACC+4*mb,4)}")
    for t in range(16):
        p = t & 1; prev = (t > 0)
        for c in range(4):
            e(f"v_mul_f32 v{20+c}, v{AR2+t}, v{6+c}")
            e(f"v_mul_f32 v{24+c}, v{AI2+t}, v{6+c}")
        if prev: mf(1-p, 0)
        for c in range(4):
            e(f"v_exp_f32 v{20+c}, v{20+c}")
            e(f"v_fract_f32 v{24+c}, v{24+c}")
        if prev: mf(1-p, 1)
        for c in range(2):
            e(f"v_sin_f32 v{28+c}, v{24+c}")
            e(f"v_cos_f32 v{32+c}, v{24+c}")
        if prev: mf(1-p, 2)
        for c in range(2, 4):
            e(f"v_sin_f32 v{28+c}, v{24+c}")
            e(f"v_cos_f32 v{32+c}, v{24+c}")
        if prev: mf(1-p, 3)
        else: e("s_nop 0")
        e(f"v_mul_f32 v36, v20, v32"); e(f"v_mul_f32 v40, v20, v28")
        for c in range(1, 4):
            e(f"v_mul_f32 v{RB[p]+c-1}, v{20+c}, v{32+c}")
        if prev: mf(1-p, 4)
        for c in range(1, 4):
            e(f"v_mul_f32 v{RB[p]+3+c-1}, v{20+c}, v{28+c}")
        e(f"v_mul_f32 v44, v{C2I+t}, v40")
        e(f"v_mul_f32 v45, v{C2I+t}, v36")
        if prev: mf(1-p, 5)
        e(f"v_fma_f32 v{RB[p]+6}, v{C2R+t}, v36, -v44")
        e(f"v_fma_f32 v{RB[p]+7}, -v{C2R+t}, v40, -v45")
    e("s_nop 1")
    for j in range(6): mf(1, j)
    stamp(k, 4)
    e("s_mov_b32 s32, 0x05040100"); e("s_mov_b32 s33, 0x07060302")
    e("v_lshlrev_b32 v12, 4, v1")
    e("s_waitcnt vmcnt(0)")
    for q in range(4):
        e(f"v_perm_b32 v{208+q}, v{201+2*q}, v{200+2*q}, s32")
        e(f"v_perm_b32 v{212+q}, v{201+2*q}, v{200+2*q}, s33")
    e(f"ds_write_b128 v12, v[208:211] offset:{UT+512}"); e(f"ds_write_b128 v12, v[212:215] offset:{UT+UTP+512}")
    k.nop(16)
    e("v_lshrrev_b32 v12, 4, v0"); e("v_lshlrev_b32 v12, 8, v12"); e("v_lshlrev_b32 v13, 2, v10"); e("v_add_u32 v12, v12, v13")
    e("s_mul_i32 s37, s3, 3072"); e(f"s_add_u32 s37, s37, {KT}"); e("v_add_u32 v12, s37, v12")
    for mb in range(3):
        for r in range(4):
            e(f"ds_write_b32 v12, v{ACC+4*mb+r} offset:{mb*1024+r*64}")
    stamp(k, 5)
    IDX = 176
    e("v_lshlrev_b32 v12, 3, v1"); e("v_sub_u32 v12, 2047, v12")
    for m in range(8):
        e(f"v_subrev_u32 v13, {m}, v12")
        e("v_cvt_f32_u32 v13, v13")
        e("v_cvt_pk_bf16_f32 v13, v13, v13"); e("v_lshlrev_b32 v13, 16, v13"); e("v_cvt_u32_f32 v13, v13")
        e("v_lshrrev_b32 v14, 7, v13"); e("v_lshlrev_b32 v14, 3, v14"); e("v_and_b32 v16, 7, v13"); e("v_or_b32 v14, v14, v16")
        e("v_or_b32 v16, 8, v14"); e("v_ffbh_u32 v16, v16"); e("v_sub_u32 v16, 28, v16")
        e("v_lshrrev_b32 v14, v16, v14"); e("v_lshlrev_b32 v16, 3, v16"); e("v_add_u32 v14, v14, v16")
        e("v_lshrrev_b32 v16, 3, v13"); e("v_and_b32 v16, 15, v16")
        e("v_lshlrev_b32 v14, 4, v14"); e("v_add_u32 v14, v14, v16"); e(f"v_lshlrev_b32 v{IDX+m}, 2, v14")
    e("s_waitcnt lgkmcnt(0)"); e("s_barrier")
    stamp(k, 3)
    e("v_and_b32 v10, 15, v0"); e("v_lshrrev_b32 v11, 4, v0")
    e("v_lshlrev_b32 v12, 3, v11"); e("v_sub_u32 v12, v12, v10"); e(f"v_add_u32 v12, {P}, v12")
    e("v_and_b32 v13, 7, v12"); e("v_sub_u32 v12, v12, v13")
    e(f"s_movk_i32 s38, {KCP}"); e("v_mul_lo_u32 v13, v13, s38"); e("v_lshlrev_b32 v12, 1, v12"); e("v_add_u32 v12, v12, v13")
    e(f"v_add_u32 v184, {KC - 960}, v12")
    e("v_lshlrev_b32 v12, 5, v10"); e("v_lshlrev_b32 v13, 4, v11"); e("v_add_u32 v12, v12, v13")
    e(f"v_add_u32 v185, {UT + 512 - 960}, v12")
    e("v_lshlrev_b32 v186, 4, v1")
    RES = 188
    for ch in range(2):
        for m in range(8):
            e(f"ds_read_b32 v{16+m}, v{IDX+m} offset:{KT + (2*ch)*3072}")
            e(f"ds_read_b32 v{24+m}, v{IDX+m} offset:{KT + (2*ch+1)*3072}")
        e("s_waitcnt lgkmcnt(0)")
        for m in range(8): e(f"v_add_f32 v{16+m}, v{16+m}, v{24+m}")
        for q in range(4): e(f"v_cvt_pk_bf16_f32 v{32+q}, v{16+2*q}, v{17+2*q}")
        e(f"ds_write_b128 v186, v[32:35] offset:{KLIN+32}")
        e("s_waitcnt lgkmcnt(0)"); e("s_barrier")
        def copies(addr):
            e(f"ds_read_b128 v[16:19], v{addr} offset:{KLIN}"); e(f"ds_read_b128 v[20:23], v{addr} offset:{KLIN+16}")
            e("s_waitcnt lgkmcnt(0)")
            for q in range(1, 7): e(f"v_mov_b32 v{25+q}, v{16+q}")
            for q in range(7):
                e(f"v_alignbit_b32 v{32+q}, v{17+q}, v{16+q}, 16")
            for q in range(1, 7): e(f"v_mov_b32 v{41+q}, v{32+q}")
            for s in range(8):
                h = s // 2
                if s % 2 == 0: src = (16+h) if h % 2 == 0 else (25+h)
                else: src = (32+h) if h % 2 == 0 else (41+h)
                e(f"ds_write_b128 v{addr}, {vr(src,4)} offset:{KC + s*KCP}")
        copies(186)
        e("v_cmp_gt_u32 vcc, 6, v1"); e("s_and_saveexec_b64 s[30:31], vcc")
        e("v_add_u32 v187, 4096, v186")
        copies(187)
        e("s_mov_b64 exec, s[30:31]")
        e("s_waitcnt lgkmcnt(0)"); e("s_barrier")
        if ch == 1: stamp(k, 6)
        for blk in range(2):
            if blk == 0: e("s_sub_u32 s39, 7, s3")
            else: e("s_mov_b32 s39, s3")
            acc = RES + 8*ch + 4*blk
            for i in range(4): e(f"v_mov_b32 v{acc+i}, 0")
            e("v_mov_b32 v48, v184")
            e("s_lshl_b32 s40, s39, 9"); e(f"s_add_u32 s40, s40, {ch*UTP}"); e("v_add_u32 v49, s40, v185")
            FB = 64; GB = 80
            def rd(slot, stepoff):
                off = 960 - 64*stepoff
                e(f"ds_read_b128 {vr(FB+4*slot,4)}, v48 offset:{off}")
                e(f"ds_read_b128 {vr(GB+4*slot,4)}, v49 offset:{off}")
            for q in range(4): rd(q, q)
            e("s_mov_b32 s41, 0")
            lc = k.new("CV")
            k.lab(lc)
            for q in range(8):
                e("s_waitcnt lgkmcnt(6)")
                e(f"v_mfma_f32_16x16x32_bf16 {vr(acc,4)}, {vr(FB+4*(q%4),4)}, {vr(GB+4*(q%4),4)}, {vr(acc,4)}")
                rd(q % 4, q + 4)
            e("v_subrev_u32 v48, 512, v48"); e("v_subrev_u32 v49, 512, v49")
            e("s_add_u32 s41, s41, 1"); e("s_cmp_le_u32 s41, s39"); e(f"s_cbranch_scc1 {lc}")
            e("s_waitcnt lgkmcnt(6)")
            e(f"v_mfma_f32_16x16x32_bf16 {vr(acc,4)}, {vr(FB,4)}, {vr(GB,4)}, {vr(acc,4)}")
            e("s_waitcnt lgkmcnt(0)")
        if ch == 0: e("s_barrier")
    stamp(k, 7)
    k.nop(16)
    e("s_lshl_b32 s42, s54, 16"); e("s_and_b32 s43, s54, 0xffff0000")
    e("s_movk_i32 s44, 4096")
    for blk in range(2):
        if blk == 0: e("s_sub_u32 s39, 7, s3")
        else: e("s_mov_b32 s39, s3")
        e("v_lshlrev_b32 v12, 4, v10"); e("v_lshlrev_b32 v13, 2, v11"); e("v_add_u32 v12, v12, v13")
        e("s_lshl_b32 s40, s39, 8"); e("v_add_u32 v12, s40, v12")
        e("v_lshlrev_b32 v13, 1, v12")
        e(f"ds_read_b64 v[16:17], v13 offset:{UT+512}"); e(f"ds_read_b64 v[18:19], v13 offset:{UT+UTP+512}")
        e("v_lshlrev_b32 v14, 11, v12"); e("v_add_u32 v14, s25, v14")
        e("s_waitcnt lgkmcnt(0)")
        for r in range(4):
            for ch in range(2):
                src = 16 + 2*ch + r//2
                if r & 1: e(f"v_and_b32 v{20+ch}, 0xffff0000, v{src}")
                else: e(f"v_lshlrev_b32 v{20+ch}, 16, v{src}")
                e(f"v_mul_f32 v{20+ch}, s{42+ch}, v{20+ch}")
            e(f"v_cvt_pk_bf16_f32 v22, v20, v21")
            e(f"v_cvt_pk_bf16_f32 v23, v{RES+4*blk+r}, v{RES+8+4*blk+r}")
            e("v_lshlrev_b32 v24, 16, v22"); e("v_and_b32 v25, 0xffff0000, v22")
            e("v_lshlrev_b32 v26, 16, v23"); e("v_and_b32 v27, 0xffff0000, v23")
            e("v_add_f32 v24, v24, v26"); e("v_add_f32 v25, v25, v27")
            e(f"v_cvt_pk_bf16_f32 v{28+r}, v24, v25")
            so = "0" if r < 2 else "s44"
            e(f"buffer_store_dword v{28+r}, v14, s[48:51], {so} offen offset:{(r%2)*2048}")
    if PROF: e("s_waitcnt vmcnt(0)")
    stamp_out(k, 8)
    return k, 216, (256, 256, LDS)

KERNELS["ssm"] = ssm
```

```python
from gen import K, vr, f32bits, MB, LOG2E, WS_UT, WS_KL, WS_SIZE
import gen_more as GM

PREP_LDS = 12288 + 12288 + 9216
def prep_body(k):
    e = k.e; stamp = GM.stamp; PROF = GM.PROF
    KT = 0; TT = 12288
    e("s_load_dwordx4 s[56:59], s[0:1], 0")
    e("s_load_dwordx4 s[60:63], s[0:1], 16")
    e("s_load_dwordx4 s[64:67], s[0:1], 32")
    e("s_load_dwordx2 s[70:71], s[0:1], 96")
    e("v_mov_b32 v1, v0")
    e("v_lshrrev_b32 v2, 6, v0")
    e("v_and_b32 v0, 63, v0")
    e("s_nop 0")
    e("v_readfirstlane_b32 s3, v2")
    e("s_and_b32 s24, s2, 7"); e("s_lshl_b32 s24, s24, 5"); e("s_lshr_b32 s25, s2, 3"); e("s_add_u32 s24, s24, s25")
    e("s_lshl_b32 s24, s24, 1")
    e("s_lshl_b32 s25, s24, 1")
    e("s_waitcnt lgkmcnt(0)")
    k.srd(12, 56, 2*MB); k.srd(16, 58, 131072); k.srd(20, 60, 131072); k.srd(40, 62, 131072); k.srd(44, 64, 131072); k.srd(48, 70, WS_SIZE)
    e("s_add_u32 s66, s66, s25"); e("s_addc_u32 s67, s67, 0")
    e("s_load_dword s52, s[66:67], 0")
    e("s_lshr_b32 s26, s3, 1"); e("s_and_b32 s27, s3, 1")
    e("s_add_u32 s28, s24, s26"); e("s_lshl_b32 s28, s28, 8"); e("s_lshl_b32 s29, s27, 7"); e("s_add_u32 s28, s28, s29")
    e("v_lshrrev_b32 v5, 4, v0"); e("v_lshlrev_b32 v5, 5, v5"); e("v_add_u32 v5, s28, v5")
    for base, srd in ((64, 16), (72, 20), (80, 40), (88, 44)):
        e(f"buffer_load_dwordx4 {vr(base,4)}, v5, s[{srd}:{srd+3}], 0 offen")
        e(f"buffer_load_dwordx4 {vr(base+4,4)}, v5, s[{srd}:{srd+3}], 0 offen offset:16")
    e("s_lshr_b32 s30, s2, 3"); e("s_and_b32 s31, s2, 7")
    e("v_lshrrev_b32 v3, 2, v1"); e("s_lshl_b32 s32, s30, 6"); e("v_add_u32 v4, s32, v3"); e("v_lshlrev_b32 v4, 10, v4")
    e("v_and_b32 v16, 3, v1"); e("v_lshlrev_b32 v16, 5, v16"); e("v_add_u32 v4, v4, v16")
    e("s_lshl_b32 s32, s31, 7")
    e("buffer_load_dwordx4 v[200:203], v4, s[12:15], s32 offen")
    e("buffer_load_dwordx4 v[204:207], v4, s[12:15], s32 offen offset:16")
    e("v_mul_u32_u24 v3, 192, v3"); e("v_add_u32 v3, v3, v16")
    e("v_and_b32 v14, 15, v0")
    e("v_lshlrev_b32 v6, 3, v14"); e("v_cvt_f32_u32 v6, v6"); e("v_mov_b32 v7, v6")
    def zhi(dst, z):
        e(f"v_lshrrev_b32 v16, 3, v{z}"); e("v_lshlrev_b32 v16, 7, v16"); e(f"v_and_b32 v17, 7, v{z}"); e("v_add_u32 v16, v16, v17")
        e(f"v_cvt_f32_u32 v{dst}, v16"); e(f"v_mov_b32 v{dst+1}, v{dst}")
    zhi(8, 14)
    e("v_lshlrev_b32 v15, 1, v14"); e("v_add_u32 v15, 16, v15"); e("v_lshlrev_b32 v18, 2, v14")
    e("v_cmp_gt_u32 vcc, 8, v14"); e("s_nop 1"); e("v_cndmask_b32 v15, v18, v15, vcc")
    zhi(10, 15)
    e("v_lshlrev_b32 v15, 3, v14"); e("v_add_u32 v15, 64, v15")
    zhi(12, 15)
    e("v_lshlrev_b32 v186, 4, v1")
    IDX = 176
    e("v_lshlrev_b32 v20, 3, v1"); e("v_sub_u32 v20, 2047, v20")
    e("s_mov_b32 s37, 0")
    li = k.new("IX"); k.lab(li)
    e("v_cvt_f32_u32 v21, v20")
    e("v_cvt_pk_bf16_f32 v21, v21, v21"); e("v_lshlrev_b32 v21, 16, v21"); e("v_cvt_u32_f32 v21, v21")
    e("v_lshrrev_b32 v22, 7, v21"); e("v_lshlrev_b32 v22, 3, v22"); e("v_and_b32 v23, 7, v21"); e("v_or_b32 v22, v22, v23")
    e("v_or_b32 v23, 8, v22"); e("v_ffbh_u32 v23, v23"); e("v_sub_u32 v23, 28, v23")
    e("v_lshrrev_b32 v22, v23, v22"); e("v_lshlrev_b32 v23, 3, v23"); e("v_add_u32 v22, v22, v23")
    e("v_lshrrev_b32 v23, 3, v21"); e("v_and_b32 v23, 15, v23")
    e("v_lshlrev_b32 v22, 4, v22"); e("v_add_u32 v22, v22, v23"); e("v_lshlrev_b32 v22, 2, v22")
    e("s_set_gpr_idx_on s37, gpr_idx(DST)")
    e("s_nop 0")
    e(f"v_mov_b32 v{IDX}, v22")
    e("s_set_gpr_idx_off")
    e("v_subrev_u32 v20, 1, v20")
    e("s_add_u32 s37, s37, 1"); e("s_cmp_lt_u32 s37, 8"); e(f"s_cbranch_scc1 {li}")
    e("s_waitcnt lgkmcnt(0)")
    e("s_lshl_b32 s53, s52, 16"); e("s_and_b32 s55, s52, 0xffff0000"); e("s_cmp_eq_u32 s26, 0"); e("s_cselect_b32 s53, s53, s55")
    e("v_mov_b32 v15, s53"); e(f"v_mul_f32 v15, {hex(f32bits(LOG2E))}, v15"); e("v_exp_f32 v15, v15"); e("s_nop 0")
    e("v_cvt_pk_bf16_f32 v15, v15, v15"); e("v_lshlrev_b32 v15, 16, v15")
    e(f"s_mov_b32 s34, {hex(f32bits(LOG2E))}"); e(f"s_mov_b32 s35, {hex(f32bits(-LOG2E))}"); e(f"s_mov_b32 s36, {hex(f32bits(1/(2*3.141592653589793)))}")
    e("v_add_f32 v16, v15, v15")
    e("s_waitcnt vmcnt(0)")
    e(f"ds_write_b128 v3, v[200:203] offset:{TT}"); e(f"ds_write_b128 v3, v[204:207] offset:{TT+16}")
    stamp(k, 1)
    e("s_waitcnt lgkmcnt(0)"); e("s_barrier")
    stamp(k, 2)
    e("v_lshrrev_b32 v20, 2, v14"); e("s_lshl_b32 s37, s3, 4"); e("v_add_u32 v20, s37, v20"); e("v_mul_u32_u24 v20, 192, v20")
    e("v_lshrrev_b32 v21, 4, v0"); e("v_lshlrev_b32 v21, 5, v21"); e("v_add_u32 v20, v20, v21")
    e("v_and_b32 v21, 3, v0"); e("v_lshlrev_b32 v21, 3, v21"); e("v_add_u32 v20, v20, v21")
    for rho in range(2):
        for hs in range(2):
            e(f"ds_read_b64_tr_b16 v[{200+4*rho+2*hs}:{201+4*rho+2*hs}], v20 offset:{TT + (8*rho+4*hs)*192}")
    T2 = TT + 12288
    e("v_mul_u32_u24 v21, 144, v0"); e("s_lshl_b32 s38, s3, 5"); e("v_add_u32 v21, s38, v21")
    e("s_waitcnt lgkmcnt(0)")
    e(f"ds_write_b128 v21, v[200:203] offset:{T2}"); e(f"ds_write_b128 v21, v[204:207] offset:{T2+16}")
    e("s_waitcnt lgkmcnt(0)"); e("s_barrier")
    e("v_lshrrev_b32 v20, 2, v1"); e("v_mul_u32_u24 v21, 144, v20"); e("v_and_b32 v22, 3, v1"); e("v_lshlrev_b32 v22, 5, v22"); e("v_add_u32 v21, v21, v22")
    e(f"ds_read_b128 v[200:203], v21 offset:{T2}"); e(f"ds_read_b128 v[204:207], v21 offset:{T2+16}")
    e("v_lshlrev_b32 v20, 12, v20"); e("v_add_u32 v21, v20, v22")
    e("s_lshl_b32 s37, s31, 18"); e("s_lshl_b32 s38, s30, 7"); e("s_add_u32 s37, s37, s38")
    e(f"s_add_u32 s37, s37, {WS_UT}")
    e("s_waitcnt lgkmcnt(0)")
    e("buffer_store_dwordx4 v[200:203], v21, s[48:51], s37 offen")
    e("buffer_store_dwordx4 v[204:207], v21, s[48:51], s37 offen offset:16")
    ACC = 160
    for i in range(12): e(f"v_mov_b32 v{ACC+i}, 0")
    fr = 40; AP, CP = 96, 98; RW = 100
    e("s_mov_b32 s37, 0")
    lk = k.new("KG"); k.lab(lk)
    e("s_set_gpr_idx_on s37, gpr_idx(SRC0)"); e("s_nop 0")
    for ai, src in enumerate((64, 72, 80, 88)):
        e(f"v_mov_b32 v{RW+2*ai}, v{src}"); e(f"v_mov_b32 v{RW+2*ai+1}, v{src+1}")
    e("s_set_gpr_idx_off")
    for j in range(4):
        def unp(dst, ai):
            r = RW + 2*ai + j//2
            if j & 1: e(f"v_and_b32 v{dst}, 0xffff0000, v{r}")
            else: e(f"v_lshlrev_b32 v{dst}, 16, v{r}")
        a, b, c, d = AP, AP+1, CP, CP+1
        unp(a, 0); unp(b, 1); unp(c, 2); unp(d, 3)
        e(f"v_mul_f32 v{a}, s34, v{a}"); e(f"v_mul_f32 v{b}, v{b}, v15"); e(f"v_exp_f32 v{a}, v{a}")
        e(f"v_mul_f32 v{c}, v{c}, v16"); e(f"v_mul_f32 v{d}, v{d}, v16")
        e(f"v_cvt_pk_bf16_f32 v{a}, v{a}, v{a}"); e(f"v_mul_f32 v{b}, s36, v{b}")
        e(f"v_lshlrev_b32 v{a}, 16, v{a}"); e(f"v_mul_f32 v{a}, v{a}, v15"); e(f"v_mul_f32 v{a}, s35, v{a}")
        for c_ in range(4):
            e(f"v_pk_mul_f32 v[{20+2*c_}:{21+2*c_}], v[{AP}:{AP+1}], v[{6+2*c_}:{7+2*c_}]")
        for c_ in range(4):
            e(f"v_exp_f32 v{20+2*c_}, v{20+2*c_}")
            e(f"v_fract_f32 v{21+2*c_}, v{21+2*c_}")
        for c_ in range(4):
            e(f"v_cos_f32 v{28+2*c_}, v{21+2*c_}")
            e(f"v_sin_f32 v{29+2*c_}, v{21+2*c_}")
        e("s_nop 0")
        for c_ in range(4):
            e(f"v_pk_mul_f32 v[{28+2*c_}:{29+2*c_}], v[{28+2*c_}:{29+2*c_}], v[{20+2*c_}:{21+2*c_}] op_sel_hi:[1,0]")
        for mb in range(3):
            e(f"v_cvt_pk_bf16_f32 v{fr+4+4*mb+j}, v{30+2*mb}, v{31+2*mb}")
        e(f"v_mul_f32 v36, v{CP+1}, v29")
        e(f"v_mul_f32 v37, v{CP+1}, v28")
        e(f"v_fma_f32 v36, v{CP}, v28, -v36")
        e(f"v_fma_f32 v37, -v{CP}, v29, -v37")
        e(f"v_cvt_pk_bf16_f32 v{fr+j}, v36, v37")
    e("s_add_u32 s37, s37, 2"); e("s_cmp_lt_u32 s37, 8")
    for mb in range(3):
        e(f"v_mfma_f32_16x16x32_bf16 {vr(ACC+4*mb,4)}, {vr(fr+4+4*mb,4)}, {vr(fr,4)}, {vr(ACC+4*mb,4)}")
    e(f"s_cbranch_scc1 {lk}")
    stamp(k, 3)
    k.nop(8)
    e("v_lshrrev_b32 v20, 4, v0"); e("v_lshlrev_b32 v20, 8, v20"); e("v_lshlrev_b32 v21, 2, v14"); e("v_add_u32 v20, v20, v21")
    e("s_mul_i32 s37, s3, 3072"); e("v_add_u32 v20, s37, v20")
    for mb in range(3):
        for r in range(4):
            e(f"ds_write_b32 v20, v{ACC+4*mb+r} offset:{KT+mb*1024+r*64}")
    e("s_waitcnt lgkmcnt(0)")
    stamp(k, 5)
    e("s_barrier")
    stamp(k, 6)
    for ch in range(2):
        for m in range(8):
            e(f"ds_read_b32 v{16+8*ch+m}, v{IDX+m} offset:{KT+2*ch*3072}")
            e(f"ds_read_b32 v{64+8*ch+m}, v{IDX+m} offset:{KT+(2*ch+1)*3072}")
    e("s_lshl_b32 s37, s24, 12"); e(f"s_add_u32 s37, s37, {WS_KL}")
    e("s_waitcnt lgkmcnt(0)")
    for i in range(16): e(f"v_add_f32 v{16+i}, v{16+i}, v{64+i}")
    for ch in range(2):
        for q in range(4): e(f"v_cvt_pk_bf16_f32 v{32+4*ch+q}, v{16+8*ch+2*q}, v{17+8*ch+2*q}")
    e("buffer_store_dwordx4 v[32:35], v186, s[48:51], s37 offen")
    e("s_add_u32 s37, s37, 4096")
    e("buffer_store_dwordx4 v[36:39], v186, s[48:51], s37 offen")
    stamp(k, 7)
    if PROF: e("s_waitcnt vmcnt(0)")
    stamp(k, 4)

CONV_LDS = 1024 + 2*4640 + 2*34304
def conv_body(k):
    e = k.e; stamp = GM.stamp; PROF = GM.PROF
    UT = 1024; UTP = 4640; KC = UT + 2*UTP; KCP = 4288; KCC = 34304
    P = 2063
    e("s_load_dwordx2 s[68:69], s[0:1], 48")
    e("s_load_dwordx2 s[70:71], s[0:1], 80")
    e("s_load_dwordx2 s[56:57], s[0:1], 96")
    e("v_mov_b32 v1, v0")
    e("v_lshrrev_b32 v2, 6, v0")
    e("v_and_b32 v0, 63, v0")
    e("s_nop 0")
    e("v_readfirstlane_b32 s3, v2")
    e("s_and_b32 s24, s2, 7"); e("s_lshl_b32 s24, s24, 5"); e("s_lshr_b32 s25, s2, 3"); e("s_add_u32 s24, s24, s25")
    e("s_lshl_b32 s24, s24, 1"); e("s_lshl_b32 s25, s24, 1")
    e("s_waitcnt lgkmcnt(0)")
    k.srd(48, 70, 4*MB); k.srd(12, 56, WS_SIZE)
    e("s_add_u32 s68, s68, s25"); e("s_addc_u32 s69, s69, 0"); e("s_load_dword s54, s[68:69], 0")
    e("s_lshl_b32 s26, s24, 12"); e(f"s_add_u32 s26, s26, {WS_KL}")
    for ch in range(2):
        b = 16 + 4*ch
        e(f"s_add_u32 s{b}, s56, s26"); e(f"s_addc_u32 s{b+1}, s57, 0"); e(f"s_and_b32 s{b+1}, s{b+1}, 0xffff")
        e(f"s_mov_b32 s{b+2}, 4096"); e(f"s_mov_b32 s{b+3}, 0x00020000")
        if ch == 0: e("s_add_u32 s26, s26, 4096")
    e("v_lshlrev_b32 v186, 4, v1")
    e("v_subrev_u32 v3, 32, v186")
    e("v_add_u32 v4, 4096, v3")
    for ch in range(2):
        e(f"buffer_load_dwordx4 {vr(64+8*ch,4)}, v3, s[{16+4*ch}:{19+4*ch}], 0 offen")
        e(f"buffer_load_dwordx4 {vr(68+8*ch,4)}, v3, s[{16+4*ch}:{19+4*ch}], 0 offen offset:16")
    e("s_lshl_b32 s27, s24, 12"); e(f"s_add_u32 s27, s27, {WS_UT}")
    e("buffer_load_dwordx4 v[200:203], v186, s[12:15], s27 offen")
    e("s_add_u32 s27, s27, 4096")
    e("buffer_load_dwordx4 v[204:207], v186, s[12:15], s27 offen")
    for ch in range(2):
        e(f"buffer_load_dwordx4 {vr(80+8*ch,4)}, v4, s[{16+4*ch}:{19+4*ch}], 0 offen")
        e(f"buffer_load_dwordx4 {vr(84+8*ch,4)}, v4, s[{16+4*ch}:{19+4*ch}], 0 offen offset:16")
    for i in range(4): e(f"v_mov_b32 v{16+i}, 0")
    e("v_cmp_gt_u32 vcc, 32, v1"); e("s_and_saveexec_b64 s[30:31], vcc")
    e(f"ds_write_b128 v186, v[16:19] offset:{UT}"); e(f"ds_write_b128 v186, v[16:19] offset:{UT+UTP}")
    e("s_mov_b64 exec, s[30:31]")
    e("v_cmp_gt_u32 vcc, 2, v1"); e("s_and_saveexec_b64 s[30:31], vcc")
    e(f"ds_write_b128 v186, v[16:19] offset:{UT+4608}"); e(f"ds_write_b128 v186, v[16:19] offset:{UT+UTP+4608}")
    e("s_mov_b64 exec, s[30:31]")
    e("v_and_b32 v14, 15, v0"); e("v_lshrrev_b32 v11, 4, v0")
    e("v_lshlrev_b32 v12, 3, v11"); e("v_sub_u32 v12, v12, v14"); e(f"v_add_u32 v12, {P}, v12")
    e("v_and_b32 v13, 7, v12"); e("v_sub_u32 v12, v12, v13")
    e(f"s_movk_i32 s38, {KCP}"); e("v_mul_lo_u32 v13, v13, s38"); e("v_lshlrev_b32 v12, 1, v12"); e("v_add_u32 v12, v12, v13")
    e(f"v_add_u32 v184, {KC - 960}, v12")
    e("v_lshlrev_b32 v12, 5, v14"); e("v_lshlrev_b32 v13, 4, v11"); e("v_add_u32 v12, v12, v13")
    e(f"v_add_u32 v185, {UT + 512 - 960}, v12")
    e("v_add_u32 v187, 4096, v186")
    def copies(addr, src, ch):
        if ch: e(f"v_add_u32 v50, {KCC}, v{addr}"); addr = 50
        for q in range(1, 7): e(f"v_mov_b32 v{25+q}, v{src+q}")
        for q in range(7): e(f"v_alignbit_b32 v{32+q}, v{src+1+q}, v{src+q}, 16")
        for q in range(1, 7): e(f"v_mov_b32 v{41+q}, v{32+q}")
        for s in range(8):
            h = s // 2
            if s % 2 == 0: r = (src+h) if h % 2 == 0 else (25+h)
            else: r = (32+h) if h % 2 == 0 else (41+h)
            e(f"ds_write_b128 v{addr}, {vr(r,4)} offset:{KC + s*KCP}")
    e("s_waitcnt vmcnt(6)")
    stamp(k, 1)
    copies(186, 64, 0); copies(186, 72, 1)
    e("s_waitcnt vmcnt(4)")
    e(f"ds_write_b128 v186, v[200:203] offset:{UT+512}"); e(f"ds_write_b128 v186, v[204:207] offset:{UT+UTP+512}")
    e("s_waitcnt vmcnt(0)")
    e("v_cmp_gt_u32 vcc, 6, v1"); e("s_and_saveexec_b64 s[30:31], vcc")
    copies(187, 80, 0); copies(187, 88, 1)
    e("s_mov_b64 exec, s[30:31]")
    e("s_waitcnt lgkmcnt(0)"); e("s_barrier")
    stamp(k, 2)
    RES = 188
    e("s_lshl_b32 s42, s54, 16"); e("s_and_b32 s43, s54, 0xffff0000")
    e("s_movk_i32 s44, 4096")
    for blk in range(2):
        if blk == 0: e("s_sub_u32 s39, 7, s3")
        else: e("s_mov_b32 s39, s3")
        for ch in range(2):
            acc = RES + 8*ch + 4*blk
            for i in range(4): e(f"v_mov_b32 v{acc+i}, 0")
            e(f"v_add_u32 v48, {ch*KCC}, v184")
            e("s_lshl_b32 s40, s39, 9"); e(f"s_add_u32 s40, s40, {ch*UTP}"); e("v_add_u32 v49, s40, v185")
            FB = 64; GB = 80
            def rd(slot, stepoff):
                off = 960 - 64*stepoff
                e(f"ds_read_b128 {vr(FB+4*slot,4)}, v48 offset:{off}")
                e(f"ds_read_b128 {vr(GB+4*slot,4)}, v49 offset:{off}")
            for q in range(4): rd(q, q)
            e("s_mov_b32 s41, 0")
            lc = k.new("CV"); k.lab(lc)
            for q in range(8):
                e("s_waitcnt lgkmcnt(6)")
                e(f"v_mfma_f32_16x16x32_bf16 {vr(acc,4)}, {vr(FB+4*(q%4),4)}, {vr(GB+4*(q%4),4)}, {vr(acc,4)}")
                rd(q % 4, q + 4)
            e("v_subrev_u32 v48, 512, v48"); e("v_subrev_u32 v49, 512, v49")
            e("s_add_u32 s41, s41, 1"); e("s_cmp_le_u32 s41, s39"); e(f"s_cbranch_scc1 {lc}")
            e("s_waitcnt lgkmcnt(6)")
            e(f"v_mfma_f32_16x16x32_bf16 {vr(acc,4)}, {vr(FB,4)}, {vr(GB,4)}, {vr(acc,4)}")
            e("s_waitcnt lgkmcnt(0)")
        e("v_lshlrev_b32 v12, 4, v14"); e("v_lshlrev_b32 v13, 2, v11"); e("v_add_u32 v12, v12, v13")
        e("s_lshl_b32 s40, s39, 8"); e("v_add_u32 v12, s40, v12")
        e("v_lshlrev_b32 v13, 1, v12")
        e(f"ds_read_b64 v[16:17], v13 offset:{UT+512}"); e(f"ds_read_b64 v[18:19], v13 offset:{UT+UTP+512}")
        e("v_lshlrev_b32 v15, 11, v12"); e("v_add_u32 v15, s25, v15")
        k.nop(6)
        e("s_waitcnt lgkmcnt(0)")
        for r in range(4):
            for ch in range(2):
                src = 16 + 2*ch + r//2
                if r & 1: e(f"v_and_b32 v{20+ch}, 0xffff0000, v{src}")
                else: e(f"v_lshlrev_b32 v{20+ch}, 16, v{src}")
                e(f"v_mul_f32 v{20+ch}, s{42+ch}, v{20+ch}")
            e("v_cvt_pk_bf16_f32 v22, v20, v21")
            e(f"v_cvt_pk_bf16_f32 v23, v{RES+4*blk+r}, v{RES+8+4*blk+r}")
            e("v_lshlrev_b32 v24, 16, v22"); e("v_and_b32 v25, 0xffff0000, v22")
            e("v_lshlrev_b32 v26, 16, v23"); e("v_and_b32 v27, 0xffff0000, v23")
            e("v_add_f32 v24, v24, v26"); e("v_add_f32 v25, v25, v27")
            e(f"v_cvt_pk_bf16_f32 v{28+4*blk+r}, v24, v25")
            so = "0" if r < 2 else "s44"
            e(f"buffer_store_dword v{28+4*blk+r}, v15, s[48:51], {so} offen offset:{(r%2)*2048}")
        if blk == 0: stamp(k, 3)
    if PROF: e("s_waitcnt vmcnt(0)")
    stamp(k, 4)

def mk(name, body, lds):
    def f():
        k = K(name); e = k.e
        e("s_cmp_ge_u32 s2, 256"); e(f"s_cbranch_scc1 {k.name}_end")
        if GM.PROF: e("s_memrealtime s[88:89]")
        GM.stamp(k, 0)
        body(k)
        GM.stamp_out(k, 8)
        return k, 224, (256, 256, lds)
    return f
KERNELS = {"prep": mk("prep_kernel", prep_body, PREP_LDS), "conv": mk("conv_kernel", conv_body, CONV_LDS)}

def merged(name, first, second, lds, vg):
    def f():
        import gen
        k = K(name); e = k.e
        l2 = k.new("SECOND")
        e("s_cmp_ge_u32 s2, 512"); e(f"s_cbranch_scc1 {k.name}_end")
        import os
        if os.environ.get("ROLE", "0") == "1":
            e("s_and_b32 s4, s2, 8")
            e("s_lshr_b32 s5, s2, 4"); e("s_lshl_b32 s5, s5, 3"); e("s_and_b32 s2, s2, 7"); e("s_or_b32 s2, s2, s5")
            e("s_cmp_lg_u32 s4, 0"); e(f"s_cbranch_scc1 {l2}")
            first(k)
            e("s_endpgm")
            k.lab(l2)
        else:
            e("s_cmp_lt_u32 s2, 256"); e(f"s_cbranch_scc1 {l2}")
            e("s_sub_u32 s2, s2, 256")
            if name == "l1_kernel": e("s_setprio 3")
            import gen_tl
            gen_tl.mark(k, 0)
            first(k)
            gen_tl.mark(k, 1)
            gen_tl.mark(k, 12, 251)
            gen_tl.mark(k, 13, 130)
            e("s_endpgm")
            k.lab(l2)
        if GM.PROF: e("s_memrealtime s[88:89]")
        GM.stamp(k, 0)
        import gen_tl
        gen_tl.mark(k, 2)
        second(k)
        gen_tl.mark(k, 3)
        gen_tl.mark(k, 14, 251)
        if os.environ.get('G1BASE','64') == '64': GM.stamp_out(k, 8)
        return k, vg, (512, 256, lds)
    return f
import gen
KERNELS["l1"] = merged("l1_kernel", gen.gemm1, prep_body, max(57344, PREP_LDS), 224)
KERNELS["l3"] = merged("l3_kernel", GM.gemm2, conv_body, max(65536, CONV_LDS), 224)
```

```python
import os
from gen import MB
TL = os.environ.get("TL", "0") == "1"
WS_TL = 12*MB + 900*1024 + 8*MB
def mark(k, slot, wg=5):
    if not TL: return
    e = k.e; l = k.new("TLM")
    e(f"s_cmp_lg_u32 s2, {wg}"); e(f"s_cbranch_scc1 {l}")
    e("s_load_dwordx2 s[92:93], s[0:1], 96"); e("s_memrealtime s[96:97]"); e("s_waitcnt lgkmcnt(0)")
    e("s_and_b32 s93, s93, 0xffff"); e("s_mov_b32 s94, 0x4000000"); e("s_mov_b32 s95, 0x00020000")
    e(f"v_mov_b32 v126, {WS_TL + 4*slot}"); e("v_mov_b32 v127, s96")
    e("buffer_store_dword v127, v126, s[92:95], 0 offen")
    e("s_waitcnt vmcnt(0)")
    k.lab(l)
def dump(k, wg=5):
    if not TL: return
    e = k.e; l = k.new("TLD")
    e(f"s_cmp_lg_u32 s2, {wg}"); e(f"s_cbranch_scc1 {l}")
    e("s_load_dwordx2 s[92:93], s[0:1], 96"); e("s_load_dwordx2 s[96:97], s[0:1], 88"); e("s_waitcnt lgkmcnt(0)")
    e("s_and_b32 s93, s93, 0xffff"); e("s_mov_b32 s94, 0x4000000"); e("s_mov_b32 s95, 0x00020000")
    e("v_mbcnt_lo_u32_b32 v126, -1, 0"); e("v_lshlrev_b32 v126, 2, v126"); e(f"v_add_u32 v125, {WS_TL}, v126")
    e("buffer_load_dword v127, v125, s[92:95], 0 offen sc0 sc1"); e("s_waitcnt vmcnt(0)")
    e("s_and_b32 s97, s97, 0xffff"); e("s_mov_b32 s98, 64"); e("s_mov_b32 s99, 0x00020000")
    e("buffer_store_dword v127, v126, s[96:99], 0 offen"); e("s_waitcnt vmcnt(0)")
    k.lab(l)
```

```python
import sys, math, struct, os
NAME = "concat_heads__ssm_conv_s4d__softmax_full_mha__prompt"
MB = 1 << 20
WS_Q, WS_K, WS_V, WS_O = 0, 2*MB, 4*MB, 6*MB
WS_KM = 8*MB
WS_UT = 9*MB
WS_KL = 11*MB
WS_SIZE = 13*MB

def f32bits(x): return struct.unpack("<I", struct.pack("<f", x))[0]
LOG2E = 1.4426950408889634
QSCALE = 0.25*LOG2E

class K:
    def __init__(self, name):
        self.name = name; self.L = []; self.uid = 0
    def e(self, s): self.L.append("    " + s)
    def lab(self, s): self.L.append(s + ":")
    def new(self, p="L"):
        self.uid += 1; return f"{p}_{self.name}_{self.uid}"
    def nop(self, n):
        while n > 0:
            k = min(n, 16); self.e(f"s_nop {k-1}"); n -= k
    def srd(self, s, base, size):
        self.e(f"s_mov_b32 s{s}, s{base}")
        self.e(f"s_and_b32 s{s+1}, s{base+1}, 0xffff")
        self.e(f"s_mov_b32 s{s+2}, {size}")
        self.e(f"s_mov_b32 s{s+3}, 0x00020000")
    def text(self, vgpr, sgpr=96):
        out = [f".globl {self.name}", ".p2align 8", f".type {self.name},@function", f"{self.name}:"]
        out += self.L
        out += [f"{self.name}_end:", "    s_endpgm"]
        acc = (vgpr + 3)//4*4
        desc = f""".amdhsa_kernel {self.name}
  .amdhsa_next_free_vgpr {vgpr}
  .amdhsa_next_free_sgpr {sgpr}
  .amdhsa_accum_offset {acc}
  .amdhsa_group_segment_fixed_size 0
  .amdhsa_kernarg_size 104
  .amdhsa_user_sgpr_count 2
  .amdhsa_user_sgpr_kernarg_segment_ptr 1
  .amdhsa_system_sgpr_workgroup_id_x 1
.end_amdhsa_kernel"""
        return "\n".join(out), desc

def vr(a, n): return f"v[{a}:{a+n-1}]" if n > 1 else f"v{a}"

def gemm1(k=None):
    from gen_more import stamp, stamp_out, PROF
    own = k is None
    if own:
        k = K("gemm1_kernel")
        k.e("s_cmp_ge_u32 s2, 256"); k.e(f"s_cbranch_scc1 {k.name}_end")
    e = k.e
    if PROF: e("s_memrealtime s[88:89]")
    stamp(k, 0)
    e("s_load_dwordx2 s[4:5], s[0:1], 56")
    e("s_load_dwordx2 s[6:7], s[0:1], 64")
    e("s_load_dwordx2 s[8:9], s[0:1], 96")
    e("v_lshrrev_b32 v1, 6, v0")
    e("v_and_b32 v0, 63, v0")
    e("s_nop 0")
    e("v_readfirstlane_b32 s3, v1")
    e("s_and_b32 s26, s2, 7"); e("s_lshr_b32 s27, s2, 3")
    e("s_lshr_b32 s24, s26, 1"); e("s_lshl_b32 s24, s24, 2"); e("s_and_b32 s28, s27, 3"); e("s_add_u32 s24, s24, s28")
    e("s_and_b32 s25, s26, 1"); e("s_lshl_b32 s25, s25, 3"); e("s_lshr_b32 s28, s27, 2"); e("s_add_u32 s25, s25, s28")
    e("s_waitcnt lgkmcnt(0)")
    k.srd(12, 4, 2*MB); k.srd(16, 6, 512*1536*2); k.srd(20, 8, WS_SIZE)
    e("s_lshl_b32 s26, s24, 7"); e("s_lshl_b32 s27, s3, 5"); e("s_add_u32 s26, s26, s27")
    e("v_and_b32 v2, 31, v0"); e("v_add_u32 v2, s26, v2"); e("v_lshlrev_b32 v2, 10, v2")
    e("v_lshrrev_b32 v3, 5, v0"); e("v_lshlrev_b32 v3, 4, v3"); e("v_add_u32 v2, v2, v3")
    e("s_movk_i32 s28, 171"); e("s_movk_i32 s29, 3072")
    for sub in range(3):
        e(f"v_add_u32 v3, {64*sub}, v0")
        e("v_mul_lo_u32 v7, v3, s28"); e("v_lshrrev_b32 v7, 11, v7")
        e("v_mul_u32_u24 v8, 12, v7"); e("v_sub_u32 v8, v3, v8")
        e("v_mul_lo_u32 v7, v7, s29"); e("v_lshlrev_b32 v8, 4, v8")
        e(f"v_add_u32 v{4+sub}, v7, v8")
    e("v_lshrrev_b32 v7, 5, v0"); e("v_lshlrev_b32 v7, 3, v7")
    e("v_and_b32 v8, 15, v0"); e("v_lshrrev_b32 v8, 2, v8"); e("v_add_u32 v7, v7, v8")
    e("v_mul_u32_u24 v7, 192, v7")
    e("v_lshrrev_b32 v8, 4, v0"); e("v_and_b32 v8, 1, v8"); e("v_lshlrev_b32 v8, 5, v8"); e("v_add_u32 v7, v7, v8")
    e("v_and_b32 v8, 3, v0"); e("v_lshlrev_b32 v8, 3, v8"); e("v_add_u32 v7, v7, v8")
    NR = 2
    XB = NR*12288
    XF = 128
    ACC = 16
    WF = 64
    for i in range(48): e(f"v_mov_b32 v{ACC+i}, 0")
    e("s_mul_i32 s30, s25, 192")
    e("s_lshl_b32 s42, s3, 4")
    e("s_mul_i32 s43, s42, 3072"); e("s_add_u32 s43, s43, s30")
    e("s_mul_i32 s44, s42, 192")
    e("v_lshrrev_b32 v10, 3, v0"); e("v_lshrrev_b32 v11, 1, v10"); e("v_and_b32 v12, 7, v0"); e("v_xor_b32 v12, v12, v11")
    e("v_lshlrev_b32 v10, 10, v10"); e("v_lshlrev_b32 v13, 4, v12"); e("v_add_u32 v8, v10, v13")
    e("v_xor_b32 v12, 4, v12"); e("v_lshlrev_b32 v13, 4, v12"); e("v_add_u32 v9, v10, v13")
    e("s_lshl_b32 s47, s26, 10")
    e("s_lshl_b32 s48, s3, 12")
    e("v_and_b32 v10, 31, v0"); e("v_lshrrev_b32 v11, 1, v10"); e("v_and_b32 v11, 7, v11"); e("v_lshrrev_b32 v12, 5, v0")
    e("v_lshlrev_b32 v10, 7, v10"); e("v_add_u32 v10, s48, v10"); e(f"v_add_u32 v10, {XB}, v10")
    for sl in range(4):
        e(f"v_add_u32 v13, {2*sl}, v12"); e("v_xor_b32 v13, v13, v11"); e("v_lshlrev_b32 v13, 4, v13"); e(f"v_add_u32 v{88+sl}, v10, v13")
    def loads(slot):
        for sub in range(3):
            e(f"s_add_u32 s34, s44, {slot*12288 + sub*1024}")
            e("s_mov_b32 m0, s34"); e("s_nop 0")
            e(f"buffer_load_dwordx4 v{4+sub}, s[16:19], s43 offen lds")
        for b8 in range(4):
            e(f"s_add_u32 s34, s48, {XB + slot*16384 + b8*1024}")
            e("s_mov_b32 m0, s34"); e(f"s_add_u32 s49, s47, {b8*8192}")
            e(f"buffer_load_dwordx4 v{8 + (b8&1)}, s[12:15], s49 offen lds")
        e(f"s_add_u32 s43, s43, {64*3072}"); e("s_add_u32 s47, s47, 128")
    loads(0)
    TOUCH = os.environ.get("TOUCH", "0") == "1"
    if TOUCH:
        e("v_and_b32 v92, 31, v0"); e("v_add_u32 v92, s26, v92"); e("v_lshlrev_b32 v92, 10, v92")
        e("v_lshrrev_b32 v93, 5, v0"); e("v_lshlrev_b32 v93, 7, v93"); e("v_add_u32 v92, v92, v93")
        for j in range(4): e(f"buffer_load_dword v{100+j}, v92, s[12:15], 0 offen offset:{j*256}")
        e("s_lshl_b32 s50, s3, 7"); e("v_lshrrev_b32 v93, 1, v0"); e("v_add_u32 v93, s50, v93"); e("v_mul_lo_u32 v93, v93, s29")
        e("v_and_b32 v94, 1, v0"); e("v_lshlrev_b32 v94, 7, v94"); e("v_add_u32 v93, v93, v94")
        e("s_and_b32 s50, s30, 0xffffff80")
        for j in range(4):
            e(f"buffer_load_dword v{104+j}, v93, s[16:19], s50 offen")
            e(f"s_add_u32 s50, s50, {32*3072}")
    lepi = k.new("EPI")
    def fread(slot, sl, pb):
        e(f"ds_read_b128 {vr(XF+4*pb,4)}, v{88+sl} offset:{slot*16384}")
        for t in range(3):
            for hs in range(2):
                e(f"ds_read_b64_tr_b16 {vr(WF+12*pb+4*t+2*hs,2)}, v7 offset:{slot*12288+sl*3072+hs*768+64*t}")
    def mf(t, pb, isV):
        a_ = vr(WF+12*pb+4*t, 4); b_ = vr(XF+4*pb, 4)
        if isV: a_, b_ = b_, a_
        e(f"v_mfma_f32_32x32x16_bf16 {vr(ACC+16*t,16)}, {a_}, {b_}, {vr(ACC+16*t,16)}")
    e("s_mov_b32 s46, 0")
    lp = k.new("LP"); k.lab(lp)
    for slot in range(2):
        if slot == 0 and TOUCH:
            lw = k.new("W0"); lw2 = k.new("W1")
            e("s_cmp_eq_u32 s46, 0"); e(f"s_cbranch_scc1 {lw}")
            e("s_waitcnt vmcnt(0)")
            k.lab(lw); e("s_waitcnt vmcnt(8)")
        else:
            e("s_waitcnt vmcnt(0)")
        e("s_barrier")
        fread(slot, 0, 0)
        if slot == 0:
            loads(1)
        else:
            ls = k.new("SK"); e("s_cmp_eq_u32 s46, 3"); e(f"s_cbranch_scc1 {ls}"); loads(0); k.lab(ls)
        for sl in range(4):
            pb = sl & 1
            if sl < 3:
                fread(slot, sl+1, pb ^ 1); e("s_waitcnt lgkmcnt(7)")
            else:
                e("s_waitcnt lgkmcnt(0)")
            la = k.new("A"); lb = k.new("B"); lc = k.new("C"); ld = k.new("D")
            e("s_cmp_gt_u32 s25, 10"); e(f"s_cbranch_scc1 {la}")
            mf(0, pb, 0); mf(1, pb, 0)
            e("s_cmp_eq_u32 s25, 10"); e(f"s_cbranch_scc1 {lc}")
            mf(2, pb, 0); e(f"s_branch {ld}")
            k.lab(la); mf(0, pb, 1); mf(1, pb, 1)
            k.lab(lc); mf(2, pb, 1)
            k.lab(ld)
    e("s_add_u32 s46, s46, 1"); e("s_cmp_lt_u32 s46, 4"); e(f"s_cbranch_scc1 {lp}")
    k.lab(lepi)
    k.nop(16)
    stamp(k, 5)
    e("v_lshlrev_b32 v2, 4, v0")
    e("v_and_b32 v3, 15, v0"); e("v_lshlrev_b32 v3, 4, v3")
    e("v_lshrrev_b32 v4, 5, v0"); e("v_lshlrev_b32 v4, 8, v4"); e("v_add_u32 v3, v3, v4")
    e("v_lshrrev_b32 v4, 4, v0"); e("v_and_b32 v4, 1, v4"); e("v_lshlrev_b32 v4, 16, v4"); e("v_add_u32 v3, v3, v4")
    e("s_lshl_b32 s35, s24, 2"); e("s_add_u32 s35, s35, s3")
    for t in range(3):
        lV = k.new("EV"); lN = k.new("EN")
        e(f"s_mul_i32 s36, s25, 96"); e(f"s_add_u32 s36, s36, {32*t}")
        e("s_lshr_b32 s37, s36, 9")
        e("s_and_b32 s38, s36, 511"); e("s_lshr_b32 s38, s38, 4")
        e("s_cmp_eq_u32 s37, 2"); e(f"s_cbranch_scc1 {lV}")
        e("s_cmp_eq_u32 s37, 0"); e(f"s_cselect_b32 s39, {hex(f32bits(QSCALE))}, 1.0")
        e("s_lshl_b32 s40, s37, 21")
        e("s_lshl_b32 s41, s38, 6"); e("s_add_u32 s41, s41, s35"); e("s_lshl_b32 s41, s41, 10"); e("s_add_u32 s40, s40, s41")
        for i in range(16): e(f"v_mul_f32 v{ACC+16*t+i}, s39, v{ACC+16*t+i}")
        for i in range(8): e(f"v_cvt_pk_bf16_f32 v{88+i}, v{ACC+16*t+2*i}, v{ACC+16*t+2*i+1}")
        e(f"buffer_store_dwordx4 v[88:91], v2, s[20:23], s40 offen")
        e("s_add_u32 s40, s40, 65536")
        e(f"buffer_store_dwordx4 v[92:95], v2, s[20:23], s40 offen")
        e("s_cmp_lg_u32 s37, 1"); e(f"s_cbranch_scc1 {lN}")
        for hh in range(2):
            b = ACC+16*t+8*hh
            e(f"v_mul_f32 v{96+hh}, v{b}, v{b}")
            for i in range(1, 8): e(f"v_fmac_f32 v{96+hh}, v{b+i}, v{b+i}")
        for hh in range(2): e(f"v_mov_b32 v{98+hh}, v{96+hh}")
        k.nop(2)
        for hh in range(2): e(f"v_permlane32_swap_b32 v{96+hh}, v{98+hh}")
        k.nop(2)
        for hh in range(2): e(f"v_add_f32 v{96+hh}, v{96+hh}, v{98+hh}")
        for mod in ("quad_perm:[1,0,3,2]", "quad_perm:[2,3,0,1]", "row_half_mirror", "row_mirror"):
            k.nop(2)
            for hh in range(2): e(f"v_max_f32_dpp v{96+hh}, v{96+hh}, v{96+hh} {mod} row_mask:0xf bank_mask:0xf")
        for hh in range(2): e(f"v_mov_b32 v{98+hh}, v{96+hh}")
        k.nop(2)
        for hh in range(2): e(f"v_permlane16_swap_b32 v{96+hh}, v{98+hh}")
        k.nop(2)
        for hh in range(2): e(f"v_max_f32 v{96+hh}, v{96+hh}, v{98+hh}")
        e("s_lshl_b32 s41, s38, 6"); e("s_add_u32 s41, s41, s35"); e("s_lshl_b32 s41, s41, 2"); e(f"s_add_u32 s41, s41, {WS_KM}")
        e("v_mov_b32 v100, 0")
        e("s_mov_b64 exec, 1")
        e("buffer_store_dword v96, v100, s[20:23], s41 offen")
        e("buffer_store_dword v97, v100, s[20:23], s41 offen offset:256")
        e("s_mov_b64 exec, -1")
        e(f"s_branch {lN}")
        k.lab(lV)
        e("s_lshl_b32 s40, s38, 16"); e("s_lshl_b32 s41, s35, 10"); e("s_add_u32 s40, s40, s41"); e(f"s_add_u32 s40, s40, {WS_V}")
        for i in range(8): e(f"v_cvt_pk_bf16_f32 v{88+i}, v{ACC+16*t+2*i}, v{ACC+16*t+2*i+1}")
        e(f"buffer_store_dwordx4 v[88:91], v3, s[20:23], s40 offen")
        e(f"buffer_store_dwordx4 v[92:95], v3, s[20:23], s40 offen offset:512")
        k.lab(lN)
        k.nop(4)
    if PROF: e("s_waitcnt vmcnt(0)")
    stamp(k, 6)
    stamp_out(k, 7, int(os.environ.get('G1BASE','64')))
    return k, 144, (256, 256, 57344)

KERNELS = {"gemm1": gemm1}

def build(names, out):
    import gen_more, gen_ssm, gen_l2
    allk = dict(KERNELS); allk.update(gen_more.KERNELS); allk.update(gen_ssm.KERNELS); allk.update(gen_l2.KERNELS)
    hdr = open("cdna_kernels/%s.s.ref" % NAME).read().split("; Override")[0]
    launches = []; bodies = []; descs = []
    for n in names:
        k, vg, (grid, block, lds) = allk[n]()
        t, d = k.text(vg)
        bodies.append(t); descs.append(d)
        launches.append(f"; @launch kernel={k.name} grid=({grid},1,1) block=({block},1,1) lds={lds}")
    s = hdr + "\n".join(launches) + "\n" + '.amdgcn_target "amdgcn-amd-amdhsa--gfx950"\n.text\n'
    s += "\n".join(bodies) + '\n.section .rodata,"a"\n' + "\n".join(".p2align 6\n" + d for d in descs) + "\n"
    open(out, "w").write(s)

if __name__ == "__main__":
    build(sys.argv[2:], sys.argv[1])
```

```python
import sys, math, struct, os
NAME = "concat_heads__ssm_conv_s4d__softmax_full_mha__prompt"
MB = 1 << 20
WS_Q, WS_K, WS_V, WS_O = 0, 2*MB, 4*MB, 6*MB
WS_KM = 8*MB
WS_UT = 9*MB
WS_KL = 11*MB
WS_SIZE = 13*MB

def f32bits(x): return struct.unpack("<I", struct.pack("<f", x))[0]
LOG2E = 1.4426950408889634
QSCALE = 0.25*LOG2E

class K:
    def __init__(self, name):
        self.name = name; self.L = []; self.uid = 0
    def e(self, s): self.L.append("    " + s)
    def lab(self, s): self.L.append(s + ":")
    def new(self, p="L"):
        self.uid += 1; return f"{p}_{self.name}_{self.uid}"
    def nop(self, n):
        while n > 0:
            k = min(n, 16); self.e(f"s_nop {k-1}"); n -= k
    def srd(self, s, base, size):
        self.e(f"s_mov_b32 s{s}, s{base}")
        self.e(f"s_and_b32 s{s+1}, s{base+1}, 0xffff")
        self.e(f"s_mov_b32 s{s+2}, {size}")
        self.e(f"s_mov_b32 s{s+3}, 0x00020000")
    def text(self, vgpr, sgpr=96):
        out = [f".globl {self.name}", ".p2align 8", f".type {self.name},@function", f"{self.name}:"]
        out += self.L
        out += [f"{self.name}_end:", "    s_endpgm"]
        acc = (vgpr + 3)//4*4
        desc = f""".amdhsa_kernel {self.name}
  .amdhsa_next_free_vgpr {vgpr}
  .amdhsa_next_free_sgpr {sgpr}
  .amdhsa_accum_offset {acc}
  .amdhsa_group_segment_fixed_size 0
  .amdhsa_kernarg_size 104
  .amdhsa_user_sgpr_count 2
  .amdhsa_user_sgpr_kernarg_segment_ptr 1
  .amdhsa_system_sgpr_workgroup_id_x 1
.end_amdhsa_kernel"""
        return "\n".join(out), desc

def vr(a, n): return f"v[{a}:{a+n-1}]" if n > 1 else f"v{a}"

def gemm1(k=None):
    from gen_more import stamp, stamp_out, PROF
    own = k is None
    if own:
        k = K("gemm1_kernel")
        k.e("s_cmp_ge_u32 s2, 256"); k.e(f"s_cbranch_scc1 {k.name}_end")
    e = k.e
    if PROF: e("s_memrealtime s[88:89]")
    stamp(k, 0)
    e("s_load_dwordx2 s[4:5], s[0:1], 56")
    e("s_load_dwordx2 s[6:7], s[0:1], 64")
    e("s_load_dwordx2 s[8:9], s[0:1], 96")
    e("v_lshrrev_b32 v1, 6, v0")
    e("v_and_b32 v0, 63, v0")
    e("s_nop 0")
    e("v_readfirstlane_b32 s3, v1")
    e("s_and_b32 s26, s2, 7"); e("s_lshr_b32 s27, s2, 3")
    e("s_lshr_b32 s24, s26, 1"); e("s_lshl_b32 s24, s24, 2"); e("s_and_b32 s28, s27, 3"); e("s_add_u32 s24, s24, s28")
    e("s_and_b32 s25, s26, 1"); e("s_lshl_b32 s25, s25, 3"); e("s_lshr_b32 s28, s27, 2"); e("s_add_u32 s25, s25, s28")
    e("s_waitcnt lgkmcnt(0)")
    k.srd(12, 4, 2*MB); k.srd(16, 6, 512*1536*2); k.srd(20, 8, WS_SIZE)
    e("s_lshl_b32 s26, s24, 7"); e("s_lshl_b32 s27, s3, 5"); e("s_add_u32 s26, s26, s27")
    e("v_and_b32 v2, 31, v0"); e("v_add_u32 v2, s26, v2"); e("v_lshlrev_b32 v2, 10, v2")
    e("v_lshrrev_b32 v3, 5, v0"); e("v_lshlrev_b32 v3, 4, v3"); e("v_add_u32 v2, v2, v3")
    e("s_movk_i32 s28, 171"); e("s_movk_i32 s29, 3072")
    for sub in range(3):
        e(f"v_add_u32 v3, {64*sub}, v0")
        e("v_mul_lo_u32 v7, v3, s28"); e("v_lshrrev_b32 v7, 11, v7")
        e("v_mul_u32_u24 v8, 12, v7"); e("v_sub_u32 v8, v3, v8")
        e("v_mul_lo_u32 v7, v7, s29"); e("v_lshlrev_b32 v8, 4, v8")
        e(f"v_add_u32 v{4+sub}, v7, v8")
    e("v_lshrrev_b32 v7, 5, v0"); e("v_lshlrev_b32 v7, 3, v7")
    e("v_and_b32 v8, 15, v0"); e("v_lshrrev_b32 v8, 2, v8"); e("v_add_u32 v7, v7, v8")
    e("v_mul_u32_u24 v7, 192, v7")
    e("v_lshrrev_b32 v8, 4, v0"); e("v_and_b32 v8, 1, v8"); e("v_lshlrev_b32 v8, 5, v8"); e("v_add_u32 v7, v7, v8")
    e("v_and_b32 v8, 3, v0"); e("v_lshlrev_b32 v8, 3, v8"); e("v_add_u32 v7, v7, v8")
    NR = 2
    XB = NR*12288
    XF = 128
    ACC = 16
    WF = 64
    for i in range(48): e(f"v_mov_b32 v{ACC+i}, 0")
    e("s_mul_i32 s30, s25, 192")
    e("s_lshl_b32 s42, s3, 4")
    e("s_mul_i32 s43, s42, 3072"); e("s_add_u32 s43, s43, s30")
    e("s_mul_i32 s44, s42, 192")
    e("v_lshrrev_b32 v10, 3, v0"); e("v_lshrrev_b32 v11, 1, v10"); e("v_and_b32 v12, 7, v0"); e("v_xor_b32 v12, v12, v11")
    e("v_lshlrev_b32 v10, 10, v10"); e("v_lshlrev_b32 v13, 4, v12"); e("v_add_u32 v8, v10, v13")
    e("v_xor_b32 v12, 4, v12"); e("v_lshlrev_b32 v13, 4, v12"); e("v_add_u32 v9, v10, v13")
    e("s_lshl_b32 s47, s26, 10")
    e("s_lshl_b32 s48, s3, 12")
    e("v_and_b32 v10, 31, v0"); e("v_lshrrev_b32 v11, 1, v10"); e("v_and_b32 v11, 7, v11"); e("v_lshrrev_b32 v12, 5, v0")
    e("v_lshlrev_b32 v10, 7, v10"); e("v_add_u32 v10, s48, v10"); e(f"v_add_u32 v10, {XB}, v10")
    for sl in range(4):
        e(f"v_add_u32 v13, {2*sl}, v12"); e("v_xor_b32 v13, v13, v11"); e("v_lshlrev_b32 v13, 4, v13"); e(f"v_add_u32 v{88+sl}, v10, v13")
    def loads(slot):
        for sub in range(3):
            e(f"s_add_u32 s34, s44, {slot*12288 + sub*1024}")
            e("s_mov_b32 m0, s34"); e("s_nop 0")
            e(f"buffer_load_dwordx4 v{4+sub}, s[16:19], s43 offen lds")
        for b8 in range(4):
            e(f"s_add_u32 s34, s48, {XB + slot*16384 + b8*1024}")
            e("s_mov_b32 m0, s34"); e(f"s_add_u32 s49, s47, {b8*8192}")
            e(f"buffer_load_dwordx4 v{8 + (b8&1)}, s[12:15], s49 offen lds")
        e(f"s_add_u32 s43, s43, {64*3072}"); e("s_add_u32 s47, s47, 128")
    loads(0)
    TOUCH = os.environ.get("TOUCH", "0") == "1"
    if TOUCH:
        e("v_and_b32 v92, 31, v0"); e("v_add_u32 v92, s26, v92"); e("v_lshlrev_b32 v92, 10, v92")
        e("v_lshrrev_b32 v93, 5, v0"); e("v_lshlrev_b32 v93, 7, v93"); e("v_add_u32 v92, v92, v93")
        for j in range(4): e(f"buffer_load_dword v{100+j}, v92, s[12:15], 0 offen offset:{j*256}")
        e("s_lshl_b32 s50, s3, 7"); e("v_lshrrev_b32 v93, 1, v0"); e("v_add_u32 v93, s50, v93"); e("v_mul_lo_u32 v93, v93, s29")
        e("v_and_b32 v94, 1, v0"); e("v_lshlrev_b32 v94, 7, v94"); e("v_add_u32 v93, v93, v94")
        e("s_and_b32 s50, s30, 0xffffff80")
        for j in range(4):
            e(f"buffer_load_dword v{104+j}, v93, s[16:19], s50 offen")
            e(f"s_add_u32 s50, s50, {32*3072}")
    lepi = k.new("EPI")
    def fread(slot, sl, pb):
        e(f"ds_read_b128 {vr(XF+4*pb,4)}, v{88+sl} offset:{slot*16384}")
        for t in range(3):
            for hs in range(2):
                e(f"ds_read_b64_tr_b16 {vr(WF+12*pb+4*t+2*hs,2)}, v7 offset:{slot*12288+sl*3072+hs*768+64*t}")
    def mf(t, pb, isV):
        a_ = vr(WF+12*pb+4*t, 4); b_ = vr(XF+4*pb, 4)
        if isV: a_, b_ = b_, a_
        e(f"v_mfma_f32_32x32x16_bf16 {vr(ACC+16*t,16)}, {a_}, {b_}, {vr(ACC+16*t,16)}")
    e("s_mov_b32 s46, 0")
    lp = k.new("LP"); k.lab(lp)
    for slot in range(2):
        if slot == 0 and TOUCH:
            lw = k.new("W0"); lw2 = k.new("W1")
            e("s_cmp_eq_u32 s46, 0"); e(f"s_cbranch_scc1 {lw}")
            e("s_waitcnt vmcnt(0)")
            k.lab(lw); e("s_waitcnt vmcnt(8)")
        else:
            e("s_waitcnt vmcnt(0)")
        e("s_barrier")
        if slot == 0:
            import gen_tl
            if gen_tl.TL:
                lq = k.new("TQ"); e("s_cmp_lg_u32 s46, 0"); e(f"s_cbranch_scc1 {lq}"); gen_tl.mark(k, 10); k.lab(lq)
        fread(slot, 0, 0)
        if slot == 0:
            loads(1)
        else:
            ls = k.new("SK"); e("s_cmp_eq_u32 s46, 3"); e(f"s_cbranch_scc1 {ls}"); loads(0); k.lab(ls)
        for sl in range(4):
            pb = sl & 1
            if sl < 3:
                fread(slot, sl+1, pb ^ 1); e("s_waitcnt lgkmcnt(7)")
            else:
                e("s_waitcnt lgkmcnt(0)")
            la = k.new("A"); lb = k.new("B"); lc = k.new("C"); ld = k.new("D")
            e("s_cmp_gt_u32 s25, 10"); e(f"s_cbranch_scc1 {la}")
            mf(0, pb, 0); mf(1, pb, 0)
            e("s_cmp_eq_u32 s25, 10"); e(f"s_cbranch_scc1 {lc}")
            mf(2, pb, 0); e(f"s_branch {ld}")
            k.lab(la); mf(0, pb, 1); mf(1, pb, 1)
            k.lab(lc); mf(2, pb, 1)
            k.lab(ld)
    e("s_add_u32 s46, s46, 1"); e("s_cmp_lt_u32 s46, 4"); e(f"s_cbranch_scc1 {lp}")
    k.lab(lepi)
    k.nop(16)
    gen_tl.mark(k, 11)
    stamp(k, 5)
    e("v_lshlrev_b32 v2, 4, v0")
    e("v_and_b32 v3, 15, v0"); e("v_lshlrev_b32 v3, 4, v3")
    e("v_lshrrev_b32 v4, 5, v0"); e("v_lshlrev_b32 v4, 8, v4"); e("v_add_u32 v3, v3, v4")
    e("v_lshrrev_b32 v4, 4, v0"); e("v_and_b32 v4, 1, v4"); e("v_lshlrev_b32 v4, 16, v4"); e("v_add_u32 v3, v3, v4")
    e("s_lshl_b32 s35, s24, 2"); e("s_add_u32 s35, s35, s3")
    for t in range(3):
        lV = k.new("EV"); lN = k.new("EN")
        e(f"s_mul_i32 s36, s25, 96"); e(f"s_add_u32 s36, s36, {32*t}")
        e("s_lshr_b32 s37, s36, 9")
        e("s_and_b32 s38, s36, 511"); e("s_lshr_b32 s38, s38, 4")
        e("s_cmp_eq_u32 s37, 2"); e(f"s_cbranch_scc1 {lV}")
        e("s_cmp_eq_u32 s37, 0"); e(f"s_cselect_b32 s39, {hex(f32bits(QSCALE))}, 1.0")
        e("s_lshl_b32 s40, s37, 21")
        e("s_lshl_b32 s41, s38, 6"); e("s_add_u32 s41, s41, s35"); e("s_lshl_b32 s41, s41, 10"); e("s_add_u32 s40, s40, s41")
        for i in range(16): e(f"v_mul_f32 v{ACC+16*t+i}, s39, v{ACC+16*t+i}")
        for i in range(8): e(f"v_cvt_pk_bf16_f32 v{88+i}, v{ACC+16*t+2*i}, v{ACC+16*t+2*i+1}")
        e(f"buffer_store_dwordx4 v[88:91], v2, s[20:23], s40 offen")
        e("s_add_u32 s40, s40, 65536")
        e(f"buffer_store_dwordx4 v[92:95], v2, s[20:23], s40 offen")
        e("s_cmp_lg_u32 s37, 1"); e(f"s_cbranch_scc1 {lN}")
        for hh in range(2):
            b = ACC+16*t+8*hh
            e(f"v_mul_f32 v{96+hh}, v{b}, v{b}")
            for i in range(1, 8): e(f"v_fmac_f32 v{96+hh}, v{b+i}, v{b+i}")
        for hh in range(2): e(f"v_mov_b32 v{98+hh}, v{96+hh}")
        k.nop(2)
        for hh in range(2): e(f"v_permlane32_swap_b32 v{96+hh}, v{98+hh}")
        k.nop(2)
        for hh in range(2): e(f"v_add_f32 v{96+hh}, v{96+hh}, v{98+hh}")
        for mod in ("quad_perm:[1,0,3,2]", "quad_perm:[2,3,0,1]", "row_half_mirror", "row_mirror"):
            k.nop(2)
            for hh in range(2): e(f"v_max_f32_dpp v{96+hh}, v{96+hh}, v{96+hh} {mod} row_mask:0xf bank_mask:0xf")
        for hh in range(2): e(f"v_mov_b32 v{98+hh}, v{96+hh}")
        k.nop(2)
        for hh in range(2): e(f"v_permlane16_swap_b32 v{96+hh}, v{98+hh}")
        k.nop(2)
        for hh in range(2): e(f"v_max_f32 v{96+hh}, v{96+hh}, v{98+hh}")
        e("s_lshl_b32 s41, s38, 6"); e("s_add_u32 s41, s41, s35"); e("s_lshl_b32 s41, s41, 2"); e(f"s_add_u32 s41, s41, {WS_KM}")
        e("v_mov_b32 v100, 0")
        e("s_mov_b64 exec, 1")
        e("buffer_store_dword v96, v100, s[20:23], s41 offen")
        e("buffer_store_dword v97, v100, s[20:23], s41 offen offset:256")
        e("s_mov_b64 exec, -1")
        e(f"s_branch {lN}")
        k.lab(lV)
        e("s_lshl_b32 s40, s38, 16"); e("s_lshl_b32 s41, s35, 10"); e("s_add_u32 s40, s40, s41"); e(f"s_add_u32 s40, s40, {WS_V}")
        for i in range(8): e(f"v_cvt_pk_bf16_f32 v{88+i}, v{ACC+16*t+2*i}, v{ACC+16*t+2*i+1}")
        e(f"buffer_store_dwordx4 v[88:91], v3, s[20:23], s40 offen")
        e(f"buffer_store_dwordx4 v[92:95], v3, s[20:23], s40 offen offset:512")
        k.lab(lN)
        k.nop(4)
    if PROF: e("s_waitcnt vmcnt(0)")
    stamp(k, 6)
    stamp_out(k, 7, int(os.environ.get('G1BASE','64')))
    return k, 144, (256, 256, 57344)

KERNELS = {"gemm1": gemm1}

def build(names, out):
    import gen_more, gen_ssm, gen_l2
    allk = dict(KERNELS); allk.update(gen_more.KERNELS); allk.update(gen_ssm.KERNELS); allk.update(gen_l2.KERNELS)
    hdr = open("cdna_kernels/%s.s.ref" % NAME).read().split("; Override")[0]
    launches = []; bodies = []; descs = []
    for n in names:
        k, vg, (grid, block, lds) = allk[n]()
        t, d = k.text(vg)
        bodies.append(t); descs.append(d)
        launches.append(f"; @launch kernel={k.name} grid=({grid},1,1) block=({block},1,1) lds={lds}")
    s = hdr + "\n".join(launches) + "\n" + '.amdgcn_target "amdgcn-amd-amdhsa--gfx950"\n.text\n'
    s += "\n".join(bodies) + '\n.section .rodata,"a"\n' + "\n".join(".p2align 6\n" + d for d in descs) + "\n"
    open(out, "w").write(s)

if __name__ == "__main__":
    build(sys.argv[2:], sys.argv[1])
```
